```python
import torch

def _softmax(x, axis=-1):
    return torch.softmax(x, dim=axis)
def _gelu(x):
    return torch.nn.functional.gelu(x, approximate="tanh")
def _silu(x):
    return torch.nn.functional.silu(x)
def _sigmoid(x):
    return torch.sigmoid(x)
def _layernorm(x, axis=-1, eps=1e-5):
    m = x.mean(dim=axis, keepdim=True)
    v = x.var(dim=axis, keepdim=True, unbiased=False)
    return (x - m) / torch.sqrt(v + eps)
def _scatter_add(tgt, idx, src, axis=0):
    return tgt.clone().index_add_(axis, idx, src)
def _segment_sum(src, seg, n):
    out = torch.zeros((n,) + src.shape[1:], dtype=src.dtype)
    return out.index_add_(0, seg, src)
def _pad(x, pw):
    flat = tuple(v for pair in reversed(pw) for v in pair)
    return torch.nn.functional.pad(x, flat)

kernel_name = 'standalone__mixer_s_mlp__prompt'

def setup_inputs():

    _w = (lambda a: (lambda t: t.to(torch.bfloat16) if t.is_floating_point() else t)(torch.as_tensor(a)))
    B, S, D, F = 1, 2048, 1024, 3584
    return {
        "x":  _w((lambda *s: torch.randn(*s, dtype=torch.bfloat16) * 0.4)(B, S, D)),
        "w1": _w((lambda *s: torch.randn(*s, dtype=torch.bfloat16) * 3.2)(D, D) * (D ** -0.5)),
        "w2": _w((lambda *s: torch.randn(*s, dtype=torch.bfloat16) * 3.2)(D, D) * (D ** -0.5)),
        "w3": _w((lambda *s: torch.randn(*s, dtype=torch.bfloat16) * 3.2)(D, F) * (D ** -0.5)),
        "w4": _w((lambda *s: torch.randn(*s, dtype=torch.bfloat16) * 0.8)(F, D) * (F ** -0.5)),
    }

def reference(x, w1, w2, w3, w4):
    B, S, D = x.shape
    h = _gelu(_layernorm(x, axis=-1) @ w1)
    c = D // 4
    g0 = _pad(h[:, :, 0*c:1*c], ((0, 0), (1, 0), (0, 0)))[:, :S, :]
    g1 = _pad(h[:, :, 1*c:2*c], ((0, 0), (0, 1), (0, 0)))[:, 1:, :]
    g2 = _pad(h[:, :, 2*c:3*c], ((0, 0), (2, 0), (0, 0)))[:, :S, :]
    g3 = _pad(h[:, :, 3*c:   ], ((0, 0), (0, 2), (0, 0)))[:, 2:, :]
    hs = torch.concatenate([g0, g1, g2, g3], axis=-1) @ w2
    x1 = x + hs
    h2 = _gelu(_layernorm(x1, axis=-1) @ w3) @ w4
    return x1 + h2
```

```python
import sys

S_, D_, F_ = 2048, 1024, 3584
WS_H, WS_X1, WS_G = 0, 4 << 20, 8 << 20
WS_PART2 = 24 << 20
WS_CS3 = (24 << 20) + (256 << 10)
C0 = -2.0 * 0.7978845608028654 * 1.4426950408889634
C1 = C0 * 0.044715

import struct
def f2u(f):
    return struct.unpack('<I', struct.pack('<f', f))[0]

class Asm:
    def __init__(self):
        self.L = []
    def __call__(self, s):
        self.L.append('    ' + s)
    def label(self, s):
        self.L.append(s + ':')
    def c(self, s):
        self.L.append('    ; ' + s)
    def text(self):
        return '\n'.join(self.L) + '\n'

def vr(b, n=1):
    return 'v%d' % b if n == 1 else 'v[%d:%d]' % (b, b + n - 1)
def sr(b, n=1):
    return 's%d' % b if n == 1 else 's[%d:%d]' % (b, b + n - 1)

SRD_T, SRD_W, SRD_R, SRD_O, SRD_X, SRD_Y = 8, 12, 16, 20, 24, 28
S_WAVE, S_ROW, S_COL, S_ROLE, S_I, S_J = 32, 33, 34, 35, 36, 37
S_OFT, S_OFW, S_CNT, S_SLOT, S_PT, S_PW = 38, 39, 40, 41, 42, 43
S_T0, S_T1, S_T2, S_T3 = 44, 45, 46, 47
S_RB, S_CBK = 48, 49
S_C0, S_C1, S_MASK = 50, 51, 52

class Cfg:
    pass

def mk_srd(a, dst, base_lo, base_hi, add, nbytes):
    if add:
        a('s_add_u32 %s, %s, 0x%x' % (sr(dst), sr(base_lo), add))
        a('s_addc_u32 %s, %s, 0' % (sr(dst + 1), sr(base_hi)))
    else:
        a('s_mov_b32 %s, %s' % (sr(dst), sr(base_lo)))
        a('s_mov_b32 %s, %s' % (sr(dst + 1), sr(base_hi)))
    a('s_mov_b32 %s, 0x%x' % (sr(dst + 2), nbytes))
    a('s_mov_b32 %s, 0x20000' % sr(dst + 3))

def gen_kernel(a, c):
    name = c.name
    BN, CB, NS, S = c.BN, c.BN // 32, c.K // 64, c.S
    WROW = BN * 2
    STAGE = 16384 + 64 * WROW
    NWQ = (64 * WROW // 1024) // 4
    NDMA = 4 + NWQ
    RS = BN * 2 + 16
    NRB = 128 * BN // 8 // 64 // 8
    CPR = BN // 8
    L = lambda s: '%s_%s' % (name, s)

    a.L.append('.globl %s' % name)
    a.L.append('.p2align 8')
    a.L.append('.type %s,@function' % name)
    a.label(name)
    a('s_cmp_ge_u32 s2, 256')
    a('s_cbranch_scc1 %s' % L('done'))
    a('s_load_dwordx16 s[56:71], s[0:1], 0')
    P = {'x': 56, 'w1': 58, 'w2': 60, 'w3': 62, 'w4': 64, 'out': 66, 'dbg': 68, 'ws': 70}
    a('s_and_b32 s3, s2, 7')
    a('s_lshr_b32 %s, s2, 3' % sr(S_T0))
    if c.map == '4x8':
        a('s_lshr_b32 %s, s3, 1' % sr(S_T1))
        a('s_lshl_b32 %s, %s, 2' % (sr(S_T1), sr(S_T1)))
        a('s_lshr_b32 %s, %s, 3' % (sr(S_T2), sr(S_T0)))
        a('s_add_u32 %s, %s, %s' % (sr(S_RB), sr(S_T1), sr(S_T2)))
        a('s_and_b32 %s, s3, 1' % sr(S_T1))
        a('s_lshl_b32 %s, %s, 3' % (sr(S_T1), sr(S_T1)))
        a('s_and_b32 %s, %s, 7' % (sr(S_T2), sr(S_T0)))
        a('s_add_u32 %s, %s, %s' % (sr(S_CBK), sr(S_T1), sr(S_T2)))
    elif c.map == '8x4':
        a('s_lshr_b32 %s, s3, 2' % sr(S_T1))
        a('s_lshl_b32 %s, %s, 3' % (sr(S_T1), sr(S_T1)))
        a('s_lshr_b32 %s, %s, 2' % (sr(S_T2), sr(S_T0)))
        a('s_add_u32 %s, %s, %s' % (sr(S_RB), sr(S_T1), sr(S_T2)))
        a('s_and_b32 %s, s3, 3' % sr(S_T1))
        a('s_lshl_b32 %s, %s, 2' % (sr(S_T1), sr(S_T1)))
        a('s_and_b32 %s, %s, 3' % (sr(S_T2), sr(S_T0)))
        a('s_add_u32 %s, %s, %s' % (sr(S_CBK), sr(S_T1), sr(S_T2)))
    elif c.map == 'lin':
        a('s_lshr_b32 %s, s2, 4' % sr(S_RB))
        a('s_and_b32 %s, s2, 15' % sr(S_CBK))
    a('s_lshl_b32 %s, %s, 7' % (sr(S_ROW), sr(S_RB)))
    a('s_mul_i32 %s, %s, %d' % (sr(S_COL), sr(S_CBK), BN))
    a('v_lshrrev_b32 v1, 6, v0')
    a('v_and_b32 v2, 63, v0')
    a('s_nop 0')
    a('v_readfirstlane_b32 %s, v1' % sr(S_WAVE))
    a('s_mov_b32 %s, 0x%x' % (sr(S_C0), f2u(C0)))
    a('s_mov_b32 %s, 0x%x' % (sr(S_C1), f2u(C1)))
    a('s_mov_b32 %s, 0xffff0000' % sr(S_MASK))
    a('s_waitcnt lgkmcnt(0)')
    def ptr(nm):
        if isinstance(nm, tuple):
            return P['ws'], P['ws'] + 1, nm[1]
        return P[nm], P[nm] + 1, 0
    lo, hi, ad = ptr(c.T); mk_srd(a, SRD_T, lo, hi, ad, c.Tbytes)
    lo, hi, ad = ptr(c.W); mk_srd(a, SRD_W, lo, hi, ad, c.Wbytes)
    lo, hi, ad = ptr(c.O); mk_srd(a, SRD_O, lo, hi, ad, c.Obytes)
    if c.R is not None:
        lo, hi, ad = ptr(c.R); mk_srd(a, SRD_R, lo, hi, ad, S_ * D_ * 2)
    if c.epi == 'resid_stats':
        mk_srd(a, SRD_X, P['ws'], P['ws'] + 1, WS_PART2, 16 * S_ * 8)
        mk_srd(a, SRD_Y, P['ws'], P['ws'] + 1, WS_CS3, 16 * F_ * 4)
        mk_srd(a, 72, P['w3'], P['w3'] + 1, 0, D_ * F_ * 2)
    if c.epi == 'gelu_pre':
        mk_srd(a, SRD_X, P['ws'], P['ws'] + 1, WS_PART2, 16 * S_ * 8)
        mk_srd(a, SRD_Y, P['ws'], P['ws'] + 1, WS_CS3, 16 * F_ * 4)

    def rb_idx(q, vrow, vch, vtmp):
        a('s_mul_i32 %s, %s, %d' % (sr(S_T0), sr(S_WAVE), NRB * 64))
        a('s_add_u32 %s, %s, %d' % (sr(S_T0), sr(S_T0), q * 64))
        a('v_add_u32 %s, %s, v2' % (vr(vtmp), sr(S_T0)))
        if CPR == 8:
            a('v_lshrrev_b32 %s, 3, %s' % (vr(vrow), vr(vtmp)))
            a('v_and_b32 %s, 7, %s' % (vr(vch), vr(vtmp)))
        else:
            assert CPR == 28
            a('v_mul_u32_u24 %s, 2341, %s' % (vr(vrow), vr(vtmp)))
            a('v_lshrrev_b32 %s, 16, %s' % (vr(vrow), vr(vrow)))
            a('v_mul_u32_u24 %s, 28, %s' % (vr(vch), vr(vrow)))
            a('v_sub_u32 %s, %s, %s' % (vr(vch), vr(vtmp), vr(vch)))
    V_RES = 240
    V_RBG = 248
    if c.R is not None:
        assert NRB == 2
        for q in range(NRB):
            rb_idx(q, 3, 4, 5)
            a('v_add_u32 v3, %s, v3' % sr(S_ROW))
            a('v_lshlrev_b32 v3, 11, v3')
            a('v_lshlrev_b32 v4, 4, v4')
            a('s_lshl_b32 %s, %s, 1' % (sr(S_T1), sr(S_COL)))
            a('v_add3_u32 %s, v3, v4, %s' % (vr(V_RBG + q), sr(S_T1)))
            a('buffer_load_dwordx4 %s, %s, %s, 0 offen' % (vr(V_RES + 4 * q, 4), vr(V_RBG + q), sr(SRD_R, 4)))

    a('s_cmp_ge_u32 %s, 4' % sr(S_WAVE))
    a('s_cbranch_scc1 %s' % L('prod'))

    a('s_lshr_b32 %s, %s, 1' % (sr(S_I), sr(S_WAVE)))
    a('s_and_b32 %s, %s, 1' % (sr(S_J), sr(S_WAVE)))
    VT = [[None] * 4, [None] * 4]
    VW = [[None] * CB, [None] * CB]
    nxt = 32
    for st in range(2):
        for tb in range(4):
            VT[st][tb] = nxt; nxt += 4
        for cb in range(CB):
            VW[st][cb] = nxt; nxt += 4
    ACC = [[None] * CB for _ in range(4)]
    nxt = 128
    for tb in range(4):
        for cb in range(CB):
            ACC[tb][cb] = nxt; nxt += 4
    assert nxt <= 240
    bT0, bT1, bW0, bW1 = 8, 9, 10, 11
    aT0, aT1, aW0, aW1 = 12, 13, 14, 15
    a('v_and_b32 v3, 15, v2')
    a('v_lshrrev_b32 v4, 4, v2')
    a('s_lshl_b32 %s, %s, 13' % (sr(S_T0), sr(S_I)))
    a('v_lshlrev_b32 v5, 7, v3')
    a('v_lshrrev_b32 v6, 1, v3')
    a('v_xor_b32 v6, v6, v4')
    a('v_lshlrev_b32 v6, 4, v6')
    a('v_add3_u32 %s, v5, v6, %s' % (vr(bT0), sr(S_T0)))
    a('v_xor_b32 %s, 64, %s' % (vr(bT1), vr(bT0)))
    a('v_lshrrev_b32 v5, 2, v3')
    a('v_lshl_add_u32 v6, v4, 3, v5')
    a('v_and_b32 v7, 3, v2')
    if BN == 64:
        a('v_lshlrev_b32 v6, 7, v6')
        a('v_lshl_add_u32 v6, v7, 3, v6')
        a('v_lshrrev_b32 v5, 1, v5')
        a('v_and_b32 v7, 1, v4')
        a('v_lshl_or_b32 v5, v7, 1, v5')
        a('s_lshl_b32 %s, %s, 1' % (sr(S_T0), sr(S_J)))
        a('v_xor_b32 v5, %s, v5' % sr(S_T0))
        a('v_lshl_add_u32 v6, v5, 5, v6')
        a('v_add_u32 %s, 16384, v6' % vr(bW0))
        a('v_xor_b32 %s, 32, %s' % (vr(bW1), vr(bW0)))
        woff = lambda s, cb, h: s * 4096 + h * 512
        wreg = lambda cb: cb
    else:
        a('v_mul_u32_u24 v6, 448, v6')
        a('v_lshl_add_u32 v6, v7, 3, v6')
        a('s_mul_i32 %s, %s, %d' % (sr(S_T0), sr(S_J), 7 * 32))
        a('s_add_u32 %s, %s, 16384' % (sr(S_T0), sr(S_T0)))
        a('v_add_u32 v6, %s, v6' % sr(S_T0))
        a('v_and_b32 v7, 1, v4')
        a('v_lshlrev_b32 v7, 5, v7')
        a('v_add_u32 v5, v6, v7')
        a('v_sub_u32 v6, v6, v7')
        a('s_cmp_eq_u32 %s, 0' % sr(S_J))
        a('s_cselect_b64 vcc, -1, 0')
        a('v_cndmask_b32 %s, v6, v5, vcc' % vr(bW0))
        a('v_cndmask_b32 %s, v5, v6, vcc' % vr(bW1))
        woff = lambda s, cb, h: cb * 32 + s * 32 * 448 + h * 4 * 448
        wreg = lambda cb: cb & 1
    for tb in range(4):
        for cb in range(CB):
            for r in range(4):
                a('v_mov_b32 %s, 0' % vr(ACC[tb][cb] + r))
    VS = 16
    V_ONES = 21
    if c.epi == 'gelu_inloop':
        for r in range(5):
            a('v_mov_b32 %s, 0' % vr(VS + r))
        a('v_mov_b32 %s, 0x3f803f80' % vr(V_ONES))
    if c.epi == 'gelu_pre':
        SP_OFF = S * STAGE
        CS_OFF = SP_OFF + 2048
        a('v_and_b32 v5, 127, v0')
        a('v_lshrrev_b32 v6, 7, v0')
        a('v_add_u32 v7, %s, v5' % sr(S_ROW))
        a('v_lshlrev_b32 v7, 3, v7')
        a('v_lshl_add_u32 v7, v6, 17, v7')
        for m in range(8):
            a('s_mov_b32 %s, 0x%x' % (sr(S_T0), m * S_ * 8))
            a('buffer_load_dwordx2 %s, v7, %s, %s offen' % (vr(32 + 2 * m, 2), sr(SRD_X, 4), sr(S_T0)))
        a('v_add_u32 v22, %s, v0' % sr(S_COL))
        a('v_lshlrev_b32 v22, 2, v22')
        a('v_cmp_gt_u32 vcc, 224, v0')
        a('v_mov_b32 v23, 0x7ffffff0')
        a('s_nop 0')
        a('v_cndmask_b32 v22, v23, v22, vcc')
        for m in range(16):
            a('s_mov_b32 %s, 0x%x' % (sr(S_T0), m * F_ * 4))
            a('buffer_load_dword %s, v22, %s, %s offen' % (vr(48 + m), sr(SRD_Y, 4), sr(S_T0)))
        a('s_waitcnt vmcnt(16)')
        for m in range(1, 8):
            a('v_add_f32 v32, v32, %s' % vr(32 + 2 * m))
            a('v_add_f32 v33, v33, %s' % vr(33 + 2 * m))
        a('v_lshlrev_b32 v5, 3, v5')
        a('v_lshl_add_u32 v5, v6, 10, v5')
        a('ds_write_b64 v5, v[32:33] offset:%d' % SP_OFF) if SP_OFF < 65536 else None
        if SP_OFF >= 65536:
            a('v_add_u32 v5, 0x%x, v5' % SP_OFF)
            a('ds_write_b64 v5, v[32:33]')
        a('s_waitcnt vmcnt(0)')
        for m in range(1, 16):
            a('v_add_f32 v48, v48, %s' % vr(48 + m))
        a('v_lshlrev_b32 v5, 2, v0')
        a('v_add_u32 v5, 0x%x, v5' % CS_OFF)
        a('ds_write_b32 v5, v48')
        a('s_waitcnt lgkmcnt(0)')

    def reads(st, s, aT):
        r = []
        order = []
        order.append(('T', 0)); order.append(('W', 0)); order += [('T', 1), ('T', 2), ('T', 3)]
        order += [('W', cb) for cb in range(1, CB)]
        for kind, i in order:
            if kind == 'T':
                r.append('ds_read_b128 %s, %s offset:%d' % (vr(VT[st][i], 4), vr(aT), i * 2048))
            else:
                r.append('ds_read_b64_tr_b16 %s, %s offset:%d' % (vr(VW[st][i], 2), vr(aW0 + wreg(i)), woff(s, i, 0)))
                r.append('ds_read_b64_tr_b16 %s, %s offset:%d' % (vr(VW[st][i] + 2, 2), vr(aW0 + wreg(i)), woff(s, i, 1)))
        return r
    def mfmas(st):
        m = []
        for cb in range(CB):
            for tb in range(4):
                m.append('v_mfma_f32_16x16x32_bf16 %s, %s, %s, %s' % (vr(ACC[tb][cb], 4), vr(VW[st][cb], 4), vr(VT[st][tb], 4), vr(ACC[tb][cb], 4)))
        return m
    def stats_ops(st):
        return []
    def interleave(ms, rs, extra=()):
        rs = list(rs); extra = list(extra)
        n = len(ms)
        per = (len(extra) + n - 1) // n if extra else 0
        for i, m in enumerate(ms):
            a(m)
            if rs:
                a(rs.pop(0))
            for _ in range(per):
                if extra:
                    a(extra.pop(0))
        for r_ in rs: a(r_)
        for e in extra: a(e)

    def dots(st, j, i):
        e = []
        for z in range(2):
            tb = 2 * j + z
            for d in range(4):
                e.append('v_dot2c_f32_bf16 %s, %s, %s' % (vr(VS + 2 * z), vr(VT[st][tb] + d), vr(V_ONES)))
                e.append('v_dot2c_f32_bf16 %s, %s, %s' % (vr(VS + 2 * z + 1), vr(VT[st][tb] + d), vr(VT[st][tb] + d)))
        for d in range(4):
            e.append('v_dot2c_f32_bf16 %s, %s, %s' % (vr(VS + 4), vr(VW[st][i] + d), vr(V_ONES)))
        return e

    def setaddr(regs):
        for ar, br in regs:
            a('v_add_u32 %s, %s, %s' % (vr(ar), sr(S_SLOT), vr(br)))

    def mainloop(tag, j, i):
        ex = (lambda st: dots(st, j, i)) if c.epi == 'gelu_inloop' else (lambda st: [])
        a('s_mov_b32 %s, 0' % sr(S_SLOT))
        a('s_mov_b32 %s, %d' % (sr(S_CNT), NS))
        a('s_barrier')
        setaddr([(aT0, bT0), (aT1, bT1), (aW0, bW0), (aW1, bW1)])
        if not c.noread:
            for r_ in reads(0, 0, aT0): a(r_)
        a.label(L('loop' + tag))
        a('s_waitcnt lgkmcnt(0)')
        if c.nomfma:
            interleave([], reads(1, 1, aT1) if not c.noread else [])
        else:
            interleave(mfmas(0), reads(1, 1, aT1) if not c.noread else [], ex(0))
        a('s_add_u32 %s, %s, %d' % (sr(S_SLOT), sr(S_SLOT), STAGE))
        a('s_cmp_eq_u32 %s, %d' % (sr(S_SLOT), S * STAGE))
        a('s_cselect_b32 %s, 0, %s' % (sr(S_SLOT), sr(S_SLOT)))
        setaddr([(aT0, bT0), (aW0, bW0), (aW1, bW1)])
        a('s_waitcnt lgkmcnt(0)')
        a('s_barrier')
        if c.nomfma:
            interleave([], reads(0, 0, aT0) if not c.noread else [])
        else:
            interleave(mfmas(1), reads(0, 0, aT0) if not c.noread else [], ex(1))
        setaddr([(aT1, bT1)])
        a('s_sub_u32 %s, %s, 1' % (sr(S_CNT), sr(S_CNT)))
        a('s_cmp_lg_u32 %s, 0' % sr(S_CNT))
        a('s_cbranch_scc1 %s' % L('loop' + tag))

    if c.epi == 'gelu_inloop':
        for w in range(4):
            if w < 3:
                a('s_cmp_lg_u32 %s, %d' % (sr(S_WAVE), w))
                a('s_cbranch_scc1 %s' % L('ver%d' % (w + 1)))
            mainloop('_%d' % w, w & 1, w >> 1)
            a('s_branch %s' % L('after'))
            if w < 3:
                a.label(L('ver%d' % (w + 1)))
        a.label(L('after'))
    else:
        mainloop('', 0, 0)
    a('s_waitcnt lgkmcnt(0)')
    a('s_nop 7')
    a('s_nop 7')
    a('s_mul_i32 %s, %s, %d' % (sr(S_T0), sr(S_I), 64 * RS))
    a('s_mul_i32 %s, %s, %d' % (sr(S_T1), sr(S_J), CB * 32))
    a('s_add_u32 %s, %s, %s' % (sr(S_T0), sr(S_T0), sr(S_T1)))
    a('v_mul_u32_u24 v5, %d, v3' % RS)
    a('v_lshl_add_u32 v5, v4, 3, v5')
    a('v_add_u32 v5, %s, v5' % sr(S_T0))
    gelu = c.epi in ('gelu_inloop', 'gelu_pre')
    if gelu:
        VM = 32
        if c.epi == 'gelu_inloop':
            SP_OFF = 32768; CS_OFF = SP_OFF + 4096
            a('s_lshl_b32 %s, %s, 6' % (sr(S_T0), sr(S_I)))
            a('s_lshl_b32 %s, %s, 5' % (sr(S_T1), sr(S_J)))
            a('s_add_u32 %s, %s, %s' % (sr(S_T0), sr(S_T0), sr(S_T1)))
            a('v_add_u32 v6, %s, v3' % sr(S_T0))
            a('v_lshlrev_b32 v6, 3, v6')
            a('v_lshl_add_u32 v6, v4, 10, v6')
            a('ds_write_b64 v6, v[16:17] offset:%d' % SP_OFF)
            a('ds_write_b64 v6, v[18:19] offset:%d' % (SP_OFF + 128))
            a('s_lshl_b32 %s, %s, 1' % (sr(S_T0), sr(S_J)))
            a('s_add_u32 %s, %s, %s' % (sr(S_T0), sr(S_T0), sr(S_I)))
            a('s_lshl_b32 %s, %s, 4' % (sr(S_T0), sr(S_T0)))
            a('v_add_u32 v6, %s, v3' % sr(S_T0))
            a('v_lshlrev_b32 v6, 2, v6')
            a('v_lshl_add_u32 v6, v4, 8, v6')
            a('ds_write_b32 v6, v20 offset:%d' % CS_OFF)
            a('s_waitcnt lgkmcnt(0)')
            a('s_barrier')
            NSP, SPG = 4, 1024
            NCS, CSG = 4, 256
        else:
            SP_OFF = S * STAGE; CS_OFF = SP_OFF + 2048
            NSP, SPG = 2, 1024
            NCS, CSG = 1, 0
        a('s_lshl_b32 %s, %s, 6' % (sr(S_T0), sr(S_I)))
        a('v_add_u32 v6, %s, v3' % sr(S_T0))
        a('v_lshlrev_b32 v6, 3, v6')
        a('v_add_u32 v6, 0x%x, v6' % SP_OFF)
        for tb in range(4):
            for g in range(NSP):
                a('ds_read_b64 %s, v6 offset:%d' % (vr(40 + (tb * NSP + g) * 2, 2), tb * 128 + g * SPG))
        a('s_waitcnt lgkmcnt(0)')
        for tb in range(4):
            b = 40 + tb * NSP * 2
            for g in range(1, NSP):
                a('v_add_f32 %s, %s, %s' % (vr(b), vr(b), vr(b + 2 * g)))
                a('v_add_f32 %s, %s, %s' % (vr(b + 1), vr(b + 1), vr(b + 2 * g + 1)))
            a('v_mul_f32 %s, 0x%x, %s' % (vr(VM + tb), f2u(1.0 / 1024), vr(b)))
            a('v_mul_f32 %s, 0x%x, %s' % (vr(b + 1), f2u(1.0 / 1024), vr(b + 1)))
            a('v_fma_f32 %s, -%s, %s, %s' % (vr(b + 1), vr(VM + tb), vr(VM + tb), vr(b + 1)))
            a('v_max_f32 %s, 0, %s' % (vr(b + 1), vr(b + 1)))
            if c.mimic:
                a('v_cvt_pk_bf16_f32 %s, %s, %s' % (vr(b), vr(VM + tb), vr(b + 1)))
                a('v_lshlrev_b32 %s, 16, %s' % (vr(VM + tb), vr(b)))
                a('v_and_b32 %s, %s, %s' % (vr(b + 1), sr(S_MASK), vr(b)))
                a('v_add_f32 %s, 0x%x, %s' % (vr(b + 1), f2u(1e-5), vr(b + 1)))
                a('v_cvt_pk_bf16_f32 %s, %s, %s' % (vr(b + 1), vr(b + 1), vr(b + 1)))
                a('v_and_b32 %s, %s, %s' % (vr(b + 1), sr(S_MASK), vr(b + 1)))
                a('v_sqrt_f32 %s, %s' % (vr(b + 1), vr(b + 1)))
                a('s_nop 0')
                a('v_cvt_pk_bf16_f32 %s, %s, %s' % (vr(b + 1), vr(b + 1), vr(b + 1)))
                a('v_and_b32 %s, %s, %s' % (vr(b + 1), sr(S_MASK), vr(b + 1)))
                a('v_rcp_f32 %s, %s' % (vr(VM + 4 + tb), vr(b + 1)))
            else:
                a('v_add_f32 %s, 0x%x, %s' % (vr(b + 1), f2u(1e-5), vr(b + 1)))
                a('v_rsq_f32 %s, %s' % (vr(VM + 4 + tb), vr(b + 1)))
        a('s_mul_i32 %s, %s, %d' % (sr(S_T0), sr(S_J), CB * 64))
        a('s_add_u32 %s, %s, 0x%x' % (sr(S_T0), sr(S_T0), CS_OFF))
        a('v_lshlrev_b32 v6, 4, v4')
        a('v_add_u32 v6, %s, v6' % sr(S_T0))
        VC = 80
        for cb in range(CB):
            a('ds_read_b128 %s, v6 offset:%d' % (vr(VC + 4 * cb, 4), cb * 64))
            for g in range(1, NCS):
                a('ds_read_b128 %s, v6 offset:%d' % (vr(108 + 4 * g, 4), cb * 64 + g * CSG))
            if NCS > 1:
                a('s_waitcnt lgkmcnt(0)')
                for g in range(1, NCS):
                    for r in range(4):
                        a('v_add_f32 %s, %s, %s' % (vr(VC + 4 * cb + r), vr(VC + 4 * cb + r), vr(108 + 4 * g + r)))
        a('s_waitcnt lgkmcnt(0)')
    a('v_mov_b32 v28, %s' % sr(S_C0))
    for tb in range(4):
        for cb in range(CB):
            A0 = ACC[tb][cb]
            if gelu:
                for r in range(4):
                    u = A0 + r
                    a('v_fma_f32 %s, -%s, %s, %s' % (vr(u), vr(VM + tb), vr(VC + 4 * cb + r), vr(u)))
                    a('v_mul_f32 %s, %s, %s' % (vr(u), vr(u), vr(VM + 4 + tb)))
                for r in range(4):
                    u = A0 + r; t = 24 + r
                    a('v_mul_f32 %s, %s, %s' % (vr(t), vr(u), vr(u)))
                    a('v_fma_f32 %s, %s, %s, %s' % (vr(t), vr(t), sr(S_C1), vr(28)))
                    a('v_mul_f32 %s, %s, %s' % (vr(t), vr(t), vr(u)))
                for r in range(4):
                    a('v_exp_f32 %s, %s' % (vr(24 + r), vr(24 + r)))
                for r in range(4):
                    a('v_add_f32 %s, 1.0, %s' % (vr(24 + r), vr(24 + r)))
                for r in range(4):
                    a('v_rcp_f32 %s, %s' % (vr(24 + r), vr(24 + r)))
                a('s_nop 0')
                for r in range(4):
                    a('v_mul_f32 %s, %s, %s' % (vr(A0 + r), vr(A0 + r), vr(24 + r)))
            a('v_cvt_pk_bf16_f32 %s, %s, %s' % (vr(A0), vr(A0), vr(A0 + 1)))
            a('v_cvt_pk_bf16_f32 %s, %s, %s' % (vr(A0 + 1), vr(A0 + 2), vr(A0 + 3)))
            a('ds_write_b64 v5, %s offset:%d' % (vr(A0, 2), tb * 16 * RS + cb * 32))
    a('s_waitcnt lgkmcnt(0)')
    a('s_branch %s' % L('store'))

    a.label(L('prod'))
    a('s_sub_u32 %s, %s, 4' % (sr(S_ROLE), sr(S_WAVE)))
    if c.epi == 'resid_stats':
        a('s_and_b32 %s, s2, 15' % sr(S_T0))
        a('s_lshl_b32 %s, %s, 6' % (sr(S_T0), sr(S_T0)))
        a('s_lshl_b32 %s, %s, 4' % (sr(S_T1), sr(S_ROLE)))
        a('s_add_u32 %s, %s, %s' % (sr(S_T0), sr(S_T0), sr(S_T1)))
        a('v_lshrrev_b32 v3, 5, v2')
        a('v_add_u32 v3, %s, v3' % sr(S_T0))
        a('v_mul_u32_u24 v3, 7168, v3')
        a('v_and_b32 v4, 31, v2')
        a('v_lshl_add_u32 v3, v4, 4, v3')
        a('s_lshr_b32 %s, s2, 4' % sr(S_T1))
        a('s_mul_i32 %s, %s, 448' % (sr(S_T1), sr(S_T1)))
        a('v_add_u32 v3, %s, v3' % sr(S_T1))
        a('v_cmp_gt_u32 vcc, 28, v4')
        a('v_mov_b32 v5, 0x7ffffff0')
        a('s_nop 0')
        a('v_cndmask_b32 v3, v5, v3, vcc')
        for m in range(8):
            a('s_mov_b32 %s, 0x%x' % (sr(S_T0), m * 2 * 7168))
            a('buffer_load_dwordx4 %s, v3, %s, %s offen' % (vr(64 + 4 * m, 4), sr(72, 4), sr(S_T0)))
    a('v_lshrrev_b32 v3, 3, v2')
    a('v_and_b32 v4, 7, v2')
    a('v_lshrrev_b32 v5, 4, v2')
    a('s_lshl_b32 %s, %s, 5' % (sr(S_T0), sr(S_ROLE)))
    a('s_add_u32 %s, %s, %s' % (sr(S_T0), sr(S_T0), sr(S_ROW)))
    a('s_mov_b32 %s, %d' % (sr(S_T1), c.Tstride))
    for q in range(4):
        a('v_add_u32 v6, %s, v3' % sr(S_T0))
        if q: a('v_add_u32 v6, %d, v6' % (8 * q))
        a('v_mul_lo_u32 v6, v6, %s' % sr(S_T1))
        a('v_xor_b32 v7, v4, v5')
        if q & 1: a('v_xor_b32 v7, 4, v7')
        a('v_lshl_add_u32 %s, v7, 4, v6' % vr(8 + q))
    a('s_mov_b32 %s, %d' % (sr(S_T1), c.Wstride))
    a('s_lshl_b32 %s, %s, 1' % (sr(S_T2), sr(S_COL)))
    if BN == 64:
        a('s_lshl_b32 %s, %s, 4' % (sr(S_T0), sr(S_ROLE)))
        for q in range(NWQ):
            a('v_add_u32 v6, %s, v3' % sr(S_T0))
            if q: a('v_add_u32 v6, %d, v6' % (8 * q))
            a('v_mul_lo_u32 v6, v6, %s' % sr(S_T1))
            a('v_and_b32 v7, 1, v5')
            if q: a('v_or_b32 v7, 2, v7')
            a('v_lshlrev_b32 v7, 1, v7')
            a('v_xor_b32 v7, v4, v7')
            a('v_lshl_add_u32 v6, v7, 4, v6')
            a('v_add_u32 %s, %s, v6' % (vr(12 + q), sr(S_T2)))
    else:
        for q in range(NWQ):
            a('s_mul_i32 %s, %s, %d' % (sr(S_T0), sr(S_ROLE), NWQ * 64))
            a('s_add_u32 %s, %s, %d' % (sr(S_T0), sr(S_T0), q * 64))
            a('v_add_u32 v6, %s, v2' % sr(S_T0))
            a('v_mul_u32_u24 v7, 2341, v6')
            a('v_lshrrev_b32 v7, 16, v7')
            a('v_mul_u32_u24 v20, 28, v7')
            a('v_sub_u32 v6, v6, v20')
            a('v_bfe_u32 v20, v7, 3, 1')
            a('v_lshlrev_b32 v20, 1, v20')
            a('v_xor_b32 v6, v6, v20')
            a('v_mul_lo_u32 v7, v7, %s' % sr(S_T1))
            a('v_lshl_add_u32 v6, v6, 4, v7')
            a('v_add_u32 %s, %s, v6' % (vr(12 + q), sr(S_T2)))
    a('s_lshl_b32 %s, %s, 12' % (sr(S_PT), sr(S_ROLE)))
    a('s_mul_i32 %s, %s, %d' % (sr(S_PW), sr(S_ROLE), NWQ * 1024))
    a('s_add_u32 %s, %s, 16384' % (sr(S_PW), sr(S_PW)))
    shift = [0]
    def issue(st):
        slot = st % S
        if c.shift:
            d = [-1, 1, -2, 2][st // 4]
            if d != shift[0]:
                for q in range(4):
                    a('v_add_u32 %s, 0x%x, %s' % (vr(8 + q), ((d - shift[0]) * 2048) & 0xffffffff, vr(8 + q)))
                shift[0] = d
        a('s_mov_b32 %s, 0x%x' % (sr(S_OFT), st * 128))
        a('s_mov_b32 %s, 0x%x' % (sr(S_OFW), st * 64 * c.Wstride))
        for q in range(4):
            a('s_add_u32 m0, %s, 0x%x' % (sr(S_PT), slot * STAGE + q * 1024))
            a('s_nop 0')
            a('buffer_load_dwordx4 %s, %s, %s offen lds' % (vr(8 + q), sr(SRD_T, 4), sr(S_OFT)))
        for q in range(NWQ):
            a('s_add_u32 m0, %s, 0x%x' % (sr(S_PW), slot * STAGE + q * 1024))
            a('s_nop 0')
            a('buffer_load_dwordx4 %s, %s, %s offen lds' % (vr(12 + q), sr(SRD_W, 4), sr(S_OFW)))
    for st in range(min(S, NS)):
        issue(st)
    if c.epi == 'resid_stats':
        a('s_waitcnt vmcnt(%d)' % (min(S, NS) * NDMA))
        for r in range(8):
            a('v_mov_b32 %s, 0' % vr(24 + r))
        for m in range(8):
            for d in range(4):
                a('v_lshlrev_b32 v20, 16, %s' % vr(64 + 4 * m + d))
                a('v_and_b32 v21, %s, %s' % (sr(S_MASK), vr(64 + 4 * m + d)))
                a('v_add_f32 %s, %s, v20' % (vr(24 + 2 * d), vr(24 + 2 * d)))
                a('v_add_f32 %s, %s, v21' % (vr(25 + 2 * d), vr(25 + 2 * d)))
    for t in range(NS):
        last = min(NS - 1, max(S - 1, t + S - 2))
        a('s_waitcnt vmcnt(%d)' % ((last - t) * NDMA))
        a('s_barrier')
        if t >= 1 and t - 1 + S < NS:
            issue(t - 1 + S)
    a('s_barrier')
    if c.epi == 'gelu_inloop':
        a('s_barrier')
    if c.epi == 'resid_stats':
        a('v_lshrrev_b32 v3, 5, v2')
        a('s_lshl_b32 %s, %s, 1' % (sr(S_T0), sr(S_ROLE)))
        a('v_add_u32 v3, %s, v3' % sr(S_T0))
        a('v_mul_u32_u24 v3, 1024, v3')
        a('v_and_b32 v4, 31, v2')
        a('v_lshl_add_u32 v3, v4, 5, v3')
        a('ds_write_b128 v3, v[24:27] offset:32768')
        a('ds_write_b128 v3, v[28:31] offset:32784')
        a('s_waitcnt lgkmcnt(0)')

    a.label(L('store'))
    a('s_barrier')
    a('v_and_b32 v2, 63, v0')
    for q in range(NRB):
        rb_idx(q, 3, 4, 5)
        a('v_mul_u32_u24 v6, %d, v3' % RS)
        a('v_lshl_add_u32 v6, v4, 4, v6')
        a('ds_read_b128 %s, v6' % vr(32 + 4 * q, 4))
        if c.R is None:
            a('v_add_u32 v3, %s, v3' % sr(S_ROW))
            a('s_mov_b32 %s, %d' % (sr(S_T1), c.Ostride))
            a('v_mul_lo_u32 v3, v3, %s' % sr(S_T1))
            a('v_lshlrev_b32 v4, 4, v4')
            a('s_lshl_b32 %s, %s, 1' % (sr(S_T1), sr(S_COL)))
            a('v_add3_u32 %s, v3, v4, %s' % (vr(64 + q), sr(S_T1)))
    if c.R is None:
        for q in range(NRB):
            a('s_waitcnt lgkmcnt(%d)' % (NRB - 1 - q))
            a('buffer_store_dwordx4 %s, %s, %s, 0 offen' % (vr(32 + 4 * q, 4), vr(64 + q), sr(SRD_O, 4)))
    else:
        a('s_waitcnt vmcnt(0) lgkmcnt(0)')
        for q in range(NRB):
            for d in range(4):
                h = 32 + 4 * q + d; x = V_RES + 4 * q + d
                a('v_lshlrev_b32 v8, 16, %s' % vr(h))
                a('v_lshlrev_b32 v9, 16, %s' % vr(x))
                a('v_and_b32 v10, %s, %s' % (sr(S_MASK), vr(h)))
                a('v_and_b32 v11, %s, %s' % (sr(S_MASK), vr(x)))
                a('v_add_f32 v8, v8, v9')
                a('v_add_f32 v10, v10, v11')
                a('v_cvt_pk_bf16_f32 %s, v8, v10' % vr(h))
            a('buffer_store_dwordx4 %s, %s, %s, 0 offen' % (vr(32 + 4 * q, 4), vr(V_RBG + q), sr(SRD_O, 4)))
        if c.epi == 'resid_stats':
            a('v_mov_b32 v21, 0x3f803f80')
            for q in range(NRB):
                a('v_mov_b32 v12, 0')
                a('v_mov_b32 v13, 0')
                for d in range(4):
                    h = 32 + 4 * q + d
                    a('v_dot2c_f32_bf16 v12, %s, v21' % vr(h))
                    a('v_dot2c_f32_bf16 v13, %s, %s' % (vr(h), vr(h)))
                a('s_nop 3')
                for dpp in ('quad_perm:[1,0,3,2]', 'quad_perm:[2,3,0,1]', 'row_half_mirror'):
                    a('v_add_f32_dpp v12, v12, v12 %s row_mask:0xf bank_mask:0xf' % dpp)
                    a('v_add_f32_dpp v13, v13, v13 %s row_mask:0xf bank_mask:0xf' % dpp)
                    a('s_nop 1')
                rb_idx(q, 3, 4, 5)
                a('v_add_u32 v3, %s, v3' % sr(S_ROW))
                a('v_lshlrev_b32 v3, 3, v3')
                a('s_lshl_b32 %s, %s, 14' % (sr(S_T1), sr(S_CBK)))
                a('v_add_u32 v3, %s, v3' % sr(S_T1))
                a('v_cmp_eq_u32 vcc, 0, v4')
                a('v_mov_b32 v5, 0x7ffffff0')
                a('s_nop 0')
                a('v_cndmask_b32 v3, v5, v3, vcc')
                a('buffer_store_dwordx2 v[12:13], v3, %s, 0 offen' % sr(SRD_X, 4))
                a('s_nop 1')
            a('s_cmp_lt_u32 %s, 4' % sr(S_WAVE))
            a('s_cbranch_scc1 %s' % L('done'))
            a('v_subrev_u32 v3, 256, v0')
            a('v_lshlrev_b32 v4, 2, v3')
            for m in range(8):
                a('ds_read_b32 %s, v4 offset:%d' % (vr(40 + m), 32768 + m * 1024))
            a('s_waitcnt lgkmcnt(0)')
            for m in range(1, 8):
                a('v_add_f32 v40, v40, %s' % vr(40 + m))
            a('s_and_b32 %s, s2, 15' % sr(S_T0))
            a('s_mul_i32 %s, %s, %d' % (sr(S_T0), sr(S_T0), F_ * 4))
            a('s_lshr_b32 %s, s2, 4' % sr(S_T1))
            a('s_mul_i32 %s, %s, %d' % (sr(S_T1), sr(S_T1), 224 * 4))
            a('s_add_u32 %s, %s, %s' % (sr(S_T0), sr(S_T0), sr(S_T1)))
            a('v_add_u32 v4, %s, v4' % sr(S_T0))
            a('v_cmp_gt_u32 vcc, 224, v3')
            a('v_mov_b32 v5, 0x7ffffff0')
            a('s_nop 0')
            a('v_cndmask_b32 v4, v5, v4, vcc')
            a('buffer_store_dword v40, v4, %s, 0 offen' % sr(SRD_Y, 4))
    a.label(L('done'))
    a('s_endpgm')
    lds = S * STAGE + (4096 if c.epi == 'gelu_pre' else 0)
    return lds

def descriptor(name):
    return '''.amdhsa_kernel %s
  .amdhsa_next_free_vgpr 256
  .amdhsa_next_free_sgpr 96
  .amdhsa_accum_offset 256
  .amdhsa_group_segment_fixed_size 0
  .amdhsa_kernarg_size 64
  .amdhsa_user_sgpr_count 2
  .amdhsa_user_sgpr_kernarg_segment_ptr 1
  .amdhsa_system_sgpr_workgroup_id_x 1
.end_amdhsa_kernel
''' % name

def mk(name, **kw):
    c = Cfg()
    c.name = name
    c.noread = False; c.nomfma = False; c.mimic = True; c.shift = False; c.R = None
    for k, v in kw.items():
        setattr(c, k, v)
    return c

def configs(opts):
    base = 'standalone__mixer_s_mlp__prompt'
    return [
        mk('k1_kernel', BN=64, K=1024, S=6, T='x', Tbytes=S_ * D_ * 2, Tstride=2048, W='w1', Wbytes=D_ * D_ * 2, Wstride=2048,
           O=('ws', WS_H), Obytes=S_ * D_ * 2, Ostride=2048, epi='gelu_inloop', map='4x8', **opts),
        mk('k2_kernel', BN=64, K=1024, S=6, T=('ws', WS_H), Tbytes=S_ * D_ * 2, Tstride=2048, W='w2', Wbytes=D_ * D_ * 2, Wstride=2048,
           O=('ws', WS_X1), Obytes=S_ * D_ * 2, Ostride=2048, epi='resid_stats', map='4x8', R='x', shift=True, **opts),
        mk('k3_kernel', BN=224, K=1024, S=3, T=('ws', WS_X1), Tbytes=S_ * D_ * 2, Tstride=2048, W='w3', Wbytes=D_ * F_ * 2, Wstride=7168,
           O=('ws', WS_G), Obytes=S_ * F_ * 2, Ostride=7168, epi='gelu_pre', map='8x4', **opts),
        mk(base + '_kernel', BN=64, K=3584, S=6, T=('ws', WS_G), Tbytes=S_ * F_ * 2, Tstride=7168, W='w4', Wbytes=F_ * D_ * 2, Wstride=2048,
           O='out', Obytes=S_ * D_ * 2, Ostride=2048, epi='resid', map='4x8', R=('ws', WS_X1), **opts),
    ]

def main():
    out = sys.argv[1]
    opts = {}
    for o in sys.argv[2:]:
        k, v = o.split('=')
        opts[k] = eval(v)
    only = opts.pop('only', None)
    cfgs = configs(opts)
    if only is not None:
        cfgs = [cfgs[i] for i in only]
    a = Asm()
    ldss = []
    for c in cfgs:
        ldss.append(gen_kernel(a, c))
    hdr = open('standalone__mixer_s_mlp__prompt.s.ref').read().split('; Override')[0]
    s = hdr
    for c, lds in zip(cfgs, ldss):
        s += '; @launch kernel=%s grid=(256,1,1) block=(512,1,1) lds=%d\n' % (c.name, lds)
    s += '.amdgcn_target "amdgcn-amd-amdhsa--gfx950"\n.text\n'
    s += a.text()
    s += '.section .rodata,"a"\n.p2align 6\n'
    for c in cfgs:
        s += descriptor(c.name) + '.p2align 6\n'
    open(out, 'w').write(s)

if __name__ == '__main__':
    main()
```

```python
import sys, struct

S_, D_, F_ = 2048, 1024, 3584
NB = S_ * D_ * 2
WS_H, WS_X1, WS_G = 0, 4 << 20, 8 << 20
WS_PART2 = 24 << 20
WS_CS3 = (24 << 20) + (256 << 10)
WS_PROF = 28 << 20
WS_XCH = 32 << 20
C0 = -2.0 * 0.7978845608028654 * 1.4426950408889634
C1 = C0 * 0.044715
OOB = 0x7ffffff0

def f2u(f):
    return struct.unpack('<I', struct.pack('<f', f))[0]

class Asm:
    def __init__(self):
        self.L = []
    def __call__(self, s):
        self.L.append('    ' + s)
    def label(self, s):
        self.L.append(s + ':')
    def text(self):
        return '\n'.join(self.L) + '\n'

def vr(b, n=1):
    return 'v%d' % b if n == 1 else 'v[%d:%d]' % (b, b + n - 1)
def sr(b, n=1):
    return 's%d' % b if n == 1 else 's[%d:%d]' % (b, b + n - 1)

SRD_T, SRD_W, SRD_R, SRD_O, SRD_X, SRD_Y, SRD_P = 8, 12, 16, 20, 24, 28, 72
S_WAVE, S_ROW, S_COL, S_ROLE, S_I, S_J = 32, 33, 34, 35, 36, 37
S_OFT, S_OFW, S_CNT, S_SLOT, S_PT, S_PW = 38, 39, 40, 41, 42, 43
S_T0, S_T1, S_T2, S_T3 = 44, 45, 46, 47
S_RB, S_CBK = 48, 49
S_C0, S_C1, S_MASK = 50, 51, 52
S_XCD, S_IDX, S_KH = 53, 54, 55
P = {'x': 56, 'w1': 58, 'w2': 60, 'w3': 62, 'w4': 64, 'out': 66, 'dbg': 68, 'ws': 70}

class Cfg:
    pass

def ptr(nm):
    if isinstance(nm, tuple):
        return P['ws'], P['ws'] + 1, nm[1]
    return P[nm], P[nm] + 1, 0

def mk_srd(a, dst, src, nbytes):
    lo, hi, add = ptr(src)
    if add:
        a('s_add_u32 %s, %s, 0x%x' % (sr(dst), sr(lo), add))
        a('s_addc_u32 %s, %s, 0' % (sr(dst + 1), sr(hi)))
    else:
        a('s_mov_b32 %s, %s' % (sr(dst), sr(lo)))
        a('s_mov_b32 %s, %s' % (sr(dst + 1), sr(hi)))
    a('s_mov_b32 %s, 0x%x' % (sr(dst + 2), nbytes))
    a('s_mov_b32 %s, 0x20000' % sr(dst + 3))

def gen_kernel(a, c):
    name = c.name
    BN, CB, S = c.BN, c.BN // 32, c.S
    KLEN = c.K // 2 if c.split else c.K
    NS = KLEN // 64
    WROW = BN * 2
    STAGE = 16384 + 64 * WROW
    NWQ = (64 * WROW // 1024) // 4
    NDMA = 4 + NWQ
    RS = BN * 2 + 16
    L = lambda s: '%s_%s' % (name, s)
    gelu = c.epi in ('gelu_inloop', 'gelu_pre')
    ST = c.stflag
    X, I = sr(S_XCD), sr(S_IDX)
    T0, T1, T2, T3 = sr(S_T0), sr(S_T1), sr(S_T2), sr(S_T3)

    a.L.append('.globl %s' % name)
    a.L.append('.p2align 8')
    a.L.append('.type %s,@function' % name)
    a.label(name)
    a('s_cmp_ge_u32 s2, 256')
    a('s_cbranch_scc1 %s' % L('done'))
    a('s_load_dwordx16 s[56:71], s[0:1], 0')
    if c.prof:
        a('s_memrealtime s[76:77]')
        a('s_memtime s[84:85]')
    a('s_and_b32 %s, s2, 7' % X)
    a('s_lshr_b32 %s, s2, 3' % I)
    def field(dst, src, shr, msk, shl):
        a('s_lshr_b32 %s, %s, %d' % (dst, src, shr))
        a('s_and_b32 %s, %s, %d' % (dst, dst, msk))
        if shl: a('s_lshl_b32 %s, %s, %d' % (dst, dst, shl))
    if c.map == '4x8':
        field(T1, X, 1, 3, 2); field(T2, I, 3, 3, 0); a('s_add_u32 %s, %s, %s' % (sr(S_RB), T1, T2))
        field(T1, X, 0, 1, 3); field(T2, I, 0, 7, 0); a('s_add_u32 %s, %s, %s' % (sr(S_CBK), T1, T2))
    elif c.map == '8x4':
        field(T1, X, 2, 1, 3); field(T2, I, 2, 7, 0); a('s_add_u32 %s, %s, %s' % (sr(S_RB), T1, T2))
        field(T1, X, 0, 3, 2); field(T2, I, 0, 3, 0); a('s_add_u32 %s, %s, %s' % (sr(S_CBK), T1, T2))
    elif c.map == 'split':
        field(sr(S_KH), X, 0, 1, 0)
        field(T1, X, 1, 1, 3); field(T2, I, 2, 7, 0); a('s_add_u32 %s, %s, %s' % (sr(S_RB), T1, T2))
        field(T1, X, 2, 1, 2); field(T2, I, 0, 3, 0); a('s_add_u32 %s, %s, %s' % (sr(S_CBK), T1, T2))
    a('s_lshl_b32 %s, %s, 7' % (sr(S_ROW), sr(S_RB)))
    a('s_mul_i32 %s, %s, %d' % (sr(S_COL), sr(S_CBK), BN))
    a('v_lshrrev_b32 v1, 6, v0')
    a('v_and_b32 v2, 63, v0')
    a('s_nop 0')
    a('v_readfirstlane_b32 %s, v1' % sr(S_WAVE))
    a('s_mov_b32 %s, 0x%x' % (sr(S_C0), f2u(C0)))
    a('s_mov_b32 %s, 0x%x' % (sr(S_C1), f2u(C1)))
    a('s_mov_b32 %s, 0xffff0000' % sr(S_MASK))
    a('s_waitcnt lgkmcnt(0)')
    if c.prof:
        a('s_memrealtime s[96:97]')
    mk_srd(a, SRD_T, c.T, c.Tbytes)
    mk_srd(a, SRD_W, c.W, c.Wbytes)
    a('s_cmp_ge_u32 %s, 4' % sr(S_WAVE))
    a('s_cbranch_scc1 %s' % L('prod'))

    def common_srds():
        mk_srd(a, SRD_O, c.O, c.Obytes)
        if c.R is not None:
            mk_srd(a, SRD_R, c.R, NB)
        if c.epi in ('resid_stats', 'gelu_pre'):
            mk_srd(a, SRD_X, ('ws', WS_PART2), 16 * S_ * 8)
            mk_srd(a, SRD_Y, ('ws', WS_CS3), 16 * F_ * 4)
        if c.split:
            mk_srd(a, SRD_X, ('ws', WS_XCH), 256 * 32768)
            mk_srd(a, SRD_Y, 'dbg', 256)

    V_RES, V_RBG = 240, 248
    RB_SH = 3 if BN == 64 else 4
    def rb_idx(q, vrow, vch, vtmp):
        a('s_lshl_b32 %s, %s, 7' % (T0, sr(S_WAVE)))
        a('s_add_u32 %s, %s, %d' % (T0, T0, q * 64))
        a('v_add_u32 %s, %s, v2' % (vr(vtmp), T0))
        a('v_lshrrev_b32 %s, %d, %s' % (vr(vrow), RB_SH, vr(vtmp)))
        a('v_and_b32 %s, %d, %s' % (vr(vch), (1 << RB_SH) - 1, vr(vtmp)))
    def resid_loads():
        n = 0
        for q in range(2):
            rb_idx(q, 3, 4, 5)
            a('v_add_u32 v3, %s, v3' % sr(S_ROW))
            if c.split:
                a('s_lshl_b32 %s, %s, 6' % (T1, sr(S_KH)))
                a('v_add_u32 v3, %s, v3' % T1)
            a('v_lshlrev_b32 v3, 11, v3')
            a('v_lshlrev_b32 v4, 4, v4')
            a('s_lshl_b32 %s, %s, 1' % (T1, sr(S_COL)))
            a('v_add3_u32 %s, v3, v4, %s' % (vr(V_RBG + q), T1))
            if c.R is not None:
                a('buffer_load_dwordx4 %s, %s, %s, 0 offen' % (vr(V_RES + 4 * q, 4), vr(V_RBG + q), sr(SRD_R, 4)))
                n += 1
        return n

    def pf(item, onlywave=None):
        buf, nbytes, stride, sh, maxl, row_xcd, row_idx, rows_cu, col_xcd = item
        mk_srd(a, SRD_P, buf, nbytes)
        rpi = 64 >> sh
        per_wave = rows_cu // 4
        n = max(1, per_wave // rpi)
        def term(dst, spec):
            shr, msk, mul = spec
            a('s_lshr_b32 %s, %s, %d' % (dst, X, shr))
            a('s_and_b32 %s, %s, %d' % (dst, dst, msk))
            a('s_mul_i32 %s, %s, %d' % (dst, dst, mul))
        term(T0, row_xcd)
        a('s_mul_i32 %s, %s, %d' % (T1, I, row_idx))
        a('s_add_u32 %s, %s, %s' % (T0, T0, T1))
        a('s_mul_i32 %s, %s, %d' % (T1, sr(S_WAVE), per_wave))
        a('s_add_u32 %s, %s, %s' % (T0, T0, T1))
        term(T1, col_xcd)
        a('v_lshrrev_b32 v6, %d, v2' % sh)
        a('v_add_u32 v6, %s, v6' % T0)
        a('s_mov_b32 %s, %d' % (T2, stride))
        a('v_mul_lo_u32 v6, v6, %s' % T2)
        a('v_and_b32 v7, %d, v2' % ((1 << sh) - 1))
        if maxl < (1 << sh) - 1:
            a('v_min_u32 v7, %d, v7' % maxl)
        a('v_lshl_add_u32 v6, v7, 7, v6')
        a('v_add_u32 v6, %s, v6' % T1)
        for q in range(n):
            a('s_mov_b32 %s, %d' % (T2, q * rpi * stride))
            a('buffer_load_dword v250, v6, %s, %s offen' % (sr(SRD_P, 4), T2))

    a('s_lshr_b32 %s, %s, 1' % (sr(S_I), sr(S_WAVE)))
    a('s_and_b32 %s, %s, 1' % (sr(S_J), sr(S_WAVE)))
    VT = [[None] * 4, [None] * 4]
    VW = [[None] * CB, [None] * CB]
    nxt = 32
    for st in range(2):
        for tb in range(4):
            VT[st][tb] = nxt; nxt += 4
        for cb in range(CB):
            VW[st][cb] = nxt; nxt += 4
    assert nxt <= 128
    ACC = [[None] * CB for _ in range(4)]
    nxt = 128
    for tb in range(4):
        for cb in range(CB):
            ACC[tb][cb] = nxt; nxt += 4
    assert nxt <= 240
    NWA = 4 if BN == 128 else 2
    bT = [8, 9]; aT = [10, 11]
    bW = [12, 13, 14, 15][:NWA]; aW = [16, 17, 18, 19][:NWA]
    a('v_and_b32 v3, 15, v2')
    a('v_lshrrev_b32 v4, 4, v2')
    a('s_lshl_b32 %s, %s, 13' % (T0, sr(S_I)))
    a('v_lshlrev_b32 v5, 7, v3')
    a('v_lshrrev_b32 v6, 1, v3')
    a('v_xor_b32 v6, v6, v4')
    a('v_lshlrev_b32 v6, 4, v6')
    a('v_add3_u32 %s, v5, v6, %s' % (vr(bT[0]), T0))
    a('v_xor_b32 %s, 64, %s' % (vr(bT[1]), vr(bT[0])))
    a('v_lshrrev_b32 v5, 2, v3')
    a('v_lshl_add_u32 v6, v4, 3, v5')
    a('v_and_b32 v7, 3, v2')
    if BN == 64:
        a('v_lshlrev_b32 v6, 7, v6')
        a('v_lshl_add_u32 v6, v7, 3, v6')
        a('v_lshrrev_b32 v5, 1, v5')
        a('v_and_b32 v7, 1, v4')
        a('v_lshl_or_b32 v5, v7, 1, v5')
        a('s_lshl_b32 %s, %s, 1' % (T0, sr(S_J)))
        a('v_xor_b32 v5, %s, v5' % T0)
        a('v_lshl_add_u32 v6, v5, 5, v6')
        a('v_add_u32 %s, 16384, v6' % vr(bW[0]))
        a('v_xor_b32 %s, 32, %s' % (vr(bW[1]), vr(bW[0])))
        woff = lambda s, cb, h: s * 4096 + h * 512
        wreg = lambda cb: cb
    elif BN == 128:
        a('v_lshlrev_b32 v6, 8, v6')
        a('v_lshl_add_u32 v6, v7, 3, v6')
        a('v_and_b32 v7, 1, v4')
        a('v_lshl_or_b32 v5, v7, 2, v5')
        a('s_lshl_b32 %s, %s, 2' % (T0, sr(S_J)))
        a('v_xor_b32 v5, %s, v5' % T0)
        a('v_lshl_add_u32 v6, v5, 5, v6')
        a('v_add_u32 %s, 16384, v6' % vr(bW[0]))
        for cb in range(1, 4):
            a('v_xor_b32 %s, %d, %s' % (vr(bW[cb]), 32 * cb, vr(bW[0])))
        woff = lambda s, cb, h: s * 8192 + h * 1024
        wreg = lambda cb: cb
    else:
        a('v_mul_u32_u24 v6, 448, v6')
        a('v_lshl_add_u32 v6, v7, 3, v6')
        a('s_mul_i32 %s, %s, %d' % (T0, sr(S_J), 7 * 32))
        a('s_add_u32 %s, %s, 16384' % (T0, T0))
        a('v_add_u32 v6, %s, v6' % T0)
        a('v_and_b32 v7, 1, v4')
        a('v_lshlrev_b32 v7, 5, v7')
        a('v_add_u32 v5, v6, v7')
        a('v_sub_u32 v6, v6, v7')
        a('s_cmp_eq_u32 %s, 0' % sr(S_J))
        a('s_cselect_b64 vcc, -1, 0')
        a('v_cndmask_b32 %s, v6, v5, vcc' % vr(bW[0]))
        a('v_cndmask_b32 %s, v5, v6, vcc' % vr(bW[1]))
        woff = lambda s, cb, h: cb * 32 + s * 32 * 448 + h * 4 * 448
        wreg = lambda cb: cb & 1
    for tb in range(4):
        for cb in range(CB):
            for r in range(4):
                a('v_mov_b32 %s, 0' % vr(ACC[tb][cb] + r))
    SUMA, GRA, CSA, ONES = [176, 180], [184, 188], 192, 196
    if c.epi == 'gelu_inloop':
        for r in range(176, 196):
            a('v_mov_b32 %s, 0' % vr(r))
        for r in range(4):
            a('v_mov_b32 %s, 0x3f803f80' % vr(ONES + r))
    common_srds()
    if BN != 224:
        resid_loads()

    def grp_setup():
        a('s_lshr_b32 %s, %s, 1' % (T0, X))
        a('s_lshl_b32 %s, %s, 9' % (T0, T0))
        a('s_lshl_b32 %s, %s, 4' % (T1, I))
        a('s_add_u32 %s, %s, %s' % (T0, T0, T1))
        a('v_and_b32 v5, 15, v2')
        a('v_add_u32 v5, %s, v5' % T0)
        a('v_lshlrev_b32 v5, 11, v5')
        a('v_lshrrev_b32 v6, 4, v2')
        a('v_lshl_add_u32 v20, v6, 7, v5')
        a('v_and_b32 v5, 7, v2')
        a('v_lshlrev_b32 v5, 7, v5')
        a('v_bfe_u32 v7, v2, 3, 1')
        a('s_lshl_b32 %s, %s, 1' % (T0, I))
        a('v_add_u32 v7, %s, v7' % T0)
        a('v_lshl_add_u32 v7, v6, 6, v7')
        a('v_lshlrev_b32 v7, 11, v7')
        a('s_and_b32 %s, %s, 1' % (T0, X))
        a('s_lshl_b32 %s, %s, 10' % (T0, T0))
        a('v_add3_u32 v21, v5, v7, %s' % T0)
    def grp_pf(g, skip):
        a('s_cmp_gt_u32 %s, 1' % sr(S_WAVE))
        a('s_cbranch_scc1 %s' % skip)
        a('s_cmp_eq_u32 %s, 1' % sr(S_WAVE))
        lab = L('gw%d_%s' % (g, skip[-6:].replace('_', 'x')))
        a('s_cbranch_scc1 %s' % lab)
        a('s_mov_b32 %s, %d' % (T0, g * 512))
        a('buffer_load_dword v250, v20, %s, %s offen' % (sr(SRD_T, 4), T0))
        a('s_branch %s' % skip)
        a.label(lab)
        a('s_mov_b32 %s, %d' % (T0, g * 4 * 64 * 2048))
        a('buffer_load_dword v250, v21, %s, %s offen' % (sr(SRD_W, 4), T0))
    if c.grp0:
        grp_setup()
        for g in c.grp0:
            grp_pf(g, L('g0s%d' % g))
            a.label(L('g0s%d' % g))

    def reads(st, s):
        r = []
        order = [('T', 0), ('W', 0), ('T', 1), ('T', 2), ('T', 3)] + [('W', cb) for cb in range(1, CB)]
        for kind, i in order:
            if kind == 'T':
                r.append('ds_read_b128 %s, %s offset:%d' % (vr(VT[st][i], 4), vr(aT[s]), i * 2048))
            else:
                r.append('ds_read_b64_tr_b16 %s, %s offset:%d' % (vr(VW[st][i], 2), vr(aW[wreg(i)]), woff(s, i, 0)))
                r.append('ds_read_b64_tr_b16 %s, %s offset:%d' % (vr(VW[st][i] + 2, 2), vr(aW[wreg(i)]), woff(s, i, 1)))
        return r
    def mf(d, x, y):
        return 'v_mfma_f32_16x16x32_bf16 %s, %s, %s, %s' % (vr(d, 4), vr(x, 4), vr(y, 4), vr(d, 4))
    def mfmas(st, j=None, i=None):
        m = []
        for cb in range(CB):
            for tb in range(4):
                m.append(mf(ACC[tb][cb], VW[st][cb], VT[st][tb]))
        if c.epi == 'gelu_inloop' and c.stats == 'mfma':
            for z in range(2):
                tb = 2 * j + z
                m.append(mf(SUMA[z], ONES, VT[st][tb]))
                m.append(mf(GRA[z], VT[st][tb], VT[st][tb]))
            m.append(mf(CSA, VW[st][i], ONES))
        return m
    DS = 176
    def dots(st, j, i):
        if not (c.epi == 'gelu_inloop' and c.stats == 'dot'):
            return []
        e = []
        for d in range(4):
            for z in range(2):
                tb = 2 * j + z
                ch = (d & 1) * 4
                e.append('v_dot2c_f32_bf16 %s, %s, %s' % (vr(DS + ch + 2 * z), vr(VT[st][tb] + d), vr(ONES)))
                e.append('v_dot2c_f32_bf16 %s, %s, %s' % (vr(DS + ch + 2 * z + 1), vr(VT[st][tb] + d), vr(VT[st][tb] + d)))
            e.append('v_dot2c_f32_bf16 %s, %s, %s' % (vr(DS + 8 + (d & 1)), vr(VW[st][i] + d), vr(ONES)))
        return e
    def interleave(ms, rs, es=()):
        rs = list(rs); es = list(es)
        n = len(ms)
        for k, m in enumerate(ms):
            a(m)
            if rs:
                a(rs.pop(0))
            q = -(-len(es) // (n - k))
            for _ in range(q):
                a(es.pop(0))
        for r_ in rs: a(r_)
    def setaddr(regs):
        for ar, br in regs:
            a('v_add_u32 %s, %s, %s' % (vr(ar), sr(S_SLOT), vr(br)))
    WA = list(zip(aW, bW))

    ool = []
    def mainloop(tag, j, i):
        a('s_mov_b32 %s, 0' % sr(S_SLOT))
        a('s_mov_b32 %s, %d' % (sr(S_CNT), NS))
        a('s_barrier')
        setaddr([(aT[0], bT[0]), (aT[1], bT[1])] + WA)
        for r_ in reads(0, 0): a(r_)
        a.label(L('loop' + tag))
        for n_, (it, items) in enumerate(c.pf_at):
            lab = L('pfat%d%s' % (n_, tag)); ret = lab + '_r'
            a('s_cmp_eq_u32 %s, %d' % (sr(S_CNT), NS - it))
            a('s_cbranch_scc1 %s' % lab)
            a.label(ret)
            ool.append((lab, items, ret))
        a('s_waitcnt lgkmcnt(0)')
        interleave(mfmas(0, j, i), reads(1, 1), dots(0, j, i))
        a('s_add_u32 %s, %s, %d' % (sr(S_SLOT), sr(S_SLOT), STAGE))
        a('s_cmp_eq_u32 %s, %d' % (sr(S_SLOT), S * STAGE))
        a('s_cselect_b32 %s, 0, %s' % (sr(S_SLOT), sr(S_SLOT)))
        setaddr([(aT[0], bT[0])] + WA)
        a('s_waitcnt lgkmcnt(0)')
        a('s_barrier')
        interleave(mfmas(1, j, i), reads(0, 0), dots(1, j, i))
        setaddr([(aT[1], bT[1])])
        a('s_sub_u32 %s, %s, 1' % (sr(S_CNT), sr(S_CNT)))
        a('s_cmp_lg_u32 %s, 0' % sr(S_CNT))
        a('s_cbranch_scc1 %s' % L('loop' + tag))

    if c.epi == 'gelu_inloop':
        for w in range(4):
            if w < 3:
                a('s_cmp_lg_u32 %s, %d' % (sr(S_WAVE), w))
                a('s_cbranch_scc1 %s' % L('ver%d' % (w + 1)))
            mainloop('_%d' % w, w & 1, w >> 1)
            a('s_branch %s' % L('after'))
            if w < 3:
                a.label(L('ver%d' % (w + 1)))
    else:
        mainloop('', 0, 0)
        a('s_branch %s' % L('after'))
    for lab, items, ret in ool:
        a.label(lab)
        for item in items:
            if item[0] == 'grp':
                grp_pf(item[1], ret)
                continue
            if item[0] == 'onlywave':
                a('s_cmp_lg_u32 %s, %d' % (sr(S_WAVE), item[1]))
                a('s_cbranch_scc1 %s' % ret)
                item = item[2]
            pf(item)
        a('s_branch %s' % ret)
    a.label(L('after'))
    a('s_waitcnt lgkmcnt(0)')
    a('s_nop 7')
    a('s_nop 7')
    a('v_and_b32 v3, 15, v2')
    a('v_lshrrev_b32 v4, 4, v2')
    if c.split:
        a('s_lshl_b32 %s, s2, 15' % T3)
        a('s_lshl_b32 %s, %s, 14' % (T0, sr(S_J)))
        a('s_add_u32 %s, %s, %s' % (T3, T3, T0))
        a('v_lshlrev_b32 v6, 4, v2')
        a('s_cmp_eq_u32 %s, %s' % (sr(S_I), sr(S_KH)))
        a('s_cbranch_scc1 %s' % L('recv'))
        a('v_add_u32 v6, %s, v6' % T3)
        for tb in range(4):
            for cb in range(4):
                a('s_mov_b32 %s, %d' % (T0, (tb * 4 + cb) * 1024))
                a('buffer_store_dwordx4 %s, v6, %s, %s offen sc1' % (vr(ACC[tb][cb], 4), sr(SRD_X, 4), T0))
        a('s_waitcnt vmcnt(0)')
        a('s_barrier')
        a('s_branch %s' % L('store'))
        a.label(L('recv'))
        a('s_barrier')
        a('s_xor_b32 %s, s2, 1' % T0)
        a('s_lshr_b32 %s, %s, 2' % (T1, T0))
        a('s_lshl_b32 %s, %s, 2' % (T1, T1))
        a('s_and_b32 %s, %s, 3' % (T2, T0))
        a('s_lshl_b32 %s, %s, 3' % (T2, T2))
        a('v_mov_b32 v7, %s' % T1)
        a.label(L('poll'))
        a('buffer_load_dword v20, v7, %s, 0 offen sc1' % sr(SRD_Y, 4))
        a('s_waitcnt vmcnt(0)')
        a('v_readfirstlane_b32 %s, v20' % T1)
        a('s_nop 3')
        a('s_lshr_b32 %s, %s, %s' % (T1, T1, T2))
        a('s_and_b32 %s, %s, 0xff' % (T1, T1))
        a('s_cmp_lg_u32 %s, 0' % T1)
        a('s_cbranch_scc1 %s' % L('got'))
        a('s_sleep 1')
        a('s_branch %s' % L('poll'))
        a.label(L('got'))
        a('s_xor_b32 %s, %s, 0x8000' % (T3, T3))
        a('v_add_u32 v6, %s, v6' % T3)
        for tb in range(4):
            for cb in range(4):
                a('s_mov_b32 %s, %d' % (T0, (tb * 4 + cb) * 1024))
                a('buffer_load_dwordx4 %s, v6, %s, %s offen sc1' % (vr(32 + (tb * 4 + cb) * 4, 4), sr(SRD_X, 4), T0))
        for tb in range(4):
            a('s_waitcnt vmcnt(%d)' % (12 - 4 * tb))
            for cb in range(4):
                for h in range(2):
                    d = ACC[tb][cb] + 2 * h; s_ = 32 + (tb * 4 + cb) * 4 + 2 * h
                    a('v_pk_add_f32 %s, %s, %s' % (vr(d, 2), vr(d, 2), vr(s_, 2)))
        a('s_lshl_b32 %s, %s, 7' % (T1, sr(S_J)))
        a('v_mul_u32_u24 v5, %d, v3' % RS)
        a('v_lshl_add_u32 v5, v4, 3, v5')
        a('v_add_u32 v5, %s, v5' % T1)
    else:
        a('s_mul_i32 %s, %s, %d' % (T0, sr(S_I), 64 * RS))
        a('s_mul_i32 %s, %s, %d' % (T1, sr(S_J), CB * 32))
        a('s_add_u32 %s, %s, %s' % (T0, T0, T1))
        a('v_mul_u32_u24 v5, %d, v3' % RS)
        a('v_lshl_add_u32 v5, v4, 3, v5')
        a('v_add_u32 v5, %s, v5' % T0)
    PC, VC = 32, 80
    if gelu:
        if c.epi == 'gelu_inloop':
          if c.stats == 'mfma':
              GR_OFF = 32768; SM_OFF = GR_OFF + 8192; CS_OFF = SM_OFF + 512
              a('s_lshl_b32 %s, %s, 2' % (T0, sr(S_I)))
              a('s_lshl_b32 %s, %s, 1' % (T1, sr(S_J)))
              a('s_add_u32 %s, %s, %s' % (T0, T0, T1))
              a('s_lshl_b32 %s, %s, 10' % (T1, T0))
              a('v_lshlrev_b32 v6, 8, v4')
              a('v_lshl_add_u32 v6, v3, 2, v6')
              a('v_add_u32 v6, %s, v6' % T1)
              for z in range(2):
                  for r in range(4):
                      a('ds_write_b32 v6, %s offset:%d' % (vr(GRA[z] + r), GR_OFF + z * 1024 + r * 64))
              a('s_lshl_b32 %s, %s, 6' % (T1, T0))
              a('v_lshlrev_b32 v6, 2, v3')
              a('v_add_u32 v6, %s, v6' % T1)
              for z in range(2):
                  a('ds_write_b32 v6, %s offset:%d' % (vr(SUMA[z]), SM_OFF + z * 64))
              a('s_lshl_b32 %s, %s, 1' % (T0, sr(S_J)))
              a('s_add_u32 %s, %s, %s' % (T0, T0, sr(S_I)))
              a('s_lshl_b32 %s, %s, 6' % (T0, T0))
              a('v_lshlrev_b32 v6, 4, v4')
              a('v_add_u32 v6, %s, v6' % T0)
              a('ds_write_b128 v6, %s offset:%d' % (vr(CSA, 4), CS_OFF))
              a('s_waitcnt lgkmcnt(0)')
              a('s_barrier')
              a('s_lshl_b32 %s, %s, 8' % (T0, sr(S_I)))
              a('v_lshlrev_b32 v6, 2, v3')
              a('v_add_u32 v6, %s, v6' % T0)
              a('s_lshl_b32 %s, %s, 12' % (T0, sr(S_I)))
              a('v_mul_u32_u24 v7, 68, v3')
              a('v_add_u32 v7, %s, v7' % T0)
              for tb in range(4):
                  a('ds_read_b32 %s, v6 offset:%d' % (vr(48 + 2 * tb), SM_OFF + tb * 64))
                  a('ds_read_b32 %s, v7 offset:%d' % (vr(49 + 2 * tb), GR_OFF + tb * 1024))
          else:
            SP_OFF = 32768; CSP_OFF = SP_OFF + 4096; CS_OFF = CSP_OFF + 1024
            for r in range(4):
                a('v_add_f32 %s, %s, %s' % (vr(DS + r), vr(DS + r), vr(DS + 4 + r)))
            a('v_add_f32 %s, %s, %s' % (vr(DS + 8), vr(DS + 8), vr(DS + 9)))
            a('s_lshl_b32 %s, %s, 6' % (T0, sr(S_I)))
            a('s_lshl_b32 %s, %s, 5' % (T1, sr(S_J)))
            a('s_add_u32 %s, %s, %s' % (T0, T0, T1))
            a('v_add_u32 v6, %s, v3' % T0)
            a('v_lshlrev_b32 v6, 3, v6')
            a('v_lshl_add_u32 v6, v4, 10, v6')
            a('ds_write_b64 v6, %s offset:%d' % (vr(DS, 2), SP_OFF))
            a('ds_write_b64 v6, %s offset:%d' % (vr(DS + 2, 2), SP_OFF + 128))
            a('s_lshl_b32 %s, %s, 1' % (T0, sr(S_J)))
            a('s_add_u32 %s, %s, %s' % (T0, T0, sr(S_I)))
            a('s_lshl_b32 %s, %s, 4' % (T0, T0))
            a('v_add_u32 v6, %s, v3' % T0)
            a('v_lshlrev_b32 v6, 2, v6')
            a('v_lshl_add_u32 v6, v4, 8, v6')
            a('ds_write_b32 v6, %s offset:%d' % (vr(DS + 8), CSP_OFF))
            a('s_waitcnt lgkmcnt(0)')
            a('s_barrier')
            a('s_lshl_b32 %s, %s, 6' % (T0, sr(S_I)))
            a('v_add_u32 v6, %s, v3' % T0)
            a('v_lshlrev_b32 v6, 3, v6')
            for tb in range(4):
                for g in range(4):
                    a('ds_read_b64 %s, v6 offset:%d' % (vr(96 + (tb * 4 + g) * 2, 2), SP_OFF + tb * 128 + g * 1024))
            a('s_lshl_b32 %s, %s, 7' % (T0, sr(S_J)))
            a('v_lshlrev_b32 v7, 4, v4')
            a('v_add_u32 v7, %s, v7' % T0)
            for cb in range(2):
                for g in range(4):
                    a('ds_read_b128 %s, v7 offset:%d' % (vr(200 + (cb * 4 + g) * 4, 4), CSP_OFF + cb * 64 + g * 256))
            a('s_waitcnt lgkmcnt(0)')
            for tb in range(4):
                b = 96 + tb * 8
                for h in range(2):
                    a('v_add_f32 %s, %s, %s' % (vr(b + h), vr(b + h), vr(b + 2 + h)))
                    a('v_add_f32 %s, %s, %s' % (vr(b + 4 + h), vr(b + 4 + h), vr(b + 6 + h)))
                    a('v_add_f32 %s, %s, %s' % (vr(48 + 2 * tb + h), vr(b + h), vr(b + 4 + h)))
            for cb in range(2):
                b = 200 + cb * 16
                for r in range(4):
                    a('v_add_f32 %s, %s, %s' % (vr(b + r), vr(b + r), vr(b + 4 + r)))
                    a('v_add_f32 %s, %s, %s' % (vr(b + 8 + r), vr(b + 8 + r), vr(b + 12 + r)))
                    a('v_add_f32 %s, %s, %s' % (vr(VC + 4 * cb + r), vr(b + r), vr(b + 8 + r)))
        else:
            SP_OFF = S * STAGE; CS_OFF = SP_OFF + 2048
            a('s_lshl_b32 %s, %s, 6' % (T0, sr(S_I)))
            a('v_add_u32 v6, %s, v3' % T0)
            a('v_lshlrev_b32 v6, 3, v6')
            a('v_add_u32 v6, 0x%x, v6' % SP_OFF)
            for tb in range(4):
                a('ds_read_b64 %s, v6 offset:%d' % (vr(48 + 2 * tb, 2), tb * 128))
                a('ds_read_b64 %s, v6 offset:%d' % (vr(56 + 2 * tb, 2), tb * 128 + 1024))
        if not (c.epi == 'gelu_inloop' and c.stats == 'dot'):
            a('s_mul_i32 %s, %s, %d' % (T0, sr(S_J), CB * 64))
            a('s_add_u32 %s, %s, 0x%x' % (T0, T0, CS_OFF))
            a('v_lshlrev_b32 v10, 4, v4')
            a('v_add_u32 v10, %s, v10' % T0)
            for cb in range(CB):
                a('ds_read_b128 %s, v10 offset:%d' % (vr(VC + 4 * cb, 4), cb * 64))
            a('s_waitcnt lgkmcnt(0)')
        chains = []
        for tb in range(4):
            ch = []
            e = ch.append
            sm, sq = 48 + 2 * tb, 49 + 2 * tb
            if c.epi == 'gelu_pre':
                e('v_add_f32 %s, %s, %s' % (vr(sm), vr(sm), vr(56 + 2 * tb)))
                e('v_add_f32 %s, %s, %s' % (vr(sq), vr(sq), vr(57 + 2 * tb)))
            NM, A0c, A1c, SI = PC + 4 * tb, PC + 4 * tb + 1, PC + 4 * tb + 2, PC + 4 * tb + 3
            e('v_mul_f32 %s, 0x%x, %s' % (vr(sm), f2u(1.0 / 1024), vr(sm)))
            e('v_mul_f32 %s, 0x%x, %s' % (vr(sq), f2u(1.0 / 1024), vr(sq)))
            e('v_fma_f32 %s, -%s, %s, %s' % (vr(sq), vr(sm), vr(sm), vr(sq)))
            e('v_max_f32 %s, 0, %s' % (vr(sq), vr(sq)))
            e('v_cvt_pk_bf16_f32 %s, %s, %s' % (vr(sm), vr(sm), vr(sq)))
            e('v_lshlrev_b32 %s, 16, %s' % (vr(NM), vr(sm)))
            e('v_and_b32 %s, %s, %s' % (vr(sq), sr(S_MASK), vr(sm)))
            e('v_xor_b32 %s, 0x80000000, %s' % (vr(NM), vr(NM)))
            e('v_add_f32 %s, 0x%x, %s' % (vr(sq), f2u(1e-5), vr(sq)))
            e('v_cvt_pk_bf16_f32 %s, %s, %s' % (vr(sq), vr(sq), vr(sq)))
            e('v_and_b32 %s, %s, %s' % (vr(sq), sr(S_MASK), vr(sq)))
            e('v_sqrt_f32 %s, %s' % (vr(sq), vr(sq)))
            e('v_cvt_pk_bf16_f32 %s, %s, %s' % (vr(sq), vr(sq), vr(sq)))
            e('v_and_b32 %s, %s, %s' % (vr(SI), sr(S_MASK), vr(sq)))
            e('v_rcp_f32 %s, %s' % (vr(sq), vr(SI)))
            e('v_mul_f32 %s, %s, %s' % (vr(A0c), sr(S_C0), vr(sq)))
            e('v_mul_f32 %s, %s, %s' % (vr(sm), vr(sq), vr(sq)))
            e('v_mul_f32 %s, %s, %s' % (vr(sm), vr(sm), vr(sq)))
            e('v_mul_f32 %s, %s, %s' % (vr(A1c), sr(S_C1), vr(sm)))
            chains.append(ch)
        for k in range(len(chains[0])):
            for ch in chains:
                a(ch[k])
    def finish_tiles(tiles):
        prs = []
        tmp = 16
        for (tb, cb) in tiles:
            for h in range(2):
                prs.append((ACC[tb][cb] + 2 * h, VC + 4 * cb + 2 * h, tb, tmp)); tmp += 2
        assert tmp <= 32
        if gelu:
            for (y, cs, tb, t) in prs:
                a('v_pk_fma_f32 %s, %s, %s, %s op_sel_hi:[1,0,1]' % (vr(y, 2), vr(cs, 2), vr(PC + 4 * tb, 2), vr(y, 2)))
            for (y, cs, tb, t) in prs:
                a('v_pk_mul_f32 %s, %s, %s' % (vr(t, 2), vr(y, 2), vr(y, 2)))
            for (y, cs, tb, t) in prs:
                a('v_pk_fma_f32 %s, %s, %s, %s op_sel:[0,0,1] op_sel_hi:[1,0,1]' % (vr(t, 2), vr(t, 2), vr(PC + 4 * tb + 2, 2), vr(PC + 4 * tb, 2)))
            for (y, cs, tb, t) in prs:
                a('v_pk_mul_f32 %s, %s, %s' % (vr(t, 2), vr(t, 2), vr(y, 2)))
            for (y, cs, tb, t) in prs:
                a('v_exp_f32 %s, %s' % (vr(t), vr(t)))
                a('v_exp_f32 %s, %s' % (vr(t + 1), vr(t + 1)))
            for (y, cs, tb, t) in prs:
                a('v_pk_fma_f32 %s, %s, %s, %s op_sel:[0,1,1] op_sel_hi:[1,1,1]' % (vr(t, 2), vr(t, 2), vr(PC + 4 * tb + 2, 2), vr(PC + 4 * tb + 2, 2)))
            for (y, cs, tb, t) in prs:
                a('v_rcp_f32 %s, %s' % (vr(t), vr(t)))
                a('v_rcp_f32 %s, %s' % (vr(t + 1), vr(t + 1)))
            for (y, cs, tb, t) in prs:
                a('v_pk_mul_f32 %s, %s, %s' % (vr(y, 2), vr(y, 2), vr(t, 2)))
        for (tb, cb) in tiles:
            A0 = ACC[tb][cb]
            a('v_cvt_pk_bf16_f32 %s, %s, %s' % (vr(A0), vr(A0), vr(A0 + 1)))
            a('v_cvt_pk_bf16_f32 %s, %s, %s' % (vr(A0 + 1), vr(A0 + 2), vr(A0 + 3)))
        for (tb, cb) in tiles:
            a('ds_write_b64 v5, %s offset:%d' % (vr(ACC[tb][cb], 2), tb * 16 * RS + cb * 32))
    if BN != 224:
        for tb in range(4):
            finish_tiles([(tb, cb) for cb in range(CB)])
        a('s_waitcnt lgkmcnt(0)')
        a('s_branch %s' % L('store'))
    else:
        for tb in range(4):
            tl = [(tb, cb) for cb in range(CB)]
            finish_tiles(tl[0:4]); finish_tiles(tl[4:7])
            a('s_waitcnt lgkmcnt(0)')
            a('s_barrier')
        a('s_endpgm')

    a.label(L('prod'))
    a('s_sub_u32 %s, %s, 4' % (sr(S_ROLE), sr(S_WAVE)))
    a('v_lshrrev_b32 v3, 3, v2')
    a('v_and_b32 v4, 7, v2')
    a('v_lshrrev_b32 v5, 4, v2')
    a('s_lshl_b32 %s, %s, 5' % (T0, sr(S_ROLE)))
    a('s_add_u32 %s, %s, %s' % (T0, T0, sr(S_ROW)))
    a('s_mov_b32 %s, %d' % (T1, c.Tstride))
    a('v_add_u32 v6, %s, v3' % T0)
    a('v_mul_lo_u32 v6, v6, %s' % T1)
    if c.split:
        a('s_mul_i32 %s, %s, %d' % (T0, sr(S_KH), KLEN * 2))
        a('v_add_u32 v6, %s, v6' % T0)
    a('v_xor_b32 v7, v4, v5')
    a('v_lshl_add_u32 v8, v7, 4, v6')
    a('v_xor_b32 v7, 4, v7')
    a('v_lshl_add_u32 v9, v7, 4, v6')
    a('v_add_u32 v9, %d, v9' % (8 * c.Tstride))
    a('v_add_u32 v10, %d, v8' % (16 * c.Tstride))
    a('v_add_u32 v11, %d, v9' % (16 * c.Tstride))
    a('s_lshl_b32 %s, %s, 1' % (T2, sr(S_COL)))
    if c.split:
        a('s_mul_i32 %s, %s, %d' % (T0, sr(S_KH), KLEN * c.Wstride))
        a('s_add_u32 %s, %s, %s' % (T2, T2, T0))
    a('s_mov_b32 %s, %d' % (T1, c.Wstride))
    if BN == 64:
        a('s_lshl_b32 %s, %s, 4' % (T0, sr(S_ROLE)))
        a('v_add_u32 v6, %s, v3' % T0)
        a('v_mul_lo_u32 v6, v6, %s' % T1)
        a('v_add_u32 v6, %s, v6' % T2)
        a('v_and_b32 v7, 1, v5')
        a('v_lshlrev_b32 v7, 1, v7')
        a('v_xor_b32 v7, v4, v7')
        a('v_lshl_add_u32 v12, v7, 4, v6')
        a('v_xor_b32 v7, 4, v7')
        a('v_lshl_add_u32 v13, v7, 4, v6')
        a('v_add_u32 v13, %d, v13' % (8 * c.Wstride))
    elif BN == 128:
        a('s_lshl_b32 %s, %s, 4' % (T0, sr(S_ROLE)))
        a('v_add_u32 v6, %s, v5' % T0)
        a('v_mul_lo_u32 v6, v6, %s' % T1)
        a('v_add_u32 v6, %s, v6' % T2)
        a('v_and_b32 v7, 15, v2')
        a('v_lshlrev_b32 v20, 1, v5')
        a('v_xor_b32 v7, v7, v20')
        a('v_lshl_add_u32 v12, v7, 4, v6')
        a('v_add_u32 v13, %d, v12' % (4 * c.Wstride))
        a('v_xor_b32 v7, 8, v7')
        a('v_lshl_add_u32 v14, v7, 4, v6')
        a('v_add_u32 v14, %d, v14' % (8 * c.Wstride))
        a('v_add_u32 v15, %d, v14' % (4 * c.Wstride))
    else:
        for q in range(NWQ):
            a('s_mul_i32 %s, %s, %d' % (T0, sr(S_ROLE), NWQ * 64))
            a('s_add_u32 %s, %s, %d' % (T0, T0, q * 64))
            a('v_add_u32 v6, %s, v2' % T0)
            a('v_mul_u32_u24 v7, 2341, v6')
            a('v_lshrrev_b32 v7, 16, v7')
            a('v_mul_u32_u24 v20, 28, v7')
            a('v_sub_u32 v6, v6, v20')
            a('v_bfe_u32 v20, v7, 3, 1')
            a('v_lshlrev_b32 v20, 1, v20')
            a('v_xor_b32 v6, v6, v20')
            a('v_mul_lo_u32 v7, v7, %s' % T1)
            a('v_lshl_add_u32 v6, v6, 4, v7')
            a('v_add_u32 %s, %s, v6' % (vr(12 + q), T2))
    a('s_lshl_b32 %s, %s, 12' % (sr(S_PT), sr(S_ROLE)))
    a('s_mul_i32 %s, %s, %d' % (sr(S_PW), sr(S_ROLE), NWQ * 1024))
    a('s_add_u32 %s, %s, 16384' % (sr(S_PW), sr(S_PW)))
    shift = [0]
    log = []
    def other(n):
        log.extend([('x',)] * n)
    def issue(st):
        slot = st % S
        if c.shift:
            d = [-1, 1, -2, 2][st // 4]
            if d != shift[0]:
                for q in range(4):
                    a('v_add_u32 %s, 0x%x, %s' % (vr(8 + q), ((d - shift[0]) * 2048) & 0xffffffff, vr(8 + q)))
                shift[0] = d
        a('s_mov_b32 %s, 0x%x' % (sr(S_OFT), st * 128))
        a('s_mov_b32 %s, 0x%x' % (sr(S_OFW), st * 64 * c.Wstride))
        for q in range(4):
            a('s_add_u32 m0, %s, 0x%x' % (sr(S_PT), slot * STAGE + q * 1024))
            a('s_nop 0')
            a('buffer_load_dwordx4 %s, %s, %s offen lds' % (vr(8 + q), sr(SRD_T, 4), sr(S_OFT)))
        for q in range(NWQ):
            a('s_add_u32 m0, %s, 0x%x' % (sr(S_PW), slot * STAGE + q * 1024))
            a('s_nop 0')
            a('buffer_load_dwordx4 %s, %s, %s offen lds' % (vr(12 + q), sr(SRD_W, 4), sr(S_OFW)))
        log.extend([('st', st)] * NDMA)
        if st == NS - 1:
            after_last_issue()
    def pre_stats_loads():
        a('v_subrev_u32 v28, 256, v0')
        a('v_and_b32 v5, 127, v28')
        a('v_lshrrev_b32 v6, 7, v28')
        a('v_add_u32 v7, %s, v5' % sr(S_ROW))
        a('v_lshlrev_b32 v7, 3, v7')
        a('v_lshl_add_u32 v7, v6, 17, v7')
        for m in range(8):
            a('s_mov_b32 %s, 0x%x' % (T0, m * S_ * 8))
            a('buffer_load_dwordx2 %s, v7, %s, %s offen' % (vr(32 + 2 * m, 2), sr(SRD_X, 4), T0))
        a('v_add_u32 v22, %s, v28' % sr(S_COL))
        a('v_lshlrev_b32 v22, 2, v22')
        a('v_cmp_gt_u32 vcc, 224, v28')
        a('v_mov_b32 v23, 0x%x' % OOB)
        a('s_nop 0')
        a('v_cndmask_b32 v22, v23, v22, vcc')
        for m in range(16):
            a('s_mov_b32 %s, 0x%x' % (T0, m * F_ * 4))
            a('buffer_load_dword %s, v22, %s, %s offen' % (vr(48 + m), sr(SRD_Y, 4), T0))
        other(24)
    def pre_stats_finish():
        SP_OFF = S * STAGE
        CS_OFF = SP_OFF + 2048
        for m in range(1, 8):
            a('v_add_f32 v32, v32, %s' % vr(32 + 2 * m))
            a('v_add_f32 v33, v33, %s' % vr(33 + 2 * m))
        a('v_and_b32 v5, 127, v28')
        a('v_lshrrev_b32 v6, 7, v28')
        a('v_lshlrev_b32 v5, 3, v5')
        a('v_lshl_add_u32 v5, v6, 10, v5')
        a('v_add_u32 v5, 0x%x, v5' % SP_OFF)
        a('ds_write_b64 v5, v[32:33]')
        for m in range(1, 16):
            a('v_add_f32 v48, v48, %s' % vr(48 + m))
        a('v_lshlrev_b32 v5, 2, v28')
        a('v_add_u32 v5, 0x%x, v5' % CS_OFF)
        a('ds_write_b32 v5, v48')
        a('s_waitcnt lgkmcnt(0)')
    def after_last_issue():
        if BN != 224:
            other(resid_loads())
        if c.epi == 'resid_stats':
            mk_srd(a, SRD_P, 'w3', D_ * F_ * 2)
            a('s_and_b32 %s, s2, 15' % T0)
            a('s_lshl_b32 %s, %s, 6' % (T0, T0))
            a('s_lshl_b32 %s, %s, 4' % (T1, sr(S_ROLE)))
            a('s_add_u32 %s, %s, %s' % (T0, T0, T1))
            a('v_lshrrev_b32 v3, 5, v2')
            a('v_add_u32 v3, %s, v3' % T0)
            a('v_mul_u32_u24 v3, 7168, v3')
            a('v_and_b32 v4, 31, v2')
            a('v_lshl_add_u32 v3, v4, 4, v3')
            a('s_lshr_b32 %s, s2, 4' % T1)
            a('s_mul_i32 %s, %s, 448' % (T1, T1))
            a('v_add_u32 v3, %s, v3' % T1)
            a('v_cmp_gt_u32 vcc, 28, v4')
            a('v_mov_b32 v5, 0x%x' % OOB)
            a('s_nop 0')
            a('v_cndmask_b32 v3, v5, v3, vcc')
            for m in range(8):
                a('s_mov_b32 %s, 0x%x' % (T0, m * 2 * 7168))
                a('buffer_load_dwordx4 %s, v3, %s, %s offen' % (vr(64 + 4 * m, 4), sr(SRD_P, 4), T0))
            other(8)
    if c.prof:
        a('s_memrealtime s[98:99]')
    nxt_issue = 0
    for _ in range(min(c.first, S)):
        issue(nxt_issue); nxt_issue += 1
    common_srds()
    if c.prof:
        a('s_memrealtime s[100:101]')
    pre_idx = None
    for t in range(NS):
        lastpos = max(i for i, e in enumerate(log) if e == ('st', t))
        n_after = len(log) - 1 - lastpos
        assert n_after <= 63, n_after
        a('s_waitcnt vmcnt(%d)' % n_after)
        a('s_barrier')
        if c.prof and c.trace and t < 64:
            a('s_memrealtime s[6:7]')
            a('s_waitcnt lgkmcnt(0)')
            a('v_writelane_b32 v254, s6, %d' % t)
        if c.prof and t == 0:
            a('s_memrealtime s[78:79]')
            a('s_memtime s[92:93]')
        if c.prof and t == NS // 2:
            a('s_memrealtime s[88:89]')
        k = 0
        while nxt_issue < NS and nxt_issue <= max(S - 1, t - 1 + S) and k < c.rate:
            issue(nxt_issue); nxt_issue += 1; k += 1
        if c.epi == 'gelu_pre' and t == 0:
            pre_stats_loads(); pre_idx = len(log) - 1
        if c.epi == 'gelu_pre' and t > 1 and pre_idx is not None and pre_idx >= 0 and lastpos > pre_idx:
            pre_stats_finish(); pre_idx = -1
    assert nxt_issue == NS
    a('s_barrier')
    if c.prof:
        a('s_memrealtime s[80:81]')
        a('s_memtime s[94:95]')
    if c.epi == 'gelu_inloop':
        a('s_barrier')
    if c.split:
        a('s_barrier')
        a('s_cmp_lg_u32 %s, 4' % sr(S_WAVE))
        a('s_cbranch_scc1 %s' % L('store'))
        a('s_lshr_b32 %s, s2, 2' % T1)
        a('s_lshl_b32 %s, %s, 2' % (T1, T1))
        a('s_and_b32 %s, s2, 3' % T2)
        a('s_lshl_b32 %s, %s, 3' % (T2, T2))
        a('s_lshl_b32 %s, 1, %s' % (T2, T2))
        a('v_mov_b32 v7, %s' % T1)
        a('v_mov_b32 v20, %s' % T2)
        a('v_cmp_eq_u32 vcc, 0, v2')
        a('v_mov_b32 v21, 0x%x' % OOB)
        a('s_nop 0')
        a('v_cndmask_b32 v7, v21, v7, vcc')
        a('buffer_atomic_or v20, v7, %s, 0 offen sc1' % sr(SRD_Y, 4))
    if c.epi == 'resid_stats':
        a('s_waitcnt vmcnt(0)')
        for r in range(8):
            a('v_mov_b32 %s, 0' % vr(24 + r))
        for m in range(8):
            for d in range(4):
                a('v_lshlrev_b32 v20, 16, %s' % vr(64 + 4 * m + d))
                a('v_and_b32 v21, %s, %s' % (sr(S_MASK), vr(64 + 4 * m + d)))
                a('v_add_f32 %s, %s, v20' % (vr(24 + 2 * d), vr(24 + 2 * d)))
                a('v_add_f32 %s, %s, v21' % (vr(25 + 2 * d), vr(25 + 2 * d)))
        a('v_lshrrev_b32 v3, 5, v2')
        a('s_lshl_b32 %s, %s, 1' % (T0, sr(S_ROLE)))
        a('v_add_u32 v3, %s, v3' % T0)
        a('v_mul_u32_u24 v3, 1024, v3')
        a('v_and_b32 v4, 31, v2')
        a('v_lshl_add_u32 v3, v4, 5, v3')
        a('ds_write_b128 v3, v[24:27] offset:32768')
        a('ds_write_b128 v3, v[28:31] offset:32784')
        a('s_waitcnt lgkmcnt(0)')
    if BN == 224:
        for q in range(4):
            a('s_mul_i32 %s, %s, 224' % (T0, sr(S_ROLE)))
            a('s_add_u32 %s, %s, %d' % (T0, T0, q * 64))
            a('v_add_u32 v6, %s, v2' % T0)
            a('v_mul_u32_u24 v7, 2341, v6')
            a('v_lshrrev_b32 v7, 16, v7')
            a('v_mul_u32_u24 v20, 28, v7')
            a('v_sub_u32 v6, v6, v20')
            a('v_and_b32 v20, 15, v7')
            a('v_lshrrev_b32 v7, 4, v7')
            a('v_lshl_add_u32 v7, v7, 6, v20')
            a('v_mul_u32_u24 v20, %d, v7' % RS)
            a('v_lshl_add_u32 %s, v6, 4, v20' % vr(24 + q))
            a('v_add_u32 v7, %s, v7' % sr(S_ROW))
            a('s_mov_b32 %s, %d' % (T1, c.Ostride))
            a('v_mul_lo_u32 v7, v7, %s' % T1)
            a('v_lshl_add_u32 v7, v6, 4, v7')
            a('s_lshl_b32 %s, %s, 1' % (T1, sr(S_COL)))
            a('v_add_u32 %s, %s, v7' % (vr(28 + q), T1))
            if q == 3:
                a('v_cmp_gt_u32 vcc, 32, v2')
                a('v_mov_b32 v20, 0x%x' % OOB)
                a('v_mov_b32 v21, 0')
                a('v_cndmask_b32 v31, v20, v31, vcc')
                a('v_cndmask_b32 v27, v21, v27, vcc')
        for tb in range(4):
            a('s_barrier')
            for q in range(4):
                a('ds_read_b128 %s, %s offset:%d' % (vr(32 + 16 * (tb & 1) + 4 * q, 4), vr(24 + q), tb * 16 * RS))
            a('s_mov_b32 %s, %d' % (T0, tb * 16 * c.Ostride))
            for q in range(4):
                a('s_waitcnt lgkmcnt(%d)' % (3 - q))
                a('buffer_store_dwordx4 %s, %s, %s, %s offen%s' % (vr(32 + 16 * (tb & 1) + 4 * q, 4), vr(28 + q), sr(SRD_O, 4), T0, ST))
        a('s_branch %s' % L('fin'))

    a.label(L('store'))
    if BN != 224:
        a('s_barrier')
        a('v_and_b32 v2, 63, v0')
        for q in range(2):
            rb_idx(q, 3, 4, 5)
            a('v_mul_u32_u24 v6, %d, v3' % RS)
            a('v_lshl_add_u32 v6, v4, 4, v6')
            a('ds_read_b128 %s, v6' % vr(32 + 4 * q, 4))
        if c.R is None:
            for q in range(2):
                a('s_waitcnt lgkmcnt(%d)' % (1 - q))
                a('buffer_store_dwordx4 %s, %s, %s, 0 offen%s' % (vr(32 + 4 * q, 4), vr(V_RBG + q), sr(SRD_O, 4), ST))
        else:
            a('s_waitcnt vmcnt(0) lgkmcnt(0)')
            for q in range(2):
                for d in range(4):
                    h = 32 + 4 * q + d; x = V_RES + 4 * q + d
                    a('v_lshlrev_b32 v8, 16, %s' % vr(h))
                    a('v_lshlrev_b32 v9, 16, %s' % vr(x))
                    a('v_and_b32 v10, %s, %s' % (sr(S_MASK), vr(h)))
                    a('v_and_b32 v11, %s, %s' % (sr(S_MASK), vr(x)))
                    a('v_add_f32 v8, v8, v9')
                    a('v_add_f32 v10, v10, v11')
                    a('v_cvt_pk_bf16_f32 %s, v8, v10' % vr(h))
                a('buffer_store_dwordx4 %s, %s, %s, 0 offen%s' % (vr(32 + 4 * q, 4), vr(V_RBG + q), sr(SRD_O, 4), ST))
            if c.epi == 'resid_stats':
                a('v_mov_b32 v21, 0x3f803f80')
                for q in range(2):
                    sv = 12 + 2 * q
                    a('v_mov_b32 %s, 0' % vr(sv))
                    a('v_mov_b32 %s, 0' % vr(sv + 1))
                    for d in range(4):
                        h = 32 + 4 * q + d
                        a('v_dot2c_f32_bf16 %s, %s, v21' % (vr(sv), vr(h)))
                        a('v_dot2c_f32_bf16 %s, %s, %s' % (vr(sv + 1), vr(h), vr(h)))
                a('s_nop 3')
                for dpp in ('quad_perm:[1,0,3,2]', 'quad_perm:[2,3,0,1]', 'row_half_mirror'):
                    for r in range(12, 16):
                        a('v_add_f32_dpp %s, %s, %s %s row_mask:0xf bank_mask:0xf' % (vr(r), vr(r), vr(r), dpp))
                    a('s_nop 0')
                for q in range(2):
                    rb_idx(q, 3, 4, 5)
                    a('v_add_u32 v3, %s, v3' % sr(S_ROW))
                    a('v_lshlrev_b32 v3, 3, v3')
                    a('s_lshl_b32 %s, %s, 14' % (T1, sr(S_CBK)))
                    a('v_add_u32 v3, %s, v3' % T1)
                    a('v_cmp_eq_u32 vcc, 0, v4')
                    a('v_mov_b32 v5, 0x%x' % OOB)
                    a('s_nop 0')
                    a('v_cndmask_b32 v3, v5, v3, vcc')
                    a('buffer_store_dwordx2 %s, v3, %s, 0 offen%s' % (vr(12 + 2 * q, 2), sr(SRD_X, 4), ST))
                a('s_cmp_lt_u32 %s, 4' % sr(S_WAVE))
                a('s_cbranch_scc1 %s' % L('fin'))
                a('v_subrev_u32 v3, 256, v0')
                a('v_lshlrev_b32 v4, 2, v3')
                for m in range(8):
                    a('ds_read_b32 %s, v4 offset:%d' % (vr(40 + m), 32768 + m * 1024))
                a('s_waitcnt lgkmcnt(0)')
                for m in range(1, 8):
                    a('v_add_f32 v40, v40, %s' % vr(40 + m))
                a('s_and_b32 %s, s2, 15' % T0)
                a('s_mul_i32 %s, %s, %d' % (T0, T0, F_ * 4))
                a('s_lshr_b32 %s, s2, 4' % T1)
                a('s_mul_i32 %s, %s, %d' % (T1, T1, 224 * 4))
                a('s_add_u32 %s, %s, %s' % (T0, T0, T1))
                a('v_add_u32 v4, %s, v4' % T0)
                a('v_cmp_gt_u32 vcc, 224, v3')
                a('v_mov_b32 v5, 0x%x' % OOB)
                a('s_nop 0')
                a('v_cndmask_b32 v4, v5, v4, vcc')
                a('buffer_store_dword v40, v4, %s, 0 offen%s' % (sr(SRD_Y, 4), ST))
    a.label(L('fin'))
    if c.prof:
        a('s_cmp_lg_u32 %s, 4' % sr(S_WAVE))
        a('s_cbranch_scc1 %s' % L('done'))
        a('s_waitcnt vmcnt(0)')
        a('s_memrealtime s[82:83]')
        a('s_memtime s[86:87]')
        a('s_getreg_b32 s90, hwreg(HW_REG_XCC_ID)')
        a('s_waitcnt lgkmcnt(0)')
        mk_srd(a, SRD_X, ('ws', WS_PROF + c.idx * 65536), 65536)
        for r in range(26):
            a('v_mov_b32 %s, s%d' % (vr(32 + r), 76 + r))
        a('s_lshl_b32 s3, s2, 8')
        a('v_mov_b32 v3, s3')
        a('v_cmp_eq_u32 vcc, 0, v2')
        a('v_mov_b32 v5, 0x%x' % OOB)
        a('s_nop 0')
        a('v_cndmask_b32 v3, v5, v3, vcc')
        if c.trace:
            mk_srd(a, SRD_Y, ('ws', WS_PROF + (8 + c.idx) * 65536), 65536)
            a('v_lshlrev_b32 v4, 2, v2')
            a('v_add_u32 v4, s3, v4')
            a('buffer_store_dword v254, v4, %s, 0 offen' % sr(SRD_Y, 4))
        for r in range(7):
            a('buffer_store_dwordx4 %s, v3, %s, 0 offen offset:%d' % (vr(32 + 4 * r, 4), sr(SRD_X, 4), 16 * r))
    a.label(L('done'))
    a('s_endpgm')
    return S * STAGE + (4096 if c.epi == 'gelu_pre' else 0)

def descriptor(name):
    return '''.amdhsa_kernel %s
  .amdhsa_next_free_vgpr 256
  .amdhsa_next_free_sgpr 102
  .amdhsa_accum_offset 256
  .amdhsa_group_segment_fixed_size 0
  .amdhsa_kernarg_size 64
  .amdhsa_user_sgpr_count 2
  .amdhsa_user_sgpr_kernarg_segment_ptr 1
  .amdhsa_system_sgpr_workgroup_id_x 1
.end_amdhsa_kernel
''' % name

def mk(name, **kw):
    c = Cfg()
    c.name = name
    c.prof = False; c.trace = False; c.shift = False; c.R = None; c.stflag = ' sc1'
    c.pf_at = []; c.grp0 = []; c.stats = 'mfma'; c.first = 2; c.rate = 2; c.split = False
    for k, v in kw.items():
        setattr(c, k, v)
    return c

def configs(opts, split4):
    base = 'standalone__mixer_s_mlp__prompt'
    k4 = dict(BN=128, S=4, map='split', split=True) if split4 else dict(BN=64, S=6, map='4x8')
    return [
        mk('k1_kernel', BN=64, K=1024, S=6, T='x', Tbytes=NB, Tstride=2048, W='w1', Wbytes=D_ * D_ * 2, Wstride=2048,
           O=('ws', WS_H), Obytes=NB, Ostride=2048, epi='gelu_inloop', map='4x8', **opts),
        mk('k2_kernel', BN=64, K=1024, S=6, T=('ws', WS_H), Tbytes=NB, Tstride=2048, W='w2', Wbytes=D_ * D_ * 2, Wstride=2048,
           O=('ws', WS_X1), Obytes=NB, Ostride=2048, epi='resid_stats', map='4x8', R='x', shift=True, **opts),
        mk('k3_kernel', BN=224, K=1024, S=3, T=('ws', WS_X1), Tbytes=NB, Tstride=2048, W='w3', Wbytes=D_ * F_ * 2, Wstride=7168,
           O=('ws', WS_G), Obytes=S_ * F_ * 2, Ostride=7168, epi='gelu_pre', map='8x4', **opts),
        mk(base + '_kernel', K=3584, T=('ws', WS_G), Tbytes=S_ * F_ * 2, Tstride=7168, W='w4', Wbytes=F_ * D_ * 2, Wstride=2048,
           O='out', Obytes=NB, Ostride=2048, epi='resid', R=('ws', WS_X1), **k4, **opts),
    ]

own_cols = lambda buf: (buf, D_ * D_ * 2, 2048, 3, 7, (0, 0, 0), 32, 32, (0, 1, 1024))
ITEMS = {
    'w2': own_cols('w2'),
    'w3': ('w3', D_ * F_ * 2, 7168, 6, 55, (0, 7, 128), 4, 4, (0, 0, 0)),
    'w4': ('w4', F_ * D_ * 2, 2048, 4, 15, (0, 7, 448), 14, 16, (0, 0, 0)),
}

def main():
    out = sys.argv[1]
    opts = {}
    for o in sys.argv[2:]:
        k, v = o.split('=', 1)
        opts[k] = eval(v)
    only = opts.pop('only', None)
    split4 = opts.pop('split4', True)
    pfat = opts.pop('pfat', {0: [(10, ['w2']), (13, ['w3'])], 2: [(2, ['w4:0']), (5, ['w4:1']), (8, ['w4:2']), (11, ['w4:3'])]})
    per = opts.pop('per', {})
    cfgs = configs(opts, split4)
    for ki, lst in pfat.items():
        def conv(n):
            if n[0] == 'g': return ('grp', int(n[1:]))
            return ('onlywave', int(n[3]), ITEMS[n[:2]]) if len(n) > 2 else ITEMS[n]
        cfgs[ki].pf_at = [(it, [conv(n) for n in names]) for it, names in lst]
    for ki, d in per.items():
        for k, v in d.items(): setattr(cfgs[ki], k, v)
    if only is not None:
        cfgs = [cfgs[i] for i in only]
    a = Asm()
    ldss = []
    for i, c in enumerate(cfgs):
        c.idx = i
        ldss.append(gen_kernel(a, c))
    hdr = open('standalone__mixer_s_mlp__prompt.s.ref').read().split('; Override')[0]
    s = hdr
    for c, lds in zip(cfgs, ldss):
        s += '; @launch kernel=%s grid=(256,1,1) block=(512,1,1) lds=%d\n' % (c.name, lds)
    s += '.amdgcn_target "amdgcn-amd-amdhsa--gfx950"\n.text\n'
    s += a.text()
    s += '.section .rodata,"a"\n.p2align 6\n'
    for c in cfgs:
        s += descriptor(c.name) + '.p2align 6\n'
    open(out, 'w').write(s)

if __name__ == '__main__':
    main()
```

```python
import sys, struct

S_, D_, F_ = 2048, 1024, 3584
NB = S_ * D_ * 2
WS_H, WS_X1, WS_G = 0, 4 << 20, 8 << 20
WS_PART2 = 24 << 20
WS_CS3 = (24 << 20) + (256 << 10)
WS_PROF = 28 << 20
WS_XCH = 32 << 20
C0 = -2.0 * 0.7978845608028654 * 1.4426950408889634
C1 = C0 * 0.044715
OOB = 0x7ffffff0

def f2u(f):
    return struct.unpack('<I', struct.pack('<f', f))[0]

class Asm:
    def __init__(self):
        self.L = []
    def __call__(self, s):
        self.L.append('    ' + s)
    def label(self, s):
        self.L.append(s + ':')
    def text(self):
        return '\n'.join(self.L) + '\n'

def vr(b, n=1):
    return 'v%d' % b if n == 1 else 'v[%d:%d]' % (b, b + n - 1)
def sr(b, n=1):
    return 's%d' % b if n == 1 else 's[%d:%d]' % (b, b + n - 1)

SRD_T, SRD_W, SRD_R, SRD_O, SRD_X, SRD_Y, SRD_P = 8, 12, 16, 20, 24, 28, 72
S_WAVE, S_ROW, S_COL, S_ROLE, S_I, S_J = 32, 33, 34, 35, 36, 37
S_OFT, S_OFW, S_CNT, S_SLOT, S_PT, S_PW = 38, 39, 40, 41, 42, 43
S_T0, S_T1, S_T2, S_T3 = 44, 45, 46, 47
S_RB, S_CBK = 48, 49
S_C0, S_C1, S_MASK = 50, 51, 52
S_XCD, S_IDX, S_KH = 53, 54, 55
P = {'x': 56, 'w1': 58, 'w2': 60, 'w3': 62, 'w4': 64, 'out': 66, 'dbg': 68, 'ws': 70}

class Cfg:
    pass

def ptr(nm):
    if isinstance(nm, tuple):
        return P['ws'], P['ws'] + 1, nm[1]
    return P[nm], P[nm] + 1, 0

def mk_srd(a, dst, src, nbytes):
    lo, hi, add = ptr(src)
    if add:
        a('s_add_u32 %s, %s, 0x%x' % (sr(dst), sr(lo), add))
        a('s_addc_u32 %s, %s, 0' % (sr(dst + 1), sr(hi)))
    else:
        a('s_mov_b32 %s, %s' % (sr(dst), sr(lo)))
        a('s_mov_b32 %s, %s' % (sr(dst + 1), sr(hi)))
    a('s_mov_b32 %s, 0x%x' % (sr(dst + 2), nbytes))
    a('s_mov_b32 %s, 0x20000' % sr(dst + 3))

def gen_kernel(a, c):
    name = c.name
    BN, CB, S = c.BN, c.BN // 32, c.S
    KLEN = c.K // 2 if c.split else c.K
    NS = KLEN // 64
    WROW = BN * 2
    STAGE = 16384 + 64 * WROW
    NWQ = (64 * WROW // 1024) // 4
    NDMA = 4 + NWQ
    RS = BN * 2 + 16
    L = lambda s: '%s_%s' % (name, s)
    gelu = c.epi in ('gelu_inloop', 'gelu_pre')
    ST = c.stflag
    X, I = sr(S_XCD), sr(S_IDX)
    T0, T1, T2, T3 = sr(S_T0), sr(S_T1), sr(S_T2), sr(S_T3)

    a.L.append('.globl %s' % name)
    a.L.append('.p2align 8')
    a.L.append('.type %s,@function' % name)
    a.label(name)
    a('s_cmp_ge_u32 s2, 256')
    a('s_cbranch_scc1 %s' % L('done'))
    a('s_load_dwordx16 s[56:71], s[0:1], 0')
    if c.prof:
        a('s_memrealtime s[76:77]')
        a('s_memtime s[84:85]')
    a('s_and_b32 %s, s2, 7' % X)
    a('s_lshr_b32 %s, s2, 3' % I)
    def field(dst, src, shr, msk, shl):
        a('s_lshr_b32 %s, %s, %d' % (dst, src, shr))
        a('s_and_b32 %s, %s, %d' % (dst, dst, msk))
        if shl: a('s_lshl_b32 %s, %s, %d' % (dst, dst, shl))
    if c.map == '4x8':
        field(T1, X, 1, 3, 2); field(T2, I, 3, 3, 0); a('s_add_u32 %s, %s, %s' % (sr(S_RB), T1, T2))
        field(T1, X, 0, 1, 3); field(T2, I, 0, 7, 0); a('s_add_u32 %s, %s, %s' % (sr(S_CBK), T1, T2))
    elif c.map == '8x4':
        field(T1, X, 2, 1, 3); field(T2, I, 2, 7, 0); a('s_add_u32 %s, %s, %s' % (sr(S_RB), T1, T2))
        field(T1, X, 0, 3, 2); field(T2, I, 0, 3, 0); a('s_add_u32 %s, %s, %s' % (sr(S_CBK), T1, T2))
    elif c.map == 'split':
        field(sr(S_KH), X, 0, 1, 0)
        field(T1, X, 1, 1, 3); field(T2, I, 2, 7, 0); a('s_add_u32 %s, %s, %s' % (sr(S_RB), T1, T2))
        field(T1, X, 2, 1, 2); field(T2, I, 0, 3, 0); a('s_add_u32 %s, %s, %s' % (sr(S_CBK), T1, T2))
    a('s_lshl_b32 %s, %s, 7' % (sr(S_ROW), sr(S_RB)))
    a('s_mul_i32 %s, %s, %d' % (sr(S_COL), sr(S_CBK), BN))
    a('v_lshrrev_b32 v1, 6, v0')
    a('v_and_b32 v2, 63, v0')
    a('s_nop 0')
    a('v_readfirstlane_b32 %s, v1' % sr(S_WAVE))
    a('s_mov_b32 %s, 0x%x' % (sr(S_C0), f2u(C0)))
    a('s_mov_b32 %s, 0x%x' % (sr(S_C1), f2u(C1)))
    a('s_mov_b32 %s, 0xffff0000' % sr(S_MASK))
    a('s_waitcnt lgkmcnt(0)')
    if c.prof:
        a('s_memrealtime s[96:97]')
    mk_srd(a, SRD_T, c.T, c.Tbytes)
    mk_srd(a, SRD_W, c.W, c.Wbytes)
    a('s_cmp_ge_u32 %s, 4' % sr(S_WAVE))
    a('s_cbranch_scc1 %s' % L('prod'))

    def common_srds():
        mk_srd(a, SRD_O, c.O, c.Obytes)
        if c.R is not None:
            mk_srd(a, SRD_R, c.R, NB)
        if c.epi in ('resid_stats', 'gelu_pre'):
            mk_srd(a, SRD_X, ('ws', WS_PART2), 16 * S_ * 8)
            mk_srd(a, SRD_Y, ('ws', WS_CS3), 16 * F_ * 4)
        if c.split:
            mk_srd(a, SRD_X, ('ws', WS_XCH), 256 * 32768)
            mk_srd(a, SRD_Y, 'dbg', 256)

    V_RES, V_RBG = 240, 248
    RB_SH = 3 if BN == 64 else 4
    def rb_idx(q, vrow, vch, vtmp):
        a('s_lshl_b32 %s, %s, 7' % (T0, sr(S_WAVE)))
        a('s_add_u32 %s, %s, %d' % (T0, T0, q * 64))
        a('v_add_u32 %s, %s, v2' % (vr(vtmp), T0))
        a('v_lshrrev_b32 %s, %d, %s' % (vr(vrow), RB_SH, vr(vtmp)))
        a('v_and_b32 %s, %d, %s' % (vr(vch), (1 << RB_SH) - 1, vr(vtmp)))
    def resid_loads():
        n = 0
        for q in range(2):
            rb_idx(q, 3, 4, 5)
            a('v_add_u32 v3, %s, v3' % sr(S_ROW))
            if c.split:
                a('s_lshl_b32 %s, %s, 6' % (T1, sr(S_KH)))
                a('v_add_u32 v3, %s, v3' % T1)
            a('v_lshlrev_b32 v3, 11, v3')
            a('v_lshlrev_b32 v4, 4, v4')
            a('s_lshl_b32 %s, %s, 1' % (T1, sr(S_COL)))
            a('v_add3_u32 %s, v3, v4, %s' % (vr(V_RBG + q), T1))
            if c.R is not None:
                a('buffer_load_dwordx4 %s, %s, %s, 0 offen' % (vr(V_RES + 4 * q, 4), vr(V_RBG + q), sr(SRD_R, 4)))
                n += 1
        return n

    def pf(item, onlywave=None):
        buf, nbytes, stride, sh, maxl, row_xcd, row_idx, rows_cu, col_xcd = item
        mk_srd(a, SRD_P, buf, nbytes)
        rpi = 64 >> sh
        per_wave = rows_cu // 4
        n = max(1, per_wave // rpi)
        def term(dst, spec):
            shr, msk, mul = spec
            a('s_lshr_b32 %s, %s, %d' % (dst, X, shr))
            a('s_and_b32 %s, %s, %d' % (dst, dst, msk))
            a('s_mul_i32 %s, %s, %d' % (dst, dst, mul))
        term(T0, row_xcd)
        a('s_mul_i32 %s, %s, %d' % (T1, I, row_idx))
        a('s_add_u32 %s, %s, %s' % (T0, T0, T1))
        a('s_mul_i32 %s, %s, %d' % (T1, sr(S_WAVE), per_wave))
        a('s_add_u32 %s, %s, %s' % (T0, T0, T1))
        term(T1, col_xcd)
        a('v_lshrrev_b32 v6, %d, v2' % sh)
        a('v_add_u32 v6, %s, v6' % T0)
        a('s_mov_b32 %s, %d' % (T2, stride))
        a('v_mul_lo_u32 v6, v6, %s' % T2)
        a('v_and_b32 v7, %d, v2' % ((1 << sh) - 1))
        if maxl < (1 << sh) - 1:
            a('v_min_u32 v7, %d, v7' % maxl)
        a('v_lshl_add_u32 v6, v7, 7, v6')
        a('v_add_u32 v6, %s, v6' % T1)
        for q in range(n):
            a('s_mov_b32 %s, %d' % (T2, q * rpi * stride))
            a('buffer_load_dword v250, v6, %s, %s offen' % (sr(SRD_P, 4), T2))

    cp_n = [0]
    def code_pf(target, nchunks, forward, skip=None):
        cp_n[0] += 1
        here = L('cpf%d' % cp_n[0])
        done = skip or (here + '_d')
        a('s_cmp_lg_u32 %s, 3' % sr(S_WAVE))
        a('s_cbranch_scc1 %s' % done)
        a('s_getpc_b64 s[4:5]')
        a.label(here)
        if forward:
            a('s_add_u32 s4, s4, %s-%s' % (target, here))
            a('s_addc_u32 s5, s5, 0')
        else:
            a('s_sub_u32 s4, s4, %s-%s' % (here, target))
            a('s_subb_u32 s5, s5, 0')
        a('s_and_b32 %s, %s, %d' % (T0, I, nchunks - 1))
        a('s_lshl_b32 %s, %s, 13' % (T0, T0))
        a('v_lshlrev_b32 v6, 7, v2')
        a('v_add_u32 v6, %s, v6' % T0)
        a('v_min_u32 v6, %s_end-%s-4, v6' % (target, target))
        a('global_load_dword v250, v6, s[4:5]')
        if skip is None:
            a.label(done)

    for (target, nch, fwd) in c.code0:
        code_pf(target, nch, fwd)
    a('s_lshr_b32 %s, %s, 1' % (sr(S_I), sr(S_WAVE)))
    a('s_and_b32 %s, %s, 1' % (sr(S_J), sr(S_WAVE)))
    VT = [[None] * 4, [None] * 4]
    VW = [[None] * CB, [None] * CB]
    nxt = 32
    for st in range(2):
        for tb in range(4):
            VT[st][tb] = nxt; nxt += 4
        for cb in range(CB):
            VW[st][cb] = nxt; nxt += 4
    assert nxt <= 128
    ACC = [[None] * CB for _ in range(4)]
    nxt = 128
    for tb in range(4):
        for cb in range(CB):
            ACC[tb][cb] = nxt; nxt += 4
    assert nxt <= 240
    NWA = 4 if BN == 128 else 2
    bT = [8, 9]; aT = [10, 11]
    bW = [12, 13, 14, 15][:NWA]; aW = [16, 17, 18, 19][:NWA]
    a('v_and_b32 v3, 15, v2')
    a('v_lshrrev_b32 v4, 4, v2')
    a('s_lshl_b32 %s, %s, 13' % (T0, sr(S_I)))
    a('v_lshlrev_b32 v5, 7, v3')
    a('v_lshrrev_b32 v6, 1, v3')
    a('v_xor_b32 v6, v6, v4')
    a('v_lshlrev_b32 v6, 4, v6')
    a('v_add3_u32 %s, v5, v6, %s' % (vr(bT[0]), T0))
    a('v_xor_b32 %s, 64, %s' % (vr(bT[1]), vr(bT[0])))
    a('v_lshrrev_b32 v5, 2, v3')
    a('v_lshl_add_u32 v6, v4, 3, v5')
    a('v_and_b32 v7, 3, v2')
    if BN == 64:
        a('v_lshlrev_b32 v6, 7, v6')
        a('v_lshl_add_u32 v6, v7, 3, v6')
        a('v_lshrrev_b32 v5, 1, v5')
        a('v_and_b32 v7, 1, v4')
        a('v_lshl_or_b32 v5, v7, 1, v5')
        a('s_lshl_b32 %s, %s, 1' % (T0, sr(S_J)))
        a('v_xor_b32 v5, %s, v5' % T0)
        a('v_lshl_add_u32 v6, v5, 5, v6')
        a('v_add_u32 %s, 16384, v6' % vr(bW[0]))
        a('v_xor_b32 %s, 32, %s' % (vr(bW[1]), vr(bW[0])))
        woff = lambda s, cb, h: s * 4096 + h * 512
        wreg = lambda cb: cb
    elif BN == 128:
        a('v_lshlrev_b32 v6, 8, v6')
        a('v_lshl_add_u32 v6, v7, 3, v6')
        a('v_and_b32 v7, 1, v4')
        a('v_lshl_or_b32 v5, v7, 2, v5')
        a('s_lshl_b32 %s, %s, 2' % (T0, sr(S_J)))
        a('v_xor_b32 v5, %s, v5' % T0)
        a('v_lshl_add_u32 v6, v5, 5, v6')
        a('v_add_u32 %s, 16384, v6' % vr(bW[0]))
        for cb in range(1, 4):
            a('v_xor_b32 %s, %d, %s' % (vr(bW[cb]), 32 * cb, vr(bW[0])))
        woff = lambda s, cb, h: s * 8192 + h * 1024
        wreg = lambda cb: cb
    else:
        a('v_mul_u32_u24 v6, 448, v6')
        a('v_lshl_add_u32 v6, v7, 3, v6')
        a('s_mul_i32 %s, %s, %d' % (T0, sr(S_J), 7 * 32))
        a('s_add_u32 %s, %s, 16384' % (T0, T0))
        a('v_add_u32 v6, %s, v6' % T0)
        a('v_and_b32 v7, 1, v4')
        a('v_lshlrev_b32 v7, 5, v7')
        a('v_add_u32 v5, v6, v7')
        a('v_sub_u32 v6, v6, v7')
        a('s_cmp_eq_u32 %s, 0' % sr(S_J))
        a('s_cselect_b64 vcc, -1, 0')
        a('v_cndmask_b32 %s, v6, v5, vcc' % vr(bW[0]))
        a('v_cndmask_b32 %s, v5, v6, vcc' % vr(bW[1]))
        woff = lambda s, cb, h: cb * 32 + s * 32 * 448 + h * 4 * 448
        wreg = lambda cb: cb & 1
    for tb in range(4):
        for cb in range(CB):
            for r in range(4):
                a('v_mov_b32 %s, 0' % vr(ACC[tb][cb] + r))
    SUMA, GRA, CSA, ONES = [176, 180], [184, 188], 192, 196
    if c.epi == 'gelu_inloop':
        for r in range(176, 196):
            a('v_mov_b32 %s, 0' % vr(r))
        for r in range(4):
            a('v_mov_b32 %s, 0x3f803f80' % vr(ONES + r))
    common_srds()
    if BN != 224:
        resid_loads()

    def grp_setup():
        a('s_lshr_b32 %s, %s, 1' % (T0, X))
        a('s_lshl_b32 %s, %s, 9' % (T0, T0))
        a('s_lshl_b32 %s, %s, 4' % (T1, I))
        a('s_add_u32 %s, %s, %s' % (T0, T0, T1))
        a('v_and_b32 v5, 15, v2')
        a('v_add_u32 v5, %s, v5' % T0)
        a('v_lshlrev_b32 v5, 11, v5')
        a('v_lshrrev_b32 v6, 4, v2')
        a('v_lshl_add_u32 v20, v6, 7, v5')
        a('v_and_b32 v5, 7, v2')
        a('v_lshlrev_b32 v5, 7, v5')
        a('v_bfe_u32 v7, v2, 3, 1')
        a('s_lshl_b32 %s, %s, 1' % (T0, I))
        a('v_add_u32 v7, %s, v7' % T0)
        a('v_lshl_add_u32 v7, v6, 6, v7')
        a('v_lshlrev_b32 v7, 11, v7')
        a('s_and_b32 %s, %s, 1' % (T0, X))
        a('s_lshl_b32 %s, %s, 10' % (T0, T0))
        a('v_add3_u32 v21, v5, v7, %s' % T0)
    def grp_pf(g, skip):
        a('s_cmp_gt_u32 %s, 1' % sr(S_WAVE))
        a('s_cbranch_scc1 %s' % skip)
        a('s_cmp_eq_u32 %s, 1' % sr(S_WAVE))
        lab = L('gw%d_%s' % (g, skip[-6:].replace('_', 'x')))
        a('s_cbranch_scc1 %s' % lab)
        a('s_mov_b32 %s, %d' % (T0, g * 512))
        a('buffer_load_dword v250, v20, %s, %s offen' % (sr(SRD_T, 4), T0))
        a('s_branch %s' % skip)
        a.label(lab)
        a('s_mov_b32 %s, %d' % (T0, g * 4 * 64 * 2048))
        a('buffer_load_dword v250, v21, %s, %s offen' % (sr(SRD_W, 4), T0))
    if c.grp0:
        grp_setup()
        for g in c.grp0:
            grp_pf(g, L('g0s%d' % g))
            a.label(L('g0s%d' % g))

    def reads(st, s):
        r = []
        order = [('T', 0), ('W', 0), ('T', 1), ('T', 2), ('T', 3)] + [('W', cb) for cb in range(1, CB)]
        for kind, i in order:
            if kind == 'T':
                r.append('ds_read_b128 %s, %s offset:%d' % (vr(VT[st][i], 4), vr(aT[s]), i * 2048))
            else:
                r.append('ds_read_b64_tr_b16 %s, %s offset:%d' % (vr(VW[st][i], 2), vr(aW[wreg(i)]), woff(s, i, 0)))
                r.append('ds_read_b64_tr_b16 %s, %s offset:%d' % (vr(VW[st][i] + 2, 2), vr(aW[wreg(i)]), woff(s, i, 1)))
        return r
    def mf(d, x, y):
        return 'v_mfma_f32_16x16x32_bf16 %s, %s, %s, %s' % (vr(d, 4), vr(x, 4), vr(y, 4), vr(d, 4))
    def mfmas(st, j=None, i=None):
        m = []
        for cb in range(CB):
            for tb in range(4):
                m.append(mf(ACC[tb][cb], VW[st][cb], VT[st][tb]))
        if c.epi == 'gelu_inloop' and c.stats == 'mfma':
            for z in range(2):
                tb = 2 * j + z
                m.append(mf(SUMA[z], ONES, VT[st][tb]))
                m.append(mf(GRA[z], VT[st][tb], VT[st][tb]))
            m.append(mf(CSA, VW[st][i], ONES))
        return m
    DS = 176
    def dots(st, j, i):
        if not (c.epi == 'gelu_inloop' and c.stats == 'dot'):
            return []
        e = []
        for d in range(4):
            for z in range(2):
                tb = 2 * j + z
                ch = (d & 1) * 4
                e.append('v_dot2c_f32_bf16 %s, %s, %s' % (vr(DS + ch + 2 * z), vr(VT[st][tb] + d), vr(ONES)))
                e.append('v_dot2c_f32_bf16 %s, %s, %s' % (vr(DS + ch + 2 * z + 1), vr(VT[st][tb] + d), vr(VT[st][tb] + d)))
            e.append('v_dot2c_f32_bf16 %s, %s, %s' % (vr(DS + 8 + (d & 1)), vr(VW[st][i] + d), vr(ONES)))
        return e
    def interleave(ms, rs, es=()):
        rs = list(rs); es = list(es)
        n = len(ms)
        for k, m in enumerate(ms):
            a(m)
            if rs:
                a(rs.pop(0))
            q = -(-len(es) // (n - k))
            for _ in range(q):
                a(es.pop(0))
        for r_ in rs: a(r_)
    def setaddr(regs):
        for ar, br in regs:
            a('v_add_u32 %s, %s, %s' % (vr(ar), sr(S_SLOT), vr(br)))
    WA = list(zip(aW, bW))

    ool = []
    def mainloop(tag, j, i):
        a('s_mov_b32 %s, 0' % sr(S_SLOT))
        a('s_mov_b32 %s, %d' % (sr(S_CNT), NS))
        a('s_barrier')
        setaddr([(aT[0], bT[0]), (aT[1], bT[1])] + WA)
        for r_ in reads(0, 0): a(r_)
        a.label(L('loop' + tag))
        for n_, (it, items) in enumerate(c.pf_at):
            lab = L('pfat%d%s' % (n_, tag)); ret = lab + '_r'
            a('s_cmp_eq_u32 %s, %d' % (sr(S_CNT), NS - it))
            a('s_cbranch_scc1 %s' % lab)
            a.label(ret)
            ool.append((lab, items, ret))
        a('s_waitcnt lgkmcnt(0)')
        interleave(mfmas(0, j, i), reads(1, 1), dots(0, j, i))
        a('s_add_u32 %s, %s, %d' % (sr(S_SLOT), sr(S_SLOT), STAGE))
        a('s_cmp_eq_u32 %s, %d' % (sr(S_SLOT), S * STAGE))
        a('s_cselect_b32 %s, 0, %s' % (sr(S_SLOT), sr(S_SLOT)))
        setaddr([(aT[0], bT[0])] + WA)
        a('s_waitcnt lgkmcnt(0)')
        a('s_barrier')
        interleave(mfmas(1, j, i), reads(0, 0), dots(1, j, i))
        setaddr([(aT[1], bT[1])])
        a('s_sub_u32 %s, %s, 1' % (sr(S_CNT), sr(S_CNT)))
        a('s_cmp_lg_u32 %s, 0' % sr(S_CNT))
        a('s_cbranch_scc1 %s' % L('loop' + tag))

    if c.epi == 'gelu_inloop':
        for w in range(4):
            if w < 3:
                a('s_cmp_lg_u32 %s, %d' % (sr(S_WAVE), w))
                a('s_cbranch_scc1 %s' % L('ver%d' % (w + 1)))
            mainloop('_%d' % w, w & 1, w >> 1)
            a('s_branch %s' % L('after'))
            if w < 3:
                a.label(L('ver%d' % (w + 1)))
    else:
        mainloop('', 0, 0)
        a('s_branch %s' % L('after'))
    for lab, items, ret in ool:
        a.label(lab)
        for item in items:
            if item[0] == 'grp':
                grp_pf(item[1], ret)
                continue
            if item[0] == 'code':
                code_pf(item[1], item[2], True, ret)
                continue
            if item[0] == 'onlywave':
                a('s_cmp_lg_u32 %s, %d' % (sr(S_WAVE), item[1]))
                a('s_cbranch_scc1 %s' % ret)
                item = item[2]
            pf(item)
        a('s_branch %s' % ret)
    a.label(L('after'))
    a('s_waitcnt lgkmcnt(0)')
    a('s_nop 7')
    a('s_nop 7')
    a('v_and_b32 v3, 15, v2')
    a('v_lshrrev_b32 v4, 4, v2')
    if c.split:
        a('s_lshl_b32 %s, s2, 15' % T3)
        a('s_lshl_b32 %s, %s, 14' % (T0, sr(S_J)))
        a('s_add_u32 %s, %s, %s' % (T3, T3, T0))
        a('v_lshlrev_b32 v6, 4, v2')
        a('s_cmp_eq_u32 %s, %s' % (sr(S_I), sr(S_KH)))
        a('s_cbranch_scc1 %s' % L('recv'))
        a('v_add_u32 v6, %s, v6' % T3)
        for tb in range(4):
            for cb in range(4):
                a('s_mov_b32 %s, %d' % (T0, (tb * 4 + cb) * 1024))
                a('buffer_store_dwordx4 %s, v6, %s, %s offen sc1' % (vr(ACC[tb][cb], 4), sr(SRD_X, 4), T0))
        a('s_waitcnt vmcnt(0)')
        a('s_barrier')
        a('s_branch %s' % L('store'))
        a.label(L('recv'))
        a('s_barrier')
        a('s_xor_b32 %s, s2, 1' % T0)
        a('s_lshr_b32 %s, %s, 2' % (T1, T0))
        a('s_lshl_b32 %s, %s, 2' % (T1, T1))
        a('s_and_b32 %s, %s, 3' % (T2, T0))
        a('s_lshl_b32 %s, %s, 3' % (T2, T2))
        a('v_mov_b32 v7, %s' % T1)
        a.label(L('poll'))
        a('buffer_load_dword v20, v7, %s, 0 offen sc1' % sr(SRD_Y, 4))
        a('s_waitcnt vmcnt(0)')
        a('v_readfirstlane_b32 %s, v20' % T1)
        a('s_nop 3')
        a('s_lshr_b32 %s, %s, %s' % (T1, T1, T2))
        a('s_and_b32 %s, %s, 0xff' % (T1, T1))
        a('s_cmp_lg_u32 %s, 0' % T1)
        a('s_cbranch_scc1 %s' % L('got'))
        a('s_sleep 1')
        a('s_branch %s' % L('poll'))
        a.label(L('got'))
        a('s_xor_b32 %s, %s, 0x8000' % (T3, T3))
        a('v_add_u32 v6, %s, v6' % T3)
        for tb in range(4):
            for cb in range(4):
                a('s_mov_b32 %s, %d' % (T0, (tb * 4 + cb) * 1024))
                a('buffer_load_dwordx4 %s, v6, %s, %s offen sc1' % (vr(32 + (tb * 4 + cb) * 4, 4), sr(SRD_X, 4), T0))
        for tb in range(4):
            a('s_waitcnt vmcnt(%d)' % (12 - 4 * tb))
            for cb in range(4):
                for h in range(2):
                    d = ACC[tb][cb] + 2 * h; s_ = 32 + (tb * 4 + cb) * 4 + 2 * h
                    a('v_pk_add_f32 %s, %s, %s' % (vr(d, 2), vr(d, 2), vr(s_, 2)))
        a('s_lshl_b32 %s, %s, 7' % (T1, sr(S_J)))
        a('v_mul_u32_u24 v5, %d, v3' % RS)
        a('v_lshl_add_u32 v5, v4, 3, v5')
        a('v_add_u32 v5, %s, v5' % T1)
    else:
        a('s_mul_i32 %s, %s, %d' % (T0, sr(S_I), 64 * RS))
        a('s_mul_i32 %s, %s, %d' % (T1, sr(S_J), CB * 32))
        a('s_add_u32 %s, %s, %s' % (T0, T0, T1))
        a('v_mul_u32_u24 v5, %d, v3' % RS)
        a('v_lshl_add_u32 v5, v4, 3, v5')
        a('v_add_u32 v5, %s, v5' % T0)
    PC, VC = 32, 80
    if gelu:
        if c.epi == 'gelu_inloop':
          if c.stats == 'mfma':
              GR_OFF = 32768; SM_OFF = GR_OFF + 8192; CS_OFF = SM_OFF + 512
              a('s_lshl_b32 %s, %s, 2' % (T0, sr(S_I)))
              a('s_lshl_b32 %s, %s, 1' % (T1, sr(S_J)))
              a('s_add_u32 %s, %s, %s' % (T0, T0, T1))
              a('s_lshl_b32 %s, %s, 10' % (T1, T0))
              a('v_lshlrev_b32 v6, 8, v4')
              a('v_lshl_add_u32 v6, v3, 2, v6')
              a('v_add_u32 v6, %s, v6' % T1)
              for z in range(2):
                  for r in range(4):
                      a('ds_write_b32 v6, %s offset:%d' % (vr(GRA[z] + r), GR_OFF + z * 1024 + r * 64))
              a('s_lshl_b32 %s, %s, 6' % (T1, T0))
              a('v_lshlrev_b32 v6, 2, v3')
              a('v_add_u32 v6, %s, v6' % T1)
              for z in range(2):
                  a('ds_write_b32 v6, %s offset:%d' % (vr(SUMA[z]), SM_OFF + z * 64))
              a('s_lshl_b32 %s, %s, 1' % (T0, sr(S_J)))
              a('s_add_u32 %s, %s, %s' % (T0, T0, sr(S_I)))
              a('s_lshl_b32 %s, %s, 6' % (T0, T0))
              a('v_lshlrev_b32 v6, 4, v4')
              a('v_add_u32 v6, %s, v6' % T0)
              a('ds_write_b128 v6, %s offset:%d' % (vr(CSA, 4), CS_OFF))
              a('s_waitcnt lgkmcnt(0)')
              a('s_barrier')
              a('s_lshl_b32 %s, %s, 8' % (T0, sr(S_I)))
              a('v_lshlrev_b32 v6, 2, v3')
              a('v_add_u32 v6, %s, v6' % T0)
              a('s_lshl_b32 %s, %s, 12' % (T0, sr(S_I)))
              a('v_mul_u32_u24 v7, 68, v3')
              a('v_add_u32 v7, %s, v7' % T0)
              for tb in range(4):
                  a('ds_read_b32 %s, v6 offset:%d' % (vr(48 + 2 * tb), SM_OFF + tb * 64))
                  a('ds_read_b32 %s, v7 offset:%d' % (vr(49 + 2 * tb), GR_OFF + tb * 1024))
          else:
            SP_OFF = 32768; CSP_OFF = SP_OFF + 4096; CS_OFF = CSP_OFF + 1024
            for r in range(4):
                a('v_add_f32 %s, %s, %s' % (vr(DS + r), vr(DS + r), vr(DS + 4 + r)))
            a('v_add_f32 %s, %s, %s' % (vr(DS + 8), vr(DS + 8), vr(DS + 9)))
            a('s_lshl_b32 %s, %s, 6' % (T0, sr(S_I)))
            a('s_lshl_b32 %s, %s, 5' % (T1, sr(S_J)))
            a('s_add_u32 %s, %s, %s' % (T0, T0, T1))
            a('v_add_u32 v6, %s, v3' % T0)
            a('v_lshlrev_b32 v6, 3, v6')
            a('v_lshl_add_u32 v6, v4, 10, v6')
            a('ds_write_b64 v6, %s offset:%d' % (vr(DS, 2), SP_OFF))
            a('ds_write_b64 v6, %s offset:%d' % (vr(DS + 2, 2), SP_OFF + 128))
            a('s_lshl_b32 %s, %s, 1' % (T0, sr(S_J)))
            a('s_add_u32 %s, %s, %s' % (T0, T0, sr(S_I)))
            a('s_lshl_b32 %s, %s, 4' % (T0, T0))
            a('v_add_u32 v6, %s, v3' % T0)
            a('v_lshlrev_b32 v6, 2, v6')
            a('v_lshl_add_u32 v6, v4, 8, v6')
            a('ds_write_b32 v6, %s offset:%d' % (vr(DS + 8), CSP_OFF))
            a('s_waitcnt lgkmcnt(0)')
            a('s_barrier')
            a('s_lshl_b32 %s, %s, 6' % (T0, sr(S_I)))
            a('v_add_u32 v6, %s, v3' % T0)
            a('v_lshlrev_b32 v6, 3, v6')
            for tb in range(4):
                for g in range(4):
                    a('ds_read_b64 %s, v6 offset:%d' % (vr(96 + (tb * 4 + g) * 2, 2), SP_OFF + tb * 128 + g * 1024))
            a('s_lshl_b32 %s, %s, 7' % (T0, sr(S_J)))
            a('v_lshlrev_b32 v7, 4, v4')
            a('v_add_u32 v7, %s, v7' % T0)
            for cb in range(2):
                for g in range(4):
                    a('ds_read_b128 %s, v7 offset:%d' % (vr(200 + (cb * 4 + g) * 4, 4), CSP_OFF + cb * 64 + g * 256))
            a('s_waitcnt lgkmcnt(0)')
            for tb in range(4):
                b = 96 + tb * 8
                for h in range(2):
                    a('v_add_f32 %s, %s, %s' % (vr(b + h), vr(b + h), vr(b + 2 + h)))
                    a('v_add_f32 %s, %s, %s' % (vr(b + 4 + h), vr(b + 4 + h), vr(b + 6 + h)))
                    a('v_add_f32 %s, %s, %s' % (vr(48 + 2 * tb + h), vr(b + h), vr(b + 4 + h)))
            for cb in range(2):
                b = 200 + cb * 16
                for r in range(4):
                    a('v_add_f32 %s, %s, %s' % (vr(b + r), vr(b + r), vr(b + 4 + r)))
                    a('v_add_f32 %s, %s, %s' % (vr(b + 8 + r), vr(b + 8 + r), vr(b + 12 + r)))
                    a('v_add_f32 %s, %s, %s' % (vr(VC + 4 * cb + r), vr(b + r), vr(b + 8 + r)))
        else:
            SP_OFF = S * STAGE; CS_OFF = SP_OFF + 2048
            a('s_lshl_b32 %s, %s, 6' % (T0, sr(S_I)))
            a('v_add_u32 v6, %s, v3' % T0)
            a('v_lshlrev_b32 v6, 3, v6')
            a('v_add_u32 v6, 0x%x, v6' % SP_OFF)
            for tb in range(4):
                a('ds_read_b64 %s, v6 offset:%d' % (vr(48 + 2 * tb, 2), tb * 128))
                a('ds_read_b64 %s, v6 offset:%d' % (vr(56 + 2 * tb, 2), tb * 128 + 1024))
        if not (c.epi == 'gelu_inloop' and c.stats == 'dot'):
            a('s_mul_i32 %s, %s, %d' % (T0, sr(S_J), CB * 64))
            a('s_add_u32 %s, %s, 0x%x' % (T0, T0, CS_OFF))
            a('v_lshlrev_b32 v10, 4, v4')
            a('v_add_u32 v10, %s, v10' % T0)
            for cb in range(CB):
                a('ds_read_b128 %s, v10 offset:%d' % (vr(VC + 4 * cb, 4), cb * 64))
            a('s_waitcnt lgkmcnt(0)')
        chains = []
        for tb in range(4):
            ch = []
            e = ch.append
            sm, sq = 48 + 2 * tb, 49 + 2 * tb
            if c.epi == 'gelu_pre':
                e('v_add_f32 %s, %s, %s' % (vr(sm), vr(sm), vr(56 + 2 * tb)))
                e('v_add_f32 %s, %s, %s' % (vr(sq), vr(sq), vr(57 + 2 * tb)))
            NM, A0c, A1c, SI = PC + 4 * tb, PC + 4 * tb + 1, PC + 4 * tb + 2, PC + 4 * tb + 3
            e('v_mul_f32 %s, 0x%x, %s' % (vr(sm), f2u(1.0 / 1024), vr(sm)))
            e('v_mul_f32 %s, 0x%x, %s' % (vr(sq), f2u(1.0 / 1024), vr(sq)))
            e('v_fma_f32 %s, -%s, %s, %s' % (vr(sq), vr(sm), vr(sm), vr(sq)))
            e('v_max_f32 %s, 0, %s' % (vr(sq), vr(sq)))
            e('v_cvt_pk_bf16_f32 %s, %s, %s' % (vr(sm), vr(sm), vr(sq)))
            e('v_lshlrev_b32 %s, 16, %s' % (vr(NM), vr(sm)))
            e('v_and_b32 %s, %s, %s' % (vr(sq), sr(S_MASK), vr(sm)))
            e('v_xor_b32 %s, 0x80000000, %s' % (vr(NM), vr(NM)))
            e('v_add_f32 %s, 0x%x, %s' % (vr(sq), f2u(1e-5), vr(sq)))
            e('v_cvt_pk_bf16_f32 %s, %s, %s' % (vr(sq), vr(sq), vr(sq)))
            e('v_and_b32 %s, %s, %s' % (vr(sq), sr(S_MASK), vr(sq)))
            e('v_sqrt_f32 %s, %s' % (vr(sq), vr(sq)))
            e('v_cvt_pk_bf16_f32 %s, %s, %s' % (vr(sq), vr(sq), vr(sq)))
            e('v_and_b32 %s, %s, %s' % (vr(SI), sr(S_MASK), vr(sq)))
            e('v_rcp_f32 %s, %s' % (vr(sq), vr(SI)))
            e('v_mul_f32 %s, %s, %s' % (vr(A0c), sr(S_C0), vr(sq)))
            e('v_mul_f32 %s, %s, %s' % (vr(sm), vr(sq), vr(sq)))
            e('v_mul_f32 %s, %s, %s' % (vr(sm), vr(sm), vr(sq)))
            e('v_mul_f32 %s, %s, %s' % (vr(A1c), sr(S_C1), vr(sm)))
            chains.append(ch)
        for k in range(len(chains[0])):
            for ch in chains:
                a(ch[k])
    def finish_tiles(tiles):
        prs = []
        tmp = 16
        for (tb, cb) in tiles:
            for h in range(2):
                prs.append((ACC[tb][cb] + 2 * h, VC + 4 * cb + 2 * h, tb, tmp)); tmp += 2
        assert tmp <= 32
        if gelu:
            for (y, cs, tb, t) in prs:
                a('v_pk_fma_f32 %s, %s, %s, %s op_sel_hi:[1,0,1]' % (vr(y, 2), vr(cs, 2), vr(PC + 4 * tb, 2), vr(y, 2)))
            for (y, cs, tb, t) in prs:
                a('v_pk_mul_f32 %s, %s, %s' % (vr(t, 2), vr(y, 2), vr(y, 2)))
            for (y, cs, tb, t) in prs:
                a('v_pk_fma_f32 %s, %s, %s, %s op_sel:[0,0,1] op_sel_hi:[1,0,1]' % (vr(t, 2), vr(t, 2), vr(PC + 4 * tb + 2, 2), vr(PC + 4 * tb, 2)))
            for (y, cs, tb, t) in prs:
                a('v_pk_mul_f32 %s, %s, %s' % (vr(t, 2), vr(t, 2), vr(y, 2)))
            for (y, cs, tb, t) in prs:
                a('v_exp_f32 %s, %s' % (vr(t), vr(t)))
                a('v_exp_f32 %s, %s' % (vr(t + 1), vr(t + 1)))
            for (y, cs, tb, t) in prs:
                a('v_pk_fma_f32 %s, %s, %s, %s op_sel:[0,1,1] op_sel_hi:[1,1,1]' % (vr(t, 2), vr(t, 2), vr(PC + 4 * tb + 2, 2), vr(PC + 4 * tb + 2, 2)))
            for (y, cs, tb, t) in prs:
                a('v_rcp_f32 %s, %s' % (vr(t), vr(t)))
                a('v_rcp_f32 %s, %s' % (vr(t + 1), vr(t + 1)))
            for (y, cs, tb, t) in prs:
                a('v_pk_mul_f32 %s, %s, %s' % (vr(y, 2), vr(y, 2), vr(t, 2)))
        for (tb, cb) in tiles:
            A0 = ACC[tb][cb]
            a('v_cvt_pk_bf16_f32 %s, %s, %s' % (vr(A0), vr(A0), vr(A0 + 1)))
            a('v_cvt_pk_bf16_f32 %s, %s, %s' % (vr(A0 + 1), vr(A0 + 2), vr(A0 + 3)))
        for (tb, cb) in tiles:
            a('ds_write_b64 v5, %s offset:%d' % (vr(ACC[tb][cb], 2), tb * 16 * RS + cb * 32))
    if BN != 224:
        for tb in range(4):
            finish_tiles([(tb, cb) for cb in range(CB)])
        a('s_waitcnt lgkmcnt(0)')
        a('s_branch %s' % L('store'))
    else:
        for tb in range(4):
            tl = [(tb, cb) for cb in range(CB)]
            finish_tiles(tl[0:4]); finish_tiles(tl[4:7])
            a('s_waitcnt lgkmcnt(0)')
            a('s_barrier')
        a('s_endpgm')

    a.label(L('prod'))
    a('s_sub_u32 %s, %s, 4' % (sr(S_ROLE), sr(S_WAVE)))
    a('v_lshrrev_b32 v3, 3, v2')
    a('v_and_b32 v4, 7, v2')
    a('v_lshrrev_b32 v5, 4, v2')
    a('s_lshl_b32 %s, %s, 5' % (T0, sr(S_ROLE)))
    a('s_add_u32 %s, %s, %s' % (T0, T0, sr(S_ROW)))
    a('s_mov_b32 %s, %d' % (T1, c.Tstride))
    a('v_add_u32 v6, %s, v3' % T0)
    a('v_mul_lo_u32 v6, v6, %s' % T1)
    if c.split:
        a('s_mul_i32 %s, %s, %d' % (T0, sr(S_KH), KLEN * 2))
        a('v_add_u32 v6, %s, v6' % T0)
    a('v_xor_b32 v7, v4, v5')
    a('v_lshl_add_u32 v8, v7, 4, v6')
    a('v_xor_b32 v7, 4, v7')
    a('v_lshl_add_u32 v9, v7, 4, v6')
    a('v_add_u32 v9, %d, v9' % (8 * c.Tstride))
    a('v_add_u32 v10, %d, v8' % (16 * c.Tstride))
    a('v_add_u32 v11, %d, v9' % (16 * c.Tstride))
    a('s_lshl_b32 %s, %s, 1' % (T2, sr(S_COL)))
    if c.split:
        a('s_mul_i32 %s, %s, %d' % (T0, sr(S_KH), KLEN * c.Wstride))
        a('s_add_u32 %s, %s, %s' % (T2, T2, T0))
    a('s_mov_b32 %s, %d' % (T1, c.Wstride))
    if BN == 64:
        a('s_lshl_b32 %s, %s, 4' % (T0, sr(S_ROLE)))
        a('v_add_u32 v6, %s, v3' % T0)
        a('v_mul_lo_u32 v6, v6, %s' % T1)
        a('v_add_u32 v6, %s, v6' % T2)
        a('v_and_b32 v7, 1, v5')
        a('v_lshlrev_b32 v7, 1, v7')
        a('v_xor_b32 v7, v4, v7')
        a('v_lshl_add_u32 v12, v7, 4, v6')
        a('v_xor_b32 v7, 4, v7')
        a('v_lshl_add_u32 v13, v7, 4, v6')
        a('v_add_u32 v13, %d, v13' % (8 * c.Wstride))
    elif BN == 128:
        a('s_lshl_b32 %s, %s, 4' % (T0, sr(S_ROLE)))
        a('v_add_u32 v6, %s, v5' % T0)
        a('v_mul_lo_u32 v6, v6, %s' % T1)
        a('v_add_u32 v6, %s, v6' % T2)
        a('v_and_b32 v7, 15, v2')
        a('v_lshlrev_b32 v20, 1, v5')
        a('v_xor_b32 v7, v7, v20')
        a('v_lshl_add_u32 v12, v7, 4, v6')
        a('v_add_u32 v13, %d, v12' % (4 * c.Wstride))
        a('v_xor_b32 v7, 8, v7')
        a('v_lshl_add_u32 v14, v7, 4, v6')
        a('v_add_u32 v14, %d, v14' % (8 * c.Wstride))
        a('v_add_u32 v15, %d, v14' % (4 * c.Wstride))
    else:
        for q in range(NWQ):
            a('s_mul_i32 %s, %s, %d' % (T0, sr(S_ROLE), NWQ * 64))
            a('s_add_u32 %s, %s, %d' % (T0, T0, q * 64))
            a('v_add_u32 v6, %s, v2' % T0)
            a('v_mul_u32_u24 v7, 2341, v6')
            a('v_lshrrev_b32 v7, 16, v7')
            a('v_mul_u32_u24 v20, 28, v7')
            a('v_sub_u32 v6, v6, v20')
            a('v_bfe_u32 v20, v7, 3, 1')
            a('v_lshlrev_b32 v20, 1, v20')
            a('v_xor_b32 v6, v6, v20')
            a('v_mul_lo_u32 v7, v7, %s' % T1)
            a('v_lshl_add_u32 v6, v6, 4, v7')
            a('v_add_u32 %s, %s, v6' % (vr(12 + q), T2))
    a('s_lshl_b32 %s, %s, 12' % (sr(S_PT), sr(S_ROLE)))
    a('s_mul_i32 %s, %s, %d' % (sr(S_PW), sr(S_ROLE), NWQ * 1024))
    a('s_add_u32 %s, %s, 16384' % (sr(S_PW), sr(S_PW)))
    shift = [0]
    log = []
    def other(n):
        log.extend([('x',)] * n)
    def issue(st):
        slot = st % S
        if c.shift:
            d = [-1, 1, -2, 2][st // 4]
            if d != shift[0]:
                for q in range(4):
                    a('v_add_u32 %s, 0x%x, %s' % (vr(8 + q), ((d - shift[0]) * 2048) & 0xffffffff, vr(8 + q)))
                shift[0] = d
        a('s_mov_b32 %s, 0x%x' % (sr(S_OFT), st * 128))
        a('s_mov_b32 %s, 0x%x' % (sr(S_OFW), st * 64 * c.Wstride))
        for q in range(4):
            a('s_add_u32 m0, %s, 0x%x' % (sr(S_PT), slot * STAGE + q * 1024))
            a('s_nop 0')
            a('buffer_load_dwordx4 %s, %s, %s offen lds' % (vr(8 + q), sr(SRD_T, 4), sr(S_OFT)))
        for q in range(NWQ):
            a('s_add_u32 m0, %s, 0x%x' % (sr(S_PW), slot * STAGE + q * 1024))
            a('s_nop 0')
            a('buffer_load_dwordx4 %s, %s, %s offen lds' % (vr(12 + q), sr(SRD_W, 4), sr(S_OFW)))
        log.extend([('st', st)] * NDMA)
        if st == NS - 1:
            after_last_issue()
    def pre_stats_loads():
        a('v_subrev_u32 v28, 256, v0')
        a('v_and_b32 v5, 127, v28')
        a('v_lshrrev_b32 v6, 7, v28')
        a('v_add_u32 v7, %s, v5' % sr(S_ROW))
        a('v_lshlrev_b32 v7, 3, v7')
        a('v_lshl_add_u32 v7, v6, 17, v7')
        for m in range(8):
            a('s_mov_b32 %s, 0x%x' % (T0, m * S_ * 8))
            a('buffer_load_dwordx2 %s, v7, %s, %s offen' % (vr(32 + 2 * m, 2), sr(SRD_X, 4), T0))
        a('v_add_u32 v22, %s, v28' % sr(S_COL))
        a('v_lshlrev_b32 v22, 2, v22')
        a('v_cmp_gt_u32 vcc, 224, v28')
        a('v_mov_b32 v23, 0x%x' % OOB)
        a('s_nop 0')
        a('v_cndmask_b32 v22, v23, v22, vcc')
        for m in range(16):
            a('s_mov_b32 %s, 0x%x' % (T0, m * F_ * 4))
            a('buffer_load_dword %s, v22, %s, %s offen' % (vr(48 + m), sr(SRD_Y, 4), T0))
        other(24)
    def pre_stats_finish():
        SP_OFF = S * STAGE
        CS_OFF = SP_OFF + 2048
        for m in range(1, 8):
            a('v_add_f32 v32, v32, %s' % vr(32 + 2 * m))
            a('v_add_f32 v33, v33, %s' % vr(33 + 2 * m))
        a('v_and_b32 v5, 127, v28')
        a('v_lshrrev_b32 v6, 7, v28')
        a('v_lshlrev_b32 v5, 3, v5')
        a('v_lshl_add_u32 v5, v6, 10, v5')
        a('v_add_u32 v5, 0x%x, v5' % SP_OFF)
        a('ds_write_b64 v5, v[32:33]')
        for m in range(1, 16):
            a('v_add_f32 v48, v48, %s' % vr(48 + m))
        a('v_lshlrev_b32 v5, 2, v28')
        a('v_add_u32 v5, 0x%x, v5' % CS_OFF)
        a('ds_write_b32 v5, v48')
        a('s_waitcnt lgkmcnt(0)')
    def after_last_issue():
        if BN != 224:
            other(resid_loads())
        if c.epi == 'resid_stats':
            mk_srd(a, SRD_P, 'w3', D_ * F_ * 2)
            a('s_and_b32 %s, s2, 15' % T0)
            a('s_lshl_b32 %s, %s, 6' % (T0, T0))
            a('s_lshl_b32 %s, %s, 4' % (T1, sr(S_ROLE)))
            a('s_add_u32 %s, %s, %s' % (T0, T0, T1))
            a('v_lshrrev_b32 v3, 5, v2')
            a('v_add_u32 v3, %s, v3' % T0)
            a('v_mul_u32_u24 v3, 7168, v3')
            a('v_and_b32 v4, 31, v2')
            a('v_lshl_add_u32 v3, v4, 4, v3')
            a('s_lshr_b32 %s, s2, 4' % T1)
            a('s_mul_i32 %s, %s, 448' % (T1, T1))
            a('v_add_u32 v3, %s, v3' % T1)
            a('v_cmp_gt_u32 vcc, 28, v4')
            a('v_mov_b32 v5, 0x%x' % OOB)
            a('s_nop 0')
            a('v_cndmask_b32 v3, v5, v3, vcc')
            for m in range(8):
                a('s_mov_b32 %s, 0x%x' % (T0, m * 2 * 7168))
                a('buffer_load_dwordx4 %s, v3, %s, %s offen' % (vr(64 + 4 * m, 4), sr(SRD_P, 4), T0))
            other(8)
    if c.prof:
        a('s_memrealtime s[98:99]')
    nxt_issue = 0
    for _ in range(min(c.first, S)):
        issue(nxt_issue); nxt_issue += 1
    common_srds()
    if c.prof:
        a('s_memrealtime s[100:101]')
    pre_idx = None
    for t in range(NS):
        lastpos = max(i for i, e in enumerate(log) if e == ('st', t))
        n_after = len(log) - 1 - lastpos
        assert n_after <= 63, n_after
        a('s_waitcnt vmcnt(%d)' % n_after)
        a('s_barrier')
        if c.prof and c.trace and t < 64:
            a('s_memrealtime s[6:7]')
            a('s_waitcnt lgkmcnt(0)')
            a('v_writelane_b32 v254, s6, %d' % t)
        if c.prof and t == 0:
            a('s_memrealtime s[78:79]')
            a('s_memtime s[92:93]')
        if c.prof and t == NS // 2:
            a('s_memrealtime s[88:89]')
        k = 0
        while nxt_issue < NS and nxt_issue <= max(S - 1, t - 1 + S) and k < c.rate:
            issue(nxt_issue); nxt_issue += 1; k += 1
        if c.epi == 'gelu_pre' and t == 0:
            pre_stats_loads(); pre_idx = len(log) - 1
        if c.epi == 'gelu_pre' and t > 1 and pre_idx is not None and pre_idx >= 0 and lastpos > pre_idx:
            pre_stats_finish(); pre_idx = -1
    assert nxt_issue == NS
    a('s_barrier')
    if c.prof:
        a('s_memrealtime s[80:81]')
        a('s_memtime s[94:95]')
    if c.epi == 'gelu_inloop':
        a('s_barrier')
    if c.split:
        a('s_barrier')
        a('s_cmp_lg_u32 %s, 4' % sr(S_WAVE))
        a('s_cbranch_scc1 %s' % L('store'))
        a('s_lshr_b32 %s, s2, 2' % T1)
        a('s_lshl_b32 %s, %s, 2' % (T1, T1))
        a('s_and_b32 %s, s2, 3' % T2)
        a('s_lshl_b32 %s, %s, 3' % (T2, T2))
        a('s_lshl_b32 %s, 1, %s' % (T2, T2))
        a('v_mov_b32 v7, %s' % T1)
        a('v_mov_b32 v20, %s' % T2)
        a('v_cmp_eq_u32 vcc, 0, v2')
        a('v_mov_b32 v21, 0x%x' % OOB)
        a('s_nop 0')
        a('v_cndmask_b32 v7, v21, v7, vcc')
        a('buffer_atomic_or v20, v7, %s, 0 offen sc1' % sr(SRD_Y, 4))
    if c.epi == 'resid_stats':
        a('s_waitcnt vmcnt(0)')
        for r in range(8):
            a('v_mov_b32 %s, 0' % vr(24 + r))
        for m in range(8):
            for d in range(4):
                a('v_lshlrev_b32 v20, 16, %s' % vr(64 + 4 * m + d))
                a('v_and_b32 v21, %s, %s' % (sr(S_MASK), vr(64 + 4 * m + d)))
                a('v_add_f32 %s, %s, v20' % (vr(24 + 2 * d), vr(24 + 2 * d)))
                a('v_add_f32 %s, %s, v21' % (vr(25 + 2 * d), vr(25 + 2 * d)))
        a('v_lshrrev_b32 v3, 5, v2')
        a('s_lshl_b32 %s, %s, 1' % (T0, sr(S_ROLE)))
        a('v_add_u32 v3, %s, v3' % T0)
        a('v_mul_u32_u24 v3, 1024, v3')
        a('v_and_b32 v4, 31, v2')
        a('v_lshl_add_u32 v3, v4, 5, v3')
        a('ds_write_b128 v3, v[24:27] offset:32768')
        a('ds_write_b128 v3, v[28:31] offset:32784')
        a('s_waitcnt lgkmcnt(0)')
    if BN == 224:
        for q in range(4):
            a('s_mul_i32 %s, %s, 224' % (T0, sr(S_ROLE)))
            a('s_add_u32 %s, %s, %d' % (T0, T0, q * 64))
            a('v_add_u32 v6, %s, v2' % T0)
            a('v_mul_u32_u24 v7, 2341, v6')
            a('v_lshrrev_b32 v7, 16, v7')
            a('v_mul_u32_u24 v20, 28, v7')
            a('v_sub_u32 v6, v6, v20')
            a('v_and_b32 v20, 15, v7')
            a('v_lshrrev_b32 v7, 4, v7')
            a('v_lshl_add_u32 v7, v7, 6, v20')
            a('v_mul_u32_u24 v20, %d, v7' % RS)
            a('v_lshl_add_u32 %s, v6, 4, v20' % vr(24 + q))
            a('v_add_u32 v7, %s, v7' % sr(S_ROW))
            a('s_mov_b32 %s, %d' % (T1, c.Ostride))
            a('v_mul_lo_u32 v7, v7, %s' % T1)
            a('v_lshl_add_u32 v7, v6, 4, v7')
            a('s_lshl_b32 %s, %s, 1' % (T1, sr(S_COL)))
            a('v_add_u32 %s, %s, v7' % (vr(28 + q), T1))
            if q == 3:
                a('v_cmp_gt_u32 vcc, 32, v2')
                a('v_mov_b32 v20, 0x%x' % OOB)
                a('v_mov_b32 v21, 0')
                a('v_cndmask_b32 v31, v20, v31, vcc')
                a('v_cndmask_b32 v27, v21, v27, vcc')
        for tb in range(4):
            a('s_barrier')
            for q in range(4):
                a('ds_read_b128 %s, %s offset:%d' % (vr(32 + 16 * (tb & 1) + 4 * q, 4), vr(24 + q), tb * 16 * RS))
            a('s_mov_b32 %s, %d' % (T0, tb * 16 * c.Ostride))
            for q in range(4):
                a('s_waitcnt lgkmcnt(%d)' % (3 - q))
                a('buffer_store_dwordx4 %s, %s, %s, %s offen%s' % (vr(32 + 16 * (tb & 1) + 4 * q, 4), vr(28 + q), sr(SRD_O, 4), T0, ST))
        a('s_branch %s' % L('fin'))

    a.label(L('store'))
    if BN != 224:
        a('s_barrier')
        a('v_and_b32 v2, 63, v0')
        for q in range(2):
            rb_idx(q, 3, 4, 5)
            a('v_mul_u32_u24 v6, %d, v3' % RS)
            a('v_lshl_add_u32 v6, v4, 4, v6')
            a('ds_read_b128 %s, v6' % vr(32 + 4 * q, 4))
        if c.R is None:
            for q in range(2):
                a('s_waitcnt lgkmcnt(%d)' % (1 - q))
                a('buffer_store_dwordx4 %s, %s, %s, 0 offen%s' % (vr(32 + 4 * q, 4), vr(V_RBG + q), sr(SRD_O, 4), ST))
        else:
            a('s_waitcnt vmcnt(0) lgkmcnt(0)')
            for q in range(2):
                for d in range(4):
                    h = 32 + 4 * q + d; x = V_RES + 4 * q + d
                    a('v_lshlrev_b32 v8, 16, %s' % vr(h))
                    a('v_lshlrev_b32 v9, 16, %s' % vr(x))
                    a('v_and_b32 v10, %s, %s' % (sr(S_MASK), vr(h)))
                    a('v_and_b32 v11, %s, %s' % (sr(S_MASK), vr(x)))
                    a('v_add_f32 v8, v8, v9')
                    a('v_add_f32 v10, v10, v11')
                    a('v_cvt_pk_bf16_f32 %s, v8, v10' % vr(h))
                a('buffer_store_dwordx4 %s, %s, %s, 0 offen%s' % (vr(32 + 4 * q, 4), vr(V_RBG + q), sr(SRD_O, 4), ST))
            if c.epi == 'resid_stats':
                a('v_mov_b32 v21, 0x3f803f80')
                for q in range(2):
                    sv = 12 + 2 * q
                    a('v_mov_b32 %s, 0' % vr(sv))
                    a('v_mov_b32 %s, 0' % vr(sv + 1))
                    for d in range(4):
                        h = 32 + 4 * q + d
                        a('v_dot2c_f32_bf16 %s, %s, v21' % (vr(sv), vr(h)))
                        a('v_dot2c_f32_bf16 %s, %s, %s' % (vr(sv + 1), vr(h), vr(h)))
                a('s_nop 3')
                for dpp in ('quad_perm:[1,0,3,2]', 'quad_perm:[2,3,0,1]', 'row_half_mirror'):
                    for r in range(12, 16):
                        a('v_add_f32_dpp %s, %s, %s %s row_mask:0xf bank_mask:0xf' % (vr(r), vr(r), vr(r), dpp))
                    a('s_nop 0')
                for q in range(2):
                    rb_idx(q, 3, 4, 5)
                    a('v_add_u32 v3, %s, v3' % sr(S_ROW))
                    a('v_lshlrev_b32 v3, 3, v3')
                    a('s_lshl_b32 %s, %s, 14' % (T1, sr(S_CBK)))
                    a('v_add_u32 v3, %s, v3' % T1)
                    a('v_cmp_eq_u32 vcc, 0, v4')
                    a('v_mov_b32 v5, 0x%x' % OOB)
                    a('s_nop 0')
                    a('v_cndmask_b32 v3, v5, v3, vcc')
                    a('buffer_store_dwordx2 %s, v3, %s, 0 offen%s' % (vr(12 + 2 * q, 2), sr(SRD_X, 4), ST))
                a('s_cmp_lt_u32 %s, 4' % sr(S_WAVE))
                a('s_cbranch_scc1 %s' % L('fin'))
                a('v_subrev_u32 v3, 256, v0')
                a('v_lshlrev_b32 v4, 2, v3')
                for m in range(8):
                    a('ds_read_b32 %s, v4 offset:%d' % (vr(40 + m), 32768 + m * 1024))
                a('s_waitcnt lgkmcnt(0)')
                for m in range(1, 8):
                    a('v_add_f32 v40, v40, %s' % vr(40 + m))
                a('s_and_b32 %s, s2, 15' % T0)
                a('s_mul_i32 %s, %s, %d' % (T0, T0, F_ * 4))
                a('s_lshr_b32 %s, s2, 4' % T1)
                a('s_mul_i32 %s, %s, %d' % (T1, T1, 224 * 4))
                a('s_add_u32 %s, %s, %s' % (T0, T0, T1))
                a('v_add_u32 v4, %s, v4' % T0)
                a('v_cmp_gt_u32 vcc, 224, v3')
                a('v_mov_b32 v5, 0x%x' % OOB)
                a('s_nop 0')
                a('v_cndmask_b32 v4, v5, v4, vcc')
                a('buffer_store_dword v40, v4, %s, 0 offen%s' % (sr(SRD_Y, 4), ST))
    a.label(L('fin'))
    if c.prof:
        a('s_cmp_lg_u32 %s, 4' % sr(S_WAVE))
        a('s_cbranch_scc1 %s' % L('done'))
        a('s_waitcnt vmcnt(0)')
        a('s_memrealtime s[82:83]')
        a('s_memtime s[86:87]')
        a('s_getreg_b32 s90, hwreg(HW_REG_XCC_ID)')
        a('s_waitcnt lgkmcnt(0)')
        mk_srd(a, SRD_X, ('ws', WS_PROF + c.idx * 65536), 65536)
        for r in range(26):
            a('v_mov_b32 %s, s%d' % (vr(32 + r), 76 + r))
        a('s_lshl_b32 s3, s2, 8')
        a('v_mov_b32 v3, s3')
        a('v_cmp_eq_u32 vcc, 0, v2')
        a('v_mov_b32 v5, 0x%x' % OOB)
        a('s_nop 0')
        a('v_cndmask_b32 v3, v5, v3, vcc')
        if c.trace:
            mk_srd(a, SRD_Y, ('ws', WS_PROF + (8 + c.idx) * 65536), 65536)
            a('v_lshlrev_b32 v4, 2, v2')
            a('v_add_u32 v4, s3, v4')
            a('buffer_store_dword v254, v4, %s, 0 offen' % sr(SRD_Y, 4))
        for r in range(7):
            a('buffer_store_dwordx4 %s, v3, %s, 0 offen offset:%d' % (vr(32 + 4 * r, 4), sr(SRD_X, 4), 16 * r))
    a.label(L('done'))
    a('s_endpgm')
    a.label(name + '_end')
    return S * STAGE + (4096 if c.epi == 'gelu_pre' else 0)

def descriptor(name):
    return '''.amdhsa_kernel %s
  .amdhsa_next_free_vgpr 256
  .amdhsa_next_free_sgpr 102
  .amdhsa_accum_offset 256
  .amdhsa_group_segment_fixed_size 0
  .amdhsa_kernarg_size 64
  .amdhsa_user_sgpr_count 2
  .amdhsa_user_sgpr_kernarg_segment_ptr 1
  .amdhsa_system_sgpr_workgroup_id_x 1
.end_amdhsa_kernel
''' % name

def mk(name, **kw):
    c = Cfg()
    c.name = name
    c.prof = False; c.trace = False; c.shift = False; c.R = None; c.stflag = ' sc1'
    c.pf_at = []; c.grp0 = []; c.code0 = []; c.stats = 'mfma'; c.first = 2; c.rate = 2; c.split = False
    for k, v in kw.items():
        setattr(c, k, v)
    return c

def configs(opts, split4):
    base = 'standalone__mixer_s_mlp__prompt'
    k4 = dict(BN=128, S=4, map='split', split=True) if split4 else dict(BN=64, S=6, map='4x8')
    return [
        mk('k1_kernel', BN=64, K=1024, S=6, T='x', Tbytes=NB, Tstride=2048, W='w1', Wbytes=D_ * D_ * 2, Wstride=2048,
           O=('ws', WS_H), Obytes=NB, Ostride=2048, epi='gelu_inloop', map='4x8', **opts),
        mk('k2_kernel', BN=64, K=1024, S=6, T=('ws', WS_H), Tbytes=NB, Tstride=2048, W='w2', Wbytes=D_ * D_ * 2, Wstride=2048,
           O=('ws', WS_X1), Obytes=NB, Ostride=2048, epi='resid_stats', map='4x8', R='x', shift=True, **opts),
        mk('k3_kernel', BN=224, K=1024, S=3, T=('ws', WS_X1), Tbytes=NB, Tstride=2048, W='w3', Wbytes=D_ * F_ * 2, Wstride=7168,
           O=('ws', WS_G), Obytes=S_ * F_ * 2, Ostride=7168, epi='gelu_pre', map='8x4', **opts),
        mk(base + '_kernel', K=3584, T=('ws', WS_G), Tbytes=S_ * F_ * 2, Tstride=7168, W='w4', Wbytes=F_ * D_ * 2, Wstride=2048,
           O='out', Obytes=NB, Ostride=2048, epi='resid', R=('ws', WS_X1), **k4, **opts),
    ]

own_cols = lambda buf: (buf, D_ * D_ * 2, 2048, 3, 7, (0, 0, 0), 32, 32, (0, 1, 1024))
ITEMS = {
    'w2': own_cols('w2'),
    'w3': ('w3', D_ * F_ * 2, 7168, 6, 55, (0, 7, 128), 4, 4, (0, 0, 0)),
    'w4': ('w4', F_ * D_ * 2, 2048, 4, 15, (0, 7, 448), 14, 16, (0, 0, 0)),
}

def main():
    out = sys.argv[1]
    opts = {}
    for o in sys.argv[2:]:
        k, v = o.split('=', 1)
        opts[k] = eval(v)
    only = opts.pop('only', None)
    split4 = opts.pop('split4', True)
    pfat = opts.pop('pfat', {0: [(10, ['w2']), (13, ['w3'])], 2: [(2, ['w4:0']), (5, ['w4:1']), (8, ['w4:2']), (11, ['w4:3'])]})
    per = opts.pop('per', {})
    codepf = opts.pop('codepf', True)
    cfgs = configs(opts, split4)
    for ki, lst in pfat.items():
        def conv(n):
            if n[0] == 'g': return ('grp', int(n[1:]))
            if n[0] == 'c': return ('code', cfgs[int(n[1])].name, 2)
            return ('onlywave', int(n[3]), ITEMS[n[:2]]) if len(n) > 2 else ITEMS[n]
        cfgs[ki].pf_at = [(it, [conv(n) for n in names]) for it, names in lst]
    if codepf:
        cfgs[0].code0 = [(cfgs[0].name, 2, False)]
    for ki, d in per.items():
        for k, v in d.items(): setattr(cfgs[ki], k, v)
    if only is not None:
        cfgs = [cfgs[i] for i in only]
    a = Asm()
    ldss = []
    for i, c in enumerate(cfgs):
        c.idx = i
        ldss.append(gen_kernel(a, c))
    hdr = open('standalone__mixer_s_mlp__prompt.s.ref').read().split('; Override')[0]
    s = hdr
    for c, lds in zip(cfgs, ldss):
        s += '; @launch kernel=%s grid=(256,1,1) block=(512,1,1) lds=%d\n' % (c.name, lds)
    s += '.amdgcn_target "amdgcn-amd-amdhsa--gfx950"\n.text\n'
    s += a.text()
    s += '.section .rodata,"a"\n.p2align 6\n'
    for c in cfgs:
        s += descriptor(c.name) + '.p2align 6\n'
    open(out, 'w').write(s)

if __name__ == '__main__':
    main()
```

```python
import sys, struct

S_, D_, F_ = 2048, 1024, 3584
NB = S_ * D_ * 2
HS, GS = 2176, 7296
WS_H, WS_X1, WS_G = 0, 5 << 20, 10 << 20
WS_PART2 = 26 << 20
WS_CS3 = (26 << 20) + (256 << 10)
WS_PROF = 28 << 20
WS_XCH = 32 << 20
C0 = -2.0 * 0.7978845608028654 * 1.4426950408889634
C1 = C0 * 0.044715
OOB = 0x7ffffff0

def f2u(f):
    return struct.unpack('<I', struct.pack('<f', f))[0]

class Asm:
    def __init__(self):
        self.L = []
    def __call__(self, s):
        self.L.append('    ' + s)
    def label(self, s):
        self.L.append(s + ':')
    def text(self):
        return '\n'.join(self.L) + '\n'

def vr(b, n=1):
    return 'v%d' % b if n == 1 else 'v[%d:%d]' % (b, b + n - 1)
def sr(b, n=1):
    return 's%d' % b if n == 1 else 's[%d:%d]' % (b, b + n - 1)

SRD_T, SRD_W, SRD_R, SRD_O, SRD_X, SRD_Y, SRD_P = 8, 12, 16, 20, 24, 28, 72
S_WAVE, S_ROW, S_COL, S_ROLE, S_I, S_J = 32, 33, 34, 35, 36, 37
S_OFT, S_OFW, S_CNT, S_SLOT, S_PT, S_PW = 38, 39, 40, 41, 42, 43
S_T0, S_T1, S_T2, S_T3 = 44, 45, 46, 47
S_RB, S_CBK = 48, 49
S_C0, S_C1, S_MASK = 50, 51, 52
S_XCD, S_IDX, S_KH = 53, 54, 55
P = {'x': 56, 'w1': 58, 'w2': 60, 'w3': 62, 'w4': 64, 'out': 66, 'dbg': 68, 'ws': 70}

class Cfg:
    pass

def ptr(nm):
    if isinstance(nm, tuple):
        return P['ws'], P['ws'] + 1, nm[1]
    return P[nm], P[nm] + 1, 0

def mk_srd(a, dst, src, nbytes):
    lo, hi, add = ptr(src)
    if add:
        a('s_add_u32 %s, %s, 0x%x' % (sr(dst), sr(lo), add))
        a('s_addc_u32 %s, %s, 0' % (sr(dst + 1), sr(hi)))
    else:
        a('s_mov_b32 %s, %s' % (sr(dst), sr(lo)))
        a('s_mov_b32 %s, %s' % (sr(dst + 1), sr(hi)))
    a('s_mov_b32 %s, 0x%x' % (sr(dst + 2), nbytes))
    a('s_mov_b32 %s, 0x20000' % sr(dst + 3))

def gen_kernel(a, c):
    name = c.name
    BN, CB, S = c.BN, c.BN // 32, c.S
    KLEN = c.K // 2 if c.split else c.K
    NS = KLEN // 64
    WROW = BN * 2
    STAGE = 16384 + 64 * WROW
    NWQ = (64 * WROW // 1024) // 4
    NDMA = 4 + NWQ
    RS = BN * 2 + 16
    L = lambda s: '%s_%s' % (name, s)
    gelu = c.epi in ('gelu_inloop', 'gelu_pre')
    ST = c.stflag
    X, I = sr(S_XCD), sr(S_IDX)
    T0, T1, T2, T3 = sr(S_T0), sr(S_T1), sr(S_T2), sr(S_T3)

    a.L.append('.globl %s' % name)
    a.L.append('.p2align 8')
    a.L.append('.type %s,@function' % name)
    a.label(name)
    a('s_cmp_ge_u32 s2, 256')
    a('s_cbranch_scc1 %s' % L('done'))
    a('s_load_dwordx16 s[56:71], s[0:1], 0')
    if c.prof:
        a('s_memrealtime s[76:77]')
        a('s_memtime s[84:85]')
    a('s_and_b32 %s, s2, 7' % X)
    a('s_lshr_b32 %s, s2, 3' % I)
    def field(dst, src, shr, msk, shl):
        a('s_lshr_b32 %s, %s, %d' % (dst, src, shr))
        a('s_and_b32 %s, %s, %d' % (dst, dst, msk))
        if shl: a('s_lshl_b32 %s, %s, %d' % (dst, dst, shl))
    if c.map == '4x8':
        field(T1, X, 1, 3, 2); field(T2, I, 3, 3, 0); a('s_add_u32 %s, %s, %s' % (sr(S_RB), T1, T2))
        if c.rot:
            a('s_add_u32 %s, %s, %d' % (T3, I, c.rot))
            field(T1, X, 0, 1, 3); field(T2, T3, 0, 7, 0); a('s_add_u32 %s, %s, %s' % (sr(S_CBK), T1, T2))
        else:
            field(T1, X, 0, 1, 3); field(T2, I, 0, 7, 0); a('s_add_u32 %s, %s, %s' % (sr(S_CBK), T1, T2))
    elif c.map == '8x4':
        field(T1, X, 2, 1, 3); field(T2, I, 2, 7, 0); a('s_add_u32 %s, %s, %s' % (sr(S_RB), T1, T2))
        field(T1, X, 0, 3, 2); field(T2, I, 0, 3, 0); a('s_add_u32 %s, %s, %s' % (sr(S_CBK), T1, T2))
    elif c.map == 'split':
        field(sr(S_KH), X, 0, 1, 0)
        field(T1, X, 1, 1, 3); field(T2, I, 2, 7, 0); a('s_add_u32 %s, %s, %s' % (sr(S_RB), T1, T2))
        field(T1, X, 2, 1, 2); field(T2, I, 0, 3, 0); a('s_add_u32 %s, %s, %s' % (sr(S_CBK), T1, T2))
    a('s_lshl_b32 %s, %s, 7' % (sr(S_ROW), sr(S_RB)))
    a('s_mul_i32 %s, %s, %d' % (sr(S_COL), sr(S_CBK), BN))
    a('v_lshrrev_b32 v1, 6, v0')
    a('v_and_b32 v2, 63, v0')
    a('s_nop 0')
    a('v_readfirstlane_b32 %s, v1' % sr(S_WAVE))
    a('s_mov_b32 %s, 0x%x' % (sr(S_C0), f2u(C0)))
    a('s_mov_b32 %s, 0x%x' % (sr(S_C1), f2u(C1)))
    a('s_mov_b32 %s, 0xffff0000' % sr(S_MASK))
    a('s_waitcnt lgkmcnt(0)')
    if c.prof:
        a('s_memrealtime s[96:97]')
    mk_srd(a, SRD_T, c.T, c.Tbytes)
    mk_srd(a, SRD_W, c.W, c.Wbytes)
    a('s_cmp_ge_u32 %s, 4' % sr(S_WAVE))
    a('s_cbranch_scc1 %s' % L('prod'))

    def common_srds():
        mk_srd(a, SRD_O, c.O, c.Obytes)
        if c.R is not None:
            mk_srd(a, SRD_R, c.R, S_ * c.Rstride)
        if c.epi in ('resid_stats', 'gelu_pre'):
            mk_srd(a, SRD_X, ('ws', WS_PART2), 16 * S_ * 8)
            mk_srd(a, SRD_Y, ('ws', WS_CS3), 16 * F_ * 4)
        if c.split:
            mk_srd(a, SRD_X, ('ws', WS_XCH), 256 * 32768)
            mk_srd(a, SRD_Y, 'dbg', 256)

    V_RES, V_RBG, V_RBR = 240, 248, 252
    RB_SH = 3 if BN == 64 else 4
    def rb_idx(q, vrow, vch, vtmp):
        a('s_lshl_b32 %s, %s, 7' % (T0, sr(S_WAVE)))
        a('s_add_u32 %s, %s, %d' % (T0, T0, q * 64))
        a('v_add_u32 %s, %s, v2' % (vr(vtmp), T0))
        a('v_lshrrev_b32 %s, %d, %s' % (vr(vrow), RB_SH, vr(vtmp)))
        a('v_and_b32 %s, %d, %s' % (vr(vch), (1 << RB_SH) - 1, vr(vtmp)))
    def resid_loads():
        n = 0
        for q in range(2):
            rb_idx(q, 3, 4, 5)
            a('v_add_u32 v3, %s, v3' % sr(S_ROW))
            if c.split:
                a('s_lshl_b32 %s, %s, 6' % (T1, sr(S_KH)))
                a('v_add_u32 v3, %s, v3' % T1)
            a('v_lshlrev_b32 v4, 4, v4')
            a('s_lshl_b32 %s, %s, 1' % (T1, sr(S_COL)))
            a('v_add_u32 v4, %s, v4' % T1)
            a('v_mul_u32_u24 v5, %d, v3' % c.Ostride)
            a('v_add_u32 %s, v5, v4' % vr(V_RBG + q))
            if c.R is not None:
                a('v_mul_u32_u24 v5, %d, v3' % c.Rstride)
                a('v_add_u32 %s, v5, v4' % vr(V_RBR + q))
                a('buffer_load_dwordx4 %s, %s, %s, 0 offen' % (vr(V_RES + 4 * q, 4), vr(V_RBR + q), sr(SRD_R, 4)))
                n += 1
        return n

    def pf(item, onlywave=None):
        buf, nbytes, stride, sh, maxl, row_xcd, row_idx, rows_cu, col_xcd = item
        mk_srd(a, SRD_P, buf, nbytes)
        rpi = 64 >> sh
        per_wave = rows_cu // 4
        n = max(1, per_wave // rpi)
        def term(dst, spec):
            shr, msk, mul = spec
            a('s_lshr_b32 %s, %s, %d' % (dst, X, shr))
            a('s_and_b32 %s, %s, %d' % (dst, dst, msk))
            a('s_mul_i32 %s, %s, %d' % (dst, dst, mul))
        term(T0, row_xcd)
        a('s_mul_i32 %s, %s, %d' % (T1, I, row_idx))
        a('s_add_u32 %s, %s, %s' % (T0, T0, T1))
        a('s_mul_i32 %s, %s, %d' % (T1, sr(S_WAVE), per_wave))
        a('s_add_u32 %s, %s, %s' % (T0, T0, T1))
        term(T1, col_xcd)
        a('v_lshrrev_b32 v6, %d, v2' % sh)
        a('v_add_u32 v6, %s, v6' % T0)
        a('s_mov_b32 %s, %d' % (T2, stride))
        a('v_mul_lo_u32 v6, v6, %s' % T2)
        a('v_and_b32 v7, %d, v2' % ((1 << sh) - 1))
        if maxl < (1 << sh) - 1:
            a('v_min_u32 v7, %d, v7' % maxl)
        a('v_lshl_add_u32 v6, v7, 7, v6')
        a('v_add_u32 v6, %s, v6' % T1)
        for q in range(n):
            a('s_mov_b32 %s, %d' % (T2, q * rpi * stride))
            a('buffer_load_dword v250, v6, %s, %s offen' % (sr(SRD_P, 4), T2))

    cp_n = [0]
    def code_pf(target, nchunks, forward, skip=None):
        cp_n[0] += 1
        here = L('cpf%d' % cp_n[0])
        done = skip or (here + '_d')
        a('s_cmp_lg_u32 %s, 3' % sr(S_WAVE))
        a('s_cbranch_scc1 %s' % done)
        a('s_getpc_b64 s[4:5]')
        a.label(here)
        if forward:
            a('s_add_u32 s4, s4, %s-%s' % (target, here))
            a('s_addc_u32 s5, s5, 0')
        else:
            a('s_sub_u32 s4, s4, %s-%s' % (here, target))
            a('s_subb_u32 s5, s5, 0')
        a('s_and_b32 %s, %s, %d' % (T0, I, nchunks - 1))
        a('s_lshl_b32 %s, %s, 13' % (T0, T0))
        a('v_lshlrev_b32 v6, 7, v2')
        a('v_add_u32 v6, %s, v6' % T0)
        a('v_min_u32 v6, %s_end-%s-4, v6' % (target, target))
        a('global_load_dword v250, v6, s[4:5]')
        if skip is None:
            a.label(done)

    for (target, nch, fwd) in c.code0:
        code_pf(target, nch, fwd)
    a('s_lshr_b32 %s, %s, 1' % (sr(S_I), sr(S_WAVE)))
    a('s_and_b32 %s, %s, 1' % (sr(S_J), sr(S_WAVE)))
    VT = [[None] * 4, [None] * 4]
    VW = [[None] * CB, [None] * CB]
    nxt = 32
    for st in range(2):
        for tb in range(4):
            VT[st][tb] = nxt; nxt += 4
        for cb in range(CB):
            VW[st][cb] = nxt; nxt += 4
    assert nxt <= 128
    ACC = [[None] * CB for _ in range(4)]
    nxt = 128
    for tb in range(4):
        for cb in range(CB):
            ACC[tb][cb] = nxt; nxt += 4
    assert nxt <= 240
    NWA = 4 if BN == 128 else 2
    bT = [8, 9]; aT = [10, 11]
    bW = [12, 13, 14, 15][:NWA]; aW = [16, 17, 18, 19][:NWA]
    a('v_and_b32 v3, 15, v2')
    a('v_lshrrev_b32 v4, 4, v2')
    a('s_lshl_b32 %s, %s, 13' % (T0, sr(S_I)))
    a('v_lshlrev_b32 v5, 7, v3')
    a('v_lshrrev_b32 v6, 1, v3')
    a('v_xor_b32 v6, v6, v4')
    a('v_lshlrev_b32 v6, 4, v6')
    a('v_add3_u32 %s, v5, v6, %s' % (vr(bT[0]), T0))
    a('v_xor_b32 %s, 64, %s' % (vr(bT[1]), vr(bT[0])))
    a('v_lshrrev_b32 v5, 2, v3')
    a('v_lshl_add_u32 v6, v4, 3, v5')
    a('v_and_b32 v7, 3, v2')
    if BN == 64:
        a('v_lshlrev_b32 v6, 7, v6')
        a('v_lshl_add_u32 v6, v7, 3, v6')
        a('v_lshrrev_b32 v5, 1, v5')
        a('v_and_b32 v7, 1, v4')
        a('v_lshl_or_b32 v5, v7, 1, v5')
        a('s_lshl_b32 %s, %s, 1' % (T0, sr(S_J)))
        a('v_xor_b32 v5, %s, v5' % T0)
        a('v_lshl_add_u32 v6, v5, 5, v6')
        a('v_add_u32 %s, 16384, v6' % vr(bW[0]))
        a('v_xor_b32 %s, 32, %s' % (vr(bW[1]), vr(bW[0])))
        woff = lambda s, cb, h: s * 4096 + h * 512
        wreg = lambda cb: cb
    elif BN == 128:
        a('v_lshlrev_b32 v6, 8, v6')
        a('v_lshl_add_u32 v6, v7, 3, v6')
        a('v_and_b32 v7, 1, v4')
        a('v_lshl_or_b32 v5, v7, 2, v5')
        a('s_lshl_b32 %s, %s, 2' % (T0, sr(S_J)))
        a('v_xor_b32 v5, %s, v5' % T0)
        a('v_lshl_add_u32 v6, v5, 5, v6')
        a('v_add_u32 %s, 16384, v6' % vr(bW[0]))
        for cb in range(1, 4):
            a('v_xor_b32 %s, %d, %s' % (vr(bW[cb]), 32 * cb, vr(bW[0])))
        woff = lambda s, cb, h: s * 8192 + h * 1024
        wreg = lambda cb: cb
    else:
        a('v_mul_u32_u24 v6, 448, v6')
        a('v_lshl_add_u32 v6, v7, 3, v6')
        a('s_mul_i32 %s, %s, %d' % (T0, sr(S_J), 7 * 32))
        a('s_add_u32 %s, %s, 16384' % (T0, T0))
        a('v_add_u32 v6, %s, v6' % T0)
        a('v_and_b32 v7, 1, v4')
        a('v_lshlrev_b32 v7, 5, v7')
        a('v_add_u32 v5, v6, v7')
        a('v_sub_u32 v6, v6, v7')
        a('s_cmp_eq_u32 %s, 0' % sr(S_J))
        a('s_cselect_b64 vcc, -1, 0')
        a('v_cndmask_b32 %s, v6, v5, vcc' % vr(bW[0]))
        a('v_cndmask_b32 %s, v5, v6, vcc' % vr(bW[1]))
        woff = lambda s, cb, h: cb * 32 + s * 32 * 448 + h * 4 * 448
        wreg = lambda cb: cb & 1
    for tb in range(4):
        for cb in range(CB):
            for r in range(4):
                a('v_mov_b32 %s, 0' % vr(ACC[tb][cb] + r))
    SUMA, GRA, CSA, ONES = [176, 180], [184, 188], 192, 196
    if c.epi == 'gelu_inloop':
        for r in range(176, 196):
            a('v_mov_b32 %s, 0' % vr(r))
        for r in range(4):
            a('v_mov_b32 %s, 0x3f803f80' % vr(ONES + r))
    common_srds()
    if BN != 224:
        resid_loads()

    def grp_setup():
        a('s_lshr_b32 %s, %s, 1' % (T0, X))
        a('s_lshl_b32 %s, %s, 9' % (T0, T0))
        a('s_lshl_b32 %s, %s, 4' % (T1, I))
        a('s_add_u32 %s, %s, %s' % (T0, T0, T1))
        a('v_and_b32 v5, 15, v2')
        a('v_add_u32 v5, %s, v5' % T0)
        a('v_lshlrev_b32 v5, 11, v5')
        a('v_lshrrev_b32 v6, 4, v2')
        a('v_lshl_add_u32 v20, v6, 7, v5')
        a('v_and_b32 v5, 7, v2')
        a('v_lshlrev_b32 v5, 7, v5')
        a('v_bfe_u32 v7, v2, 3, 1')
        a('s_lshl_b32 %s, %s, 1' % (T0, I))
        a('v_add_u32 v7, %s, v7' % T0)
        a('v_lshl_add_u32 v7, v6, 6, v7')
        a('v_lshlrev_b32 v7, 11, v7')
        a('s_and_b32 %s, %s, 1' % (T0, X))
        a('s_lshl_b32 %s, %s, 10' % (T0, T0))
        a('v_add3_u32 v21, v5, v7, %s' % T0)
    def grp_pf(g, skip):
        a('s_cmp_gt_u32 %s, 1' % sr(S_WAVE))
        a('s_cbranch_scc1 %s' % skip)
        a('s_cmp_eq_u32 %s, 1' % sr(S_WAVE))
        lab = L('gw%d_%s' % (g, skip[-6:].replace('_', 'x')))
        a('s_cbranch_scc1 %s' % lab)
        a('s_mov_b32 %s, %d' % (T0, g * 512))
        a('buffer_load_dword v250, v20, %s, %s offen' % (sr(SRD_T, 4), T0))
        a('s_branch %s' % skip)
        a.label(lab)
        a('s_mov_b32 %s, %d' % (T0, g * 4 * 64 * 2048))
        a('buffer_load_dword v250, v21, %s, %s offen' % (sr(SRD_W, 4), T0))
    if c.grp0:
        grp_setup()
        for g in c.grp0:
            grp_pf(g, L('g0s%d' % g))
            a.label(L('g0s%d' % g))

    def reads(st, s):
        r = []
        order = [('T', 0), ('W', 0), ('T', 1), ('T', 2), ('T', 3)] + [('W', cb) for cb in range(1, CB)]
        for kind, i in order:
            if kind == 'T':
                r.append('ds_read_b128 %s, %s offset:%d' % (vr(VT[st][i], 4), vr(aT[s]), i * 2048))
            else:
                r.append('ds_read_b64_tr_b16 %s, %s offset:%d' % (vr(VW[st][i], 2), vr(aW[wreg(i)]), woff(s, i, 0)))
                r.append('ds_read_b64_tr_b16 %s, %s offset:%d' % (vr(VW[st][i] + 2, 2), vr(aW[wreg(i)]), woff(s, i, 1)))
        return r
    def mf(d, x, y):
        return 'v_mfma_f32_16x16x32_bf16 %s, %s, %s, %s' % (vr(d, 4), vr(x, 4), vr(y, 4), vr(d, 4))
    def mfmas(st, j=None, i=None):
        m = []
        for cb in range(CB):
            for tb in range(4):
                m.append(mf(ACC[tb][cb], VW[st][cb], VT[st][tb]))
        if c.epi == 'gelu_inloop' and c.stats == 'mfma':
            for z in range(2):
                tb = 2 * j + z
                m.append(mf(SUMA[z], ONES, VT[st][tb]))
                m.append(mf(GRA[z], VT[st][tb], VT[st][tb]))
            m.append(mf(CSA, VW[st][i], ONES))
        return m
    DS = 176
    def dots(st, j, i):
        if not (c.epi == 'gelu_inloop' and c.stats == 'dot'):
            return []
        e = []
        for d in range(4):
            for z in range(2):
                tb = 2 * j + z
                ch = (d & 1) * 4
                e.append('v_dot2c_f32_bf16 %s, %s, %s' % (vr(DS + ch + 2 * z), vr(VT[st][tb] + d), vr(ONES)))
                e.append('v_dot2c_f32_bf16 %s, %s, %s' % (vr(DS + ch + 2 * z + 1), vr(VT[st][tb] + d), vr(VT[st][tb] + d)))
            e.append('v_dot2c_f32_bf16 %s, %s, %s' % (vr(DS + 8 + (d & 1)), vr(VW[st][i] + d), vr(ONES)))
        return e
    def interleave(ms, rs, es=()):
        rs = list(rs); es = list(es)
        n = len(ms)
        for k, m in enumerate(ms):
            a(m)
            if rs:
                a(rs.pop(0))
            q = -(-len(es) // (n - k))
            for _ in range(q):
                a(es.pop(0))
        for r_ in rs: a(r_)
    def setaddr(regs):
        for ar, br in regs:
            a('v_add_u32 %s, %s, %s' % (vr(ar), sr(S_SLOT), vr(br)))
    WA = list(zip(aW, bW))

    ool = []
    def mainloop(tag, j, i):
        a('s_mov_b32 %s, 0' % sr(S_SLOT))
        a('s_mov_b32 %s, %d' % (sr(S_CNT), NS))
        a('s_barrier')
        setaddr([(aT[0], bT[0]), (aT[1], bT[1])] + WA)
        for r_ in reads(0, 0): a(r_)
        a.label(L('loop' + tag))
        for n_, (it, items) in enumerate(c.pf_at):
            lab = L('pfat%d%s' % (n_, tag)); ret = lab + '_r'
            a('s_cmp_eq_u32 %s, %d' % (sr(S_CNT), NS - it))
            a('s_cbranch_scc1 %s' % lab)
            a.label(ret)
            ool.append((lab, items, ret))
        a('s_waitcnt lgkmcnt(0)')
        interleave(mfmas(0, j, i), reads(1, 1), dots(0, j, i))
        a('s_add_u32 %s, %s, %d' % (sr(S_SLOT), sr(S_SLOT), STAGE))
        a('s_cmp_eq_u32 %s, %d' % (sr(S_SLOT), S * STAGE))
        a('s_cselect_b32 %s, 0, %s' % (sr(S_SLOT), sr(S_SLOT)))
        setaddr([(aT[0], bT[0])] + WA)
        a('s_waitcnt lgkmcnt(0)')
        a('s_barrier')
        interleave(mfmas(1, j, i), reads(0, 0), dots(1, j, i))
        setaddr([(aT[1], bT[1])])
        a('s_sub_u32 %s, %s, 1' % (sr(S_CNT), sr(S_CNT)))
        a('s_cmp_lg_u32 %s, 0' % sr(S_CNT))
        a('s_cbranch_scc1 %s' % L('loop' + tag))

    if c.epi == 'gelu_inloop':
        for w in range(4):
            if w < 3:
                a('s_cmp_lg_u32 %s, %d' % (sr(S_WAVE), w))
                a('s_cbranch_scc1 %s' % L('ver%d' % (w + 1)))
            mainloop('_%d' % w, w & 1, w >> 1)
            a('s_branch %s' % L('after'))
            if w < 3:
                a.label(L('ver%d' % (w + 1)))
    else:
        mainloop('', 0, 0)
        a('s_branch %s' % L('after'))
    for lab, items, ret in ool:
        a.label(lab)
        for item in items:
            if item[0] == 'grp':
                grp_pf(item[1], ret)
                continue
            if item[0] == 'bad':
                _, buf, nbytes, k0, wv = item
                a('s_cmp_lg_u32 %s, %d' % (sr(S_WAVE), wv))
                a('s_cbranch_scc1 %s' % ret)
                mk_srd(a, SRD_P, buf, nbytes)
                a('s_lshl_b32 %s, %s, 6' % (T0, I))
                a('s_add_u32 %s, %s, %d' % (T0, T0, k0))
                a('v_add_u32 v6, %s, v2' % T0)
                a('v_lshlrev_b32 v6, 11, v6')
                a('s_and_b32 %s, %s, 1' % (T0, X))
                a('s_lshl_b32 %s, %s, 10' % (T0, T0))
                a('s_add_u32 %s, %s, 384' % (T0, T0))
                a('buffer_load_dword v250, v6, %s, %s offen' % (sr(SRD_P, 4), T0))
                continue
            if item[0] == 'code':
                code_pf(item[1], item[2], True, ret)
                continue
            if item[0] == 'onlywave':
                a('s_cmp_lg_u32 %s, %d' % (sr(S_WAVE), item[1]))
                a('s_cbranch_scc1 %s' % ret)
                item = item[2]
            pf(item)
        a('s_branch %s' % ret)
    a.label(L('after'))
    a('s_waitcnt lgkmcnt(0)')
    a('s_nop 7')
    a('s_nop 7')
    a('v_and_b32 v3, 15, v2')
    a('v_lshrrev_b32 v4, 4, v2')
    if c.split:
        a('s_lshl_b32 %s, s2, 15' % T3)
        a('s_lshl_b32 %s, %s, 14' % (T0, sr(S_J)))
        a('s_add_u32 %s, %s, %s' % (T3, T3, T0))
        a('v_lshlrev_b32 v6, 4, v2')
        a('s_cmp_eq_u32 %s, %s' % (sr(S_I), sr(S_KH)))
        a('s_cbranch_scc1 %s' % L('recv'))
        a('v_add_u32 v6, %s, v6' % T3)
        for tb in range(4):
            for cb in range(4):
                a('s_mov_b32 %s, %d' % (T0, (tb * 4 + cb) * 1024))
                a('buffer_store_dwordx4 %s, v6, %s, %s offen sc1' % (vr(ACC[tb][cb], 4), sr(SRD_X, 4), T0))
        a('s_waitcnt vmcnt(0)')
        a('s_barrier')
        a('s_branch %s' % L('store'))
        a.label(L('recv'))
        a('s_barrier')
        a('s_xor_b32 %s, s2, 1' % T0)
        a('s_lshr_b32 %s, %s, 2' % (T1, T0))
        a('s_lshl_b32 %s, %s, 2' % (T1, T1))
        a('s_and_b32 %s, %s, 3' % (T2, T0))
        a('s_lshl_b32 %s, %s, 3' % (T2, T2))
        a('v_mov_b32 v7, %s' % T1)
        a.label(L('poll'))
        a('buffer_load_dword v20, v7, %s, 0 offen sc1' % sr(SRD_Y, 4))
        a('s_waitcnt vmcnt(0)')
        a('v_readfirstlane_b32 %s, v20' % T1)
        a('s_nop 3')
        a('s_lshr_b32 %s, %s, %s' % (T1, T1, T2))
        a('s_and_b32 %s, %s, 0xff' % (T1, T1))
        a('s_cmp_lg_u32 %s, 0' % T1)
        a('s_cbranch_scc1 %s' % L('got'))
        a('s_sleep 1')
        a('s_branch %s' % L('poll'))
        a.label(L('got'))
        a('s_xor_b32 %s, %s, 0x8000' % (T3, T3))
        a('v_add_u32 v6, %s, v6' % T3)
        for tb in range(4):
            for cb in range(4):
                a('s_mov_b32 %s, %d' % (T0, (tb * 4 + cb) * 1024))
                a('buffer_load_dwordx4 %s, v6, %s, %s offen sc1' % (vr(32 + (tb * 4 + cb) * 4, 4), sr(SRD_X, 4), T0))
        for tb in range(4):
            a('s_waitcnt vmcnt(%d)' % (12 - 4 * tb))
            for cb in range(4):
                for h in range(2):
                    d = ACC[tb][cb] + 2 * h; s_ = 32 + (tb * 4 + cb) * 4 + 2 * h
                    a('v_pk_add_f32 %s, %s, %s' % (vr(d, 2), vr(d, 2), vr(s_, 2)))
        a('s_lshl_b32 %s, %s, 7' % (T1, sr(S_J)))
        a('v_mul_u32_u24 v5, %d, v3' % RS)
        a('v_lshl_add_u32 v5, v4, 3, v5')
        a('v_add_u32 v5, %s, v5' % T1)
    else:
        a('s_mul_i32 %s, %s, %d' % (T0, sr(S_I), 64 * RS))
        a('s_mul_i32 %s, %s, %d' % (T1, sr(S_J), CB * 32))
        a('s_add_u32 %s, %s, %s' % (T0, T0, T1))
        a('v_mul_u32_u24 v5, %d, v3' % RS)
        a('v_lshl_add_u32 v5, v4, 3, v5')
        a('v_add_u32 v5, %s, v5' % T0)
    PC, VC = 32, 80
    if gelu:
        if c.epi == 'gelu_inloop':
          if c.stats == 'mfma':
              GR_OFF = 32768; SM_OFF = GR_OFF + 8192; CS_OFF = SM_OFF + 512
              a('s_lshl_b32 %s, %s, 2' % (T0, sr(S_I)))
              a('s_lshl_b32 %s, %s, 1' % (T1, sr(S_J)))
              a('s_add_u32 %s, %s, %s' % (T0, T0, T1))
              a('s_lshl_b32 %s, %s, 10' % (T1, T0))
              a('v_lshlrev_b32 v6, 8, v4')
              a('v_lshl_add_u32 v6, v3, 2, v6')
              a('v_add_u32 v6, %s, v6' % T1)
              for z in range(2):
                  for r in range(4):
                      a('ds_write_b32 v6, %s offset:%d' % (vr(GRA[z] + r), GR_OFF + z * 1024 + r * 64))
              a('s_lshl_b32 %s, %s, 6' % (T1, T0))
              a('v_lshlrev_b32 v6, 2, v3')
              a('v_add_u32 v6, %s, v6' % T1)
              for z in range(2):
                  a('ds_write_b32 v6, %s offset:%d' % (vr(SUMA[z]), SM_OFF + z * 64))
              a('s_lshl_b32 %s, %s, 1' % (T0, sr(S_J)))
              a('s_add_u32 %s, %s, %s' % (T0, T0, sr(S_I)))
              a('s_lshl_b32 %s, %s, 6' % (T0, T0))
              a('v_lshlrev_b32 v6, 4, v4')
              a('v_add_u32 v6, %s, v6' % T0)
              a('ds_write_b128 v6, %s offset:%d' % (vr(CSA, 4), CS_OFF))
              a('s_waitcnt lgkmcnt(0)')
              a('s_barrier')
              a('s_lshl_b32 %s, %s, 8' % (T0, sr(S_I)))
              a('v_lshlrev_b32 v6, 2, v3')
              a('v_add_u32 v6, %s, v6' % T0)
              a('s_lshl_b32 %s, %s, 12' % (T0, sr(S_I)))
              a('v_mul_u32_u24 v7, 68, v3')
              a('v_add_u32 v7, %s, v7' % T0)
              for tb in range(4):
                  a('ds_read_b32 %s, v6 offset:%d' % (vr(48 + 2 * tb), SM_OFF + tb * 64))
                  a('ds_read_b32 %s, v7 offset:%d' % (vr(49 + 2 * tb), GR_OFF + tb * 1024))
          else:
            SP_OFF = 32768; CSP_OFF = SP_OFF + 4096; CS_OFF = CSP_OFF + 1024
            for r in range(4):
                a('v_add_f32 %s, %s, %s' % (vr(DS + r), vr(DS + r), vr(DS + 4 + r)))
            a('v_add_f32 %s, %s, %s' % (vr(DS + 8), vr(DS + 8), vr(DS + 9)))
            a('s_lshl_b32 %s, %s, 6' % (T0, sr(S_I)))
            a('s_lshl_b32 %s, %s, 5' % (T1, sr(S_J)))
            a('s_add_u32 %s, %s, %s' % (T0, T0, T1))
            a('v_add_u32 v6, %s, v3' % T0)
            a('v_lshlrev_b32 v6, 3, v6')
            a('v_lshl_add_u32 v6, v4, 10, v6')
            a('ds_write_b64 v6, %s offset:%d' % (vr(DS, 2), SP_OFF))
            a('ds_write_b64 v6, %s offset:%d' % (vr(DS + 2, 2), SP_OFF + 128))
            a('s_lshl_b32 %s, %s, 1' % (T0, sr(S_J)))
            a('s_add_u32 %s, %s, %s' % (T0, T0, sr(S_I)))
            a('s_lshl_b32 %s, %s, 4' % (T0, T0))
            a('v_add_u32 v6, %s, v3' % T0)
            a('v_lshlrev_b32 v6, 2, v6')
            a('v_lshl_add_u32 v6, v4, 8, v6')
            a('ds_write_b32 v6, %s offset:%d' % (vr(DS + 8), CSP_OFF))
            a('s_waitcnt lgkmcnt(0)')
            a('s_barrier')
            a('s_lshl_b32 %s, %s, 6' % (T0, sr(S_I)))
            a('v_add_u32 v6, %s, v3' % T0)
            a('v_lshlrev_b32 v6, 3, v6')
            for tb in range(4):
                for g in range(4):
                    a('ds_read_b64 %s, v6 offset:%d' % (vr(96 + (tb * 4 + g) * 2, 2), SP_OFF + tb * 128 + g * 1024))
            a('s_lshl_b32 %s, %s, 7' % (T0, sr(S_J)))
            a('v_lshlrev_b32 v7, 4, v4')
            a('v_add_u32 v7, %s, v7' % T0)
            for cb in range(2):
                for g in range(4):
                    a('ds_read_b128 %s, v7 offset:%d' % (vr(200 + (cb * 4 + g) * 4, 4), CSP_OFF + cb * 64 + g * 256))
            a('s_waitcnt lgkmcnt(0)')
            for tb in range(4):
                b = 96 + tb * 8
                for h in range(2):
                    a('v_add_f32 %s, %s, %s' % (vr(b + h), vr(b + h), vr(b + 2 + h)))
                    a('v_add_f32 %s, %s, %s' % (vr(b + 4 + h), vr(b + 4 + h), vr(b + 6 + h)))
                    a('v_add_f32 %s, %s, %s' % (vr(48 + 2 * tb + h), vr(b + h), vr(b + 4 + h)))
            for cb in range(2):
                b = 200 + cb * 16
                for r in range(4):
                    a('v_add_f32 %s, %s, %s' % (vr(b + r), vr(b + r), vr(b + 4 + r)))
                    a('v_add_f32 %s, %s, %s' % (vr(b + 8 + r), vr(b + 8 + r), vr(b + 12 + r)))
                    a('v_add_f32 %s, %s, %s' % (vr(VC + 4 * cb + r), vr(b + r), vr(b + 8 + r)))
        else:
            SP_OFF = S * STAGE; CS_OFF = SP_OFF + 2048
            a('s_lshl_b32 %s, %s, 6' % (T0, sr(S_I)))
            a('v_add_u32 v6, %s, v3' % T0)
            a('v_lshlrev_b32 v6, 3, v6')
            a('v_add_u32 v6, 0x%x, v6' % SP_OFF)
            for tb in range(4):
                a('ds_read_b64 %s, v6 offset:%d' % (vr(48 + 2 * tb, 2), tb * 128))
                a('ds_read_b64 %s, v6 offset:%d' % (vr(56 + 2 * tb, 2), tb * 128 + 1024))
        if not (c.epi == 'gelu_inloop' and c.stats == 'dot'):
            a('s_mul_i32 %s, %s, %d' % (T0, sr(S_J), CB * 64))
            a('s_add_u32 %s, %s, 0x%x' % (T0, T0, CS_OFF))
            a('v_lshlrev_b32 v10, 4, v4')
            a('v_add_u32 v10, %s, v10' % T0)
            for cb in range(CB):
                a('ds_read_b128 %s, v10 offset:%d' % (vr(VC + 4 * cb, 4), cb * 64))
            a('s_waitcnt lgkmcnt(0)')
        chains = []
        for tb in range(4):
            ch = []
            e = ch.append
            sm, sq = 48 + 2 * tb, 49 + 2 * tb
            if c.epi == 'gelu_pre':
                e('v_add_f32 %s, %s, %s' % (vr(sm), vr(sm), vr(56 + 2 * tb)))
                e('v_add_f32 %s, %s, %s' % (vr(sq), vr(sq), vr(57 + 2 * tb)))
            NM, A0c, A1c, SI = PC + 4 * tb, PC + 4 * tb + 1, PC + 4 * tb + 2, PC + 4 * tb + 3
            e('v_mul_f32 %s, 0x%x, %s' % (vr(sm), f2u(1.0 / 1024), vr(sm)))
            e('v_mul_f32 %s, 0x%x, %s' % (vr(sq), f2u(1.0 / 1024), vr(sq)))
            e('v_fma_f32 %s, -%s, %s, %s' % (vr(sq), vr(sm), vr(sm), vr(sq)))
            e('v_max_f32 %s, 0, %s' % (vr(sq), vr(sq)))
            e('v_cvt_pk_bf16_f32 %s, %s, %s' % (vr(sm), vr(sm), vr(sq)))
            e('v_lshlrev_b32 %s, 16, %s' % (vr(NM), vr(sm)))
            e('v_and_b32 %s, %s, %s' % (vr(sq), sr(S_MASK), vr(sm)))
            e('v_xor_b32 %s, 0x80000000, %s' % (vr(NM), vr(NM)))
            e('v_add_f32 %s, 0x%x, %s' % (vr(sq), f2u(1e-5), vr(sq)))
            e('v_cvt_pk_bf16_f32 %s, %s, %s' % (vr(sq), vr(sq), vr(sq)))
            e('v_and_b32 %s, %s, %s' % (vr(sq), sr(S_MASK), vr(sq)))
            e('v_sqrt_f32 %s, %s' % (vr(sq), vr(sq)))
            e('v_cvt_pk_bf16_f32 %s, %s, %s' % (vr(sq), vr(sq), vr(sq)))
            e('v_and_b32 %s, %s, %s' % (vr(SI), sr(S_MASK), vr(sq)))
            e('v_rcp_f32 %s, %s' % (vr(sq), vr(SI)))
            e('v_mul_f32 %s, %s, %s' % (vr(A0c), sr(S_C0), vr(sq)))
            e('v_mul_f32 %s, %s, %s' % (vr(sm), vr(sq), vr(sq)))
            e('v_mul_f32 %s, %s, %s' % (vr(sm), vr(sm), vr(sq)))
            e('v_mul_f32 %s, %s, %s' % (vr(A1c), sr(S_C1), vr(sm)))
            chains.append(ch)
        for k in range(len(chains[0])):
            for ch in chains:
                a(ch[k])
    def finish_tiles(tiles):
        prs = []
        tmp = 16
        for (tb, cb) in tiles:
            for h in range(2):
                prs.append((ACC[tb][cb] + 2 * h, VC + 4 * cb + 2 * h, tb, tmp)); tmp += 2
        assert tmp <= 32
        if gelu:
            for (y, cs, tb, t) in prs:
                a('v_pk_fma_f32 %s, %s, %s, %s op_sel_hi:[1,0,1]' % (vr(y, 2), vr(cs, 2), vr(PC + 4 * tb, 2), vr(y, 2)))
            for (y, cs, tb, t) in prs:
                a('v_pk_mul_f32 %s, %s, %s' % (vr(t, 2), vr(y, 2), vr(y, 2)))
            for (y, cs, tb, t) in prs:
                a('v_pk_fma_f32 %s, %s, %s, %s op_sel:[0,0,1] op_sel_hi:[1,0,1]' % (vr(t, 2), vr(t, 2), vr(PC + 4 * tb + 2, 2), vr(PC + 4 * tb, 2)))
            for (y, cs, tb, t) in prs:
                a('v_pk_mul_f32 %s, %s, %s' % (vr(t, 2), vr(t, 2), vr(y, 2)))
            for (y, cs, tb, t) in prs:
                a('v_exp_f32 %s, %s' % (vr(t), vr(t)))
                a('v_exp_f32 %s, %s' % (vr(t + 1), vr(t + 1)))
            for (y, cs, tb, t) in prs:
                a('v_pk_fma_f32 %s, %s, %s, %s op_sel:[0,1,1] op_sel_hi:[1,1,1]' % (vr(t, 2), vr(t, 2), vr(PC + 4 * tb + 2, 2), vr(PC + 4 * tb + 2, 2)))
            for (y, cs, tb, t) in prs:
                a('v_rcp_f32 %s, %s' % (vr(t), vr(t)))
                a('v_rcp_f32 %s, %s' % (vr(t + 1), vr(t + 1)))
            for (y, cs, tb, t) in prs:
                a('v_pk_mul_f32 %s, %s, %s' % (vr(y, 2), vr(y, 2), vr(t, 2)))
        for (tb, cb) in tiles:
            A0 = ACC[tb][cb]
            a('v_cvt_pk_bf16_f32 %s, %s, %s' % (vr(A0), vr(A0), vr(A0 + 1)))
            a('v_cvt_pk_bf16_f32 %s, %s, %s' % (vr(A0 + 1), vr(A0 + 2), vr(A0 + 3)))
        for (tb, cb) in tiles:
            a('ds_write_b64 v5, %s offset:%d' % (vr(ACC[tb][cb], 2), tb * 16 * RS + cb * 32))
    if BN != 224:
        for tb in range(4):
            finish_tiles([(tb, cb) for cb in range(CB)])
        a('s_waitcnt lgkmcnt(0)')
        a('s_branch %s' % L('store'))
    else:
        for tb in range(4):
            tl = [(tb, cb) for cb in range(CB)]
            finish_tiles(tl[0:4]); finish_tiles(tl[4:7])
            a('s_waitcnt lgkmcnt(0)')
            a('s_barrier')
        a('s_endpgm')

    a.label(L('prod'))
    a('s_sub_u32 %s, %s, 4' % (sr(S_ROLE), sr(S_WAVE)))
    a('v_lshrrev_b32 v3, 3, v2')
    a('v_and_b32 v4, 7, v2')
    a('v_lshrrev_b32 v5, 4, v2')
    a('s_lshl_b32 %s, %s, 5' % (T0, sr(S_ROLE)))
    a('s_add_u32 %s, %s, %s' % (T0, T0, sr(S_ROW)))
    a('s_mov_b32 %s, %d' % (T1, c.Tstride))
    a('v_add_u32 v6, %s, v3' % T0)
    a('v_mul_lo_u32 v6, v6, %s' % T1)
    if c.split:
        a('s_mul_i32 %s, %s, %d' % (T0, sr(S_KH), KLEN * 2))
        a('v_add_u32 v6, %s, v6' % T0)
    a('v_xor_b32 v7, v4, v5')
    a('v_lshl_add_u32 v8, v7, 4, v6')
    a('v_xor_b32 v7, 4, v7')
    a('v_lshl_add_u32 v9, v7, 4, v6')
    a('v_add_u32 v9, %d, v9' % (8 * c.Tstride))
    a('v_add_u32 v10, %d, v8' % (16 * c.Tstride))
    a('v_add_u32 v11, %d, v9' % (16 * c.Tstride))
    a('s_lshl_b32 %s, %s, 1' % (T2, sr(S_COL)))
    if c.split:
        a('s_mul_i32 %s, %s, %d' % (T0, sr(S_KH), KLEN * c.Wstride))
        a('s_add_u32 %s, %s, %s' % (T2, T2, T0))
    a('s_mov_b32 %s, %d' % (T1, c.Wstride))
    if BN == 64:
        a('s_lshl_b32 %s, %s, 4' % (T0, sr(S_ROLE)))
        a('v_add_u32 v6, %s, v3' % T0)
        a('v_mul_lo_u32 v6, v6, %s' % T1)
        a('v_add_u32 v6, %s, v6' % T2)
        a('v_and_b32 v7, 1, v5')
        a('v_lshlrev_b32 v7, 1, v7')
        a('v_xor_b32 v7, v4, v7')
        a('v_lshl_add_u32 v12, v7, 4, v6')
        a('v_xor_b32 v7, 4, v7')
        a('v_lshl_add_u32 v13, v7, 4, v6')
        a('v_add_u32 v13, %d, v13' % (8 * c.Wstride))
    elif BN == 128:
        a('s_lshl_b32 %s, %s, 4' % (T0, sr(S_ROLE)))
        a('v_add_u32 v6, %s, v5' % T0)
        a('v_mul_lo_u32 v6, v6, %s' % T1)
        a('v_add_u32 v6, %s, v6' % T2)
        a('v_and_b32 v7, 15, v2')
        a('v_lshlrev_b32 v20, 1, v5')
        a('v_xor_b32 v7, v7, v20')
        a('v_lshl_add_u32 v12, v7, 4, v6')
        a('v_add_u32 v13, %d, v12' % (4 * c.Wstride))
        a('v_xor_b32 v7, 8, v7')
        a('v_lshl_add_u32 v14, v7, 4, v6')
        a('v_add_u32 v14, %d, v14' % (8 * c.Wstride))
        a('v_add_u32 v15, %d, v14' % (4 * c.Wstride))
    else:
        for q in range(NWQ):
            a('s_mul_i32 %s, %s, %d' % (T0, sr(S_ROLE), NWQ * 64))
            a('s_add_u32 %s, %s, %d' % (T0, T0, q * 64))
            a('v_add_u32 v6, %s, v2' % T0)
            a('v_mul_u32_u24 v7, 2341, v6')
            a('v_lshrrev_b32 v7, 16, v7')
            a('v_mul_u32_u24 v20, 28, v7')
            a('v_sub_u32 v6, v6, v20')
            a('v_bfe_u32 v20, v7, 3, 1')
            a('v_lshlrev_b32 v20, 1, v20')
            a('v_xor_b32 v6, v6, v20')
            a('v_mul_lo_u32 v7, v7, %s' % T1)
            a('v_lshl_add_u32 v6, v6, 4, v7')
            a('v_add_u32 %s, %s, v6' % (vr(12 + q), T2))
    a('s_lshl_b32 %s, %s, 12' % (sr(S_PT), sr(S_ROLE)))
    a('s_mul_i32 %s, %s, %d' % (sr(S_PW), sr(S_ROLE), NWQ * 1024))
    a('s_add_u32 %s, %s, 16384' % (sr(S_PW), sr(S_PW)))
    shift = [0]
    log = []
    def other(n):
        log.extend([('x',)] * n)
    def issue(st):
        slot = st % S
        if c.shift:
            d = [-1, 1, -2, 2][st // 4]
            if d != shift[0]:
                for q in range(4):
                    a('v_add_u32 %s, 0x%x, %s' % (vr(8 + q), ((d - shift[0]) * c.Tstride) & 0xffffffff, vr(8 + q)))
                shift[0] = d
        a('s_mov_b32 %s, 0x%x' % (sr(S_OFT), st * 128))
        a('s_mov_b32 %s, 0x%x' % (sr(S_OFW), st * 64 * c.Wstride))
        for q in range(4):
            a('s_add_u32 m0, %s, 0x%x' % (sr(S_PT), slot * STAGE + q * 1024))
            a('s_nop 0')
            a('buffer_load_dwordx4 %s, %s, %s offen lds' % (vr(8 + q), sr(SRD_T, 4), sr(S_OFT)))
        for q in range(NWQ):
            a('s_add_u32 m0, %s, 0x%x' % (sr(S_PW), slot * STAGE + q * 1024))
            a('s_nop 0')
            a('buffer_load_dwordx4 %s, %s, %s offen lds' % (vr(12 + q), sr(SRD_W, 4), sr(S_OFW)))
        log.extend([('st', st)] * NDMA)
        if st == NS - 1:
            after_last_issue()
    def pre_stats_loads():
        a('v_subrev_u32 v28, 256, v0')
        a('v_and_b32 v5, 127, v28')
        a('v_lshrrev_b32 v6, 7, v28')
        a('v_add_u32 v7, %s, v5' % sr(S_ROW))
        a('v_lshlrev_b32 v7, 3, v7')
        a('v_lshl_add_u32 v7, v6, 17, v7')
        for m in range(8):
            a('s_mov_b32 %s, 0x%x' % (T0, m * S_ * 8))
            a('buffer_load_dwordx2 %s, v7, %s, %s offen' % (vr(32 + 2 * m, 2), sr(SRD_X, 4), T0))
        a('v_add_u32 v22, %s, v28' % sr(S_COL))
        a('v_lshlrev_b32 v22, 2, v22')
        a('v_cmp_gt_u32 vcc, 224, v28')
        a('v_mov_b32 v23, 0x%x' % OOB)
        a('s_nop 0')
        a('v_cndmask_b32 v22, v23, v22, vcc')
        for m in range(16):
            a('s_mov_b32 %s, 0x%x' % (T0, m * F_ * 4))
            a('buffer_load_dword %s, v22, %s, %s offen' % (vr(48 + m), sr(SRD_Y, 4), T0))
        other(24)
    def pre_stats_finish():
        SP_OFF = S * STAGE
        CS_OFF = SP_OFF + 2048
        for m in range(1, 8):
            a('v_add_f32 v32, v32, %s' % vr(32 + 2 * m))
            a('v_add_f32 v33, v33, %s' % vr(33 + 2 * m))
        a('v_and_b32 v5, 127, v28')
        a('v_lshrrev_b32 v6, 7, v28')
        a('v_lshlrev_b32 v5, 3, v5')
        a('v_lshl_add_u32 v5, v6, 10, v5')
        a('v_add_u32 v5, 0x%x, v5' % SP_OFF)
        a('ds_write_b64 v5, v[32:33]')
        for m in range(1, 16):
            a('v_add_f32 v48, v48, %s' % vr(48 + m))
        a('v_lshlrev_b32 v5, 2, v28')
        a('v_add_u32 v5, 0x%x, v5' % CS_OFF)
        a('ds_write_b32 v5, v48')
        a('s_waitcnt lgkmcnt(0)')
    def after_last_issue():
        if BN != 224:
            other(resid_loads())
        if c.epi == 'resid_stats':
            mk_srd(a, SRD_P, 'w3', D_ * F_ * 2)
            a('s_and_b32 %s, s2, 15' % T0)
            a('s_lshl_b32 %s, %s, 6' % (T0, T0))
            a('s_lshl_b32 %s, %s, 4' % (T1, sr(S_ROLE)))
            a('s_add_u32 %s, %s, %s' % (T0, T0, T1))
            a('v_lshrrev_b32 v3, 5, v2')
            a('v_add_u32 v3, %s, v3' % T0)
            a('v_mul_u32_u24 v3, 7168, v3')
            a('v_and_b32 v4, 31, v2')
            a('v_lshl_add_u32 v3, v4, 4, v3')
            a('s_lshr_b32 %s, s2, 4' % T1)
            a('s_mul_i32 %s, %s, 448' % (T1, T1))
            a('v_add_u32 v3, %s, v3' % T1)
            a('v_cmp_gt_u32 vcc, 28, v4')
            a('v_mov_b32 v5, 0x%x' % OOB)
            a('s_nop 0')
            a('v_cndmask_b32 v3, v5, v3, vcc')
            for m in range(8):
                a('s_mov_b32 %s, 0x%x' % (T0, m * 2 * 7168))
                a('buffer_load_dwordx4 %s, v3, %s, %s offen' % (vr(64 + 4 * m, 4), sr(SRD_P, 4), T0))
            other(8)
    if c.prof:
        a('s_memrealtime s[98:99]')
    nxt_issue = 0
    for _ in range(min(c.first, S)):
        issue(nxt_issue); nxt_issue += 1
    common_srds()
    if c.prof:
        a('s_memrealtime s[100:101]')
    pre_idx = None
    for t in range(NS):
        lastpos = max(i for i, e in enumerate(log) if e == ('st', t))
        n_after = len(log) - 1 - lastpos
        assert n_after <= 63, n_after
        a('s_waitcnt vmcnt(%d)' % n_after)
        a('s_barrier')
        if c.prof and c.trace and t < 64:
            a('s_memrealtime s[6:7]')
            a('s_waitcnt lgkmcnt(0)')
            a('v_writelane_b32 v254, s6, %d' % t)
        if c.prof and t == 0:
            a('s_memrealtime s[78:79]')
            a('s_memtime s[92:93]')
        if c.prof and t == NS // 2:
            a('s_memrealtime s[88:89]')
        k = 0
        while nxt_issue < NS and nxt_issue <= max(S - 1, t - 1 + S) and k < c.rate:
            issue(nxt_issue); nxt_issue += 1; k += 1
        if c.epi == 'gelu_pre' and t == 0:
            pre_stats_loads(); pre_idx = len(log) - 1
        if c.epi == 'gelu_pre' and t > 1 and pre_idx is not None and pre_idx >= 0 and lastpos > pre_idx:
            pre_stats_finish(); pre_idx = -1
    assert nxt_issue == NS
    a('s_barrier')
    if c.prof:
        a('s_memrealtime s[80:81]')
        a('s_memtime s[94:95]')
    if c.epi == 'gelu_inloop':
        a('s_barrier')
    if c.split:
        a('s_barrier')
        a('s_cmp_lg_u32 %s, 4' % sr(S_WAVE))
        a('s_cbranch_scc1 %s' % L('store'))
        a('s_lshr_b32 %s, s2, 2' % T1)
        a('s_lshl_b32 %s, %s, 2' % (T1, T1))
        a('s_and_b32 %s, s2, 3' % T2)
        a('s_lshl_b32 %s, %s, 3' % (T2, T2))
        a('s_lshl_b32 %s, 1, %s' % (T2, T2))
        a('v_mov_b32 v7, %s' % T1)
        a('v_mov_b32 v20, %s' % T2)
        a('v_cmp_eq_u32 vcc, 0, v2')
        a('v_mov_b32 v21, 0x%x' % OOB)
        a('s_nop 0')
        a('v_cndmask_b32 v7, v21, v7, vcc')
        a('buffer_atomic_or v20, v7, %s, 0 offen sc1' % sr(SRD_Y, 4))
    if c.epi == 'resid_stats':
        a('s_waitcnt vmcnt(0)')
        for r in range(8):
            a('v_mov_b32 %s, 0' % vr(24 + r))
        for m in range(8):
            for d in range(4):
                a('v_lshlrev_b32 v20, 16, %s' % vr(64 + 4 * m + d))
                a('v_and_b32 v21, %s, %s' % (sr(S_MASK), vr(64 + 4 * m + d)))
                a('v_add_f32 %s, %s, v20' % (vr(24 + 2 * d), vr(24 + 2 * d)))
                a('v_add_f32 %s, %s, v21' % (vr(25 + 2 * d), vr(25 + 2 * d)))
        a('v_lshrrev_b32 v3, 5, v2')
        a('s_lshl_b32 %s, %s, 1' % (T0, sr(S_ROLE)))
        a('v_add_u32 v3, %s, v3' % T0)
        a('v_mul_u32_u24 v3, 1024, v3')
        a('v_and_b32 v4, 31, v2')
        a('v_lshl_add_u32 v3, v4, 5, v3')
        a('ds_write_b128 v3, v[24:27] offset:32768')
        a('ds_write_b128 v3, v[28:31] offset:32784')
        a('s_waitcnt lgkmcnt(0)')
    if BN == 224:
        for q in range(4):
            a('s_mul_i32 %s, %s, 224' % (T0, sr(S_ROLE)))
            a('s_add_u32 %s, %s, %d' % (T0, T0, q * 64))
            a('v_add_u32 v6, %s, v2' % T0)
            a('v_mul_u32_u24 v7, 2341, v6')
            a('v_lshrrev_b32 v7, 16, v7')
            a('v_mul_u32_u24 v20, 28, v7')
            a('v_sub_u32 v6, v6, v20')
            a('v_and_b32 v20, 15, v7')
            a('v_lshrrev_b32 v7, 4, v7')
            a('v_lshl_add_u32 v7, v7, 6, v20')
            a('v_mul_u32_u24 v20, %d, v7' % RS)
            a('v_lshl_add_u32 %s, v6, 4, v20' % vr(24 + q))
            a('v_add_u32 v7, %s, v7' % sr(S_ROW))
            a('s_mov_b32 %s, %d' % (T1, c.Ostride))
            a('v_mul_lo_u32 v7, v7, %s' % T1)
            a('v_lshl_add_u32 v7, v6, 4, v7')
            a('s_lshl_b32 %s, %s, 1' % (T1, sr(S_COL)))
            a('v_add_u32 %s, %s, v7' % (vr(28 + q), T1))
            if q == 3:
                a('v_cmp_gt_u32 vcc, 32, v2')
                a('v_mov_b32 v20, 0x%x' % OOB)
                a('v_mov_b32 v21, 0')
                a('v_cndmask_b32 v31, v20, v31, vcc')
                a('v_cndmask_b32 v27, v21, v27, vcc')
        for tb in range(4):
            a('s_barrier')
            for q in range(4):
                a('ds_read_b128 %s, %s offset:%d' % (vr(32 + 16 * (tb & 1) + 4 * q, 4), vr(24 + q), tb * 16 * RS))
            a('s_mov_b32 %s, %d' % (T0, tb * 16 * c.Ostride))
            for q in range(4):
                a('s_waitcnt lgkmcnt(%d)' % (3 - q))
                a('buffer_store_dwordx4 %s, %s, %s, %s offen%s' % (vr(32 + 16 * (tb & 1) + 4 * q, 4), vr(28 + q), sr(SRD_O, 4), T0, ST))
        a('s_branch %s' % L('fin'))

    a.label(L('store'))
    if BN != 224:
        a('s_barrier')
        a('v_and_b32 v2, 63, v0')
        for q in range(2):
            rb_idx(q, 3, 4, 5)
            a('v_mul_u32_u24 v6, %d, v3' % RS)
            a('v_lshl_add_u32 v6, v4, 4, v6')
            a('ds_read_b128 %s, v6' % vr(32 + 4 * q, 4))
        if c.R is None:
            for q in range(2):
                a('s_waitcnt lgkmcnt(%d)' % (1 - q))
                a('buffer_store_dwordx4 %s, %s, %s, 0 offen%s' % (vr(32 + 4 * q, 4), vr(V_RBG + q), sr(SRD_O, 4), ST))
        else:
            a('s_waitcnt vmcnt(0) lgkmcnt(0)')
            for q in range(2):
                for d in range(4):
                    h = 32 + 4 * q + d; x = V_RES + 4 * q + d
                    a('v_lshlrev_b32 v8, 16, %s' % vr(h))
                    a('v_lshlrev_b32 v9, 16, %s' % vr(x))
                    a('v_and_b32 v10, %s, %s' % (sr(S_MASK), vr(h)))
                    a('v_and_b32 v11, %s, %s' % (sr(S_MASK), vr(x)))
                    a('v_add_f32 v8, v8, v9')
                    a('v_add_f32 v10, v10, v11')
                    a('v_cvt_pk_bf16_f32 %s, v8, v10' % vr(h))
                a('buffer_store_dwordx4 %s, %s, %s, 0 offen%s' % (vr(32 + 4 * q, 4), vr(V_RBG + q), sr(SRD_O, 4), ST))
            if c.epi == 'resid_stats':
                a('v_mov_b32 v21, 0x3f803f80')
                for q in range(2):
                    sv = 12 + 2 * q
                    a('v_mov_b32 %s, 0' % vr(sv))
                    a('v_mov_b32 %s, 0' % vr(sv + 1))
                    for d in range(4):
                        h = 32 + 4 * q + d
                        a('v_dot2c_f32_bf16 %s, %s, v21' % (vr(sv), vr(h)))
                        a('v_dot2c_f32_bf16 %s, %s, %s' % (vr(sv + 1), vr(h), vr(h)))
                a('s_nop 3')
                for dpp in ('quad_perm:[1,0,3,2]', 'quad_perm:[2,3,0,1]', 'row_half_mirror'):
                    for r in range(12, 16):
                        a('v_add_f32_dpp %s, %s, %s %s row_mask:0xf bank_mask:0xf' % (vr(r), vr(r), vr(r), dpp))
                    a('s_nop 0')
                for q in range(2):
                    rb_idx(q, 3, 4, 5)
                    a('v_add_u32 v3, %s, v3' % sr(S_ROW))
                    a('v_lshlrev_b32 v3, 3, v3')
                    a('s_lshl_b32 %s, %s, 14' % (T1, sr(S_CBK)))
                    a('v_add_u32 v3, %s, v3' % T1)
                    a('v_cmp_eq_u32 vcc, 0, v4')
                    a('v_mov_b32 v5, 0x%x' % OOB)
                    a('s_nop 0')
                    a('v_cndmask_b32 v3, v5, v3, vcc')
                    a('buffer_store_dwordx2 %s, v3, %s, 0 offen%s' % (vr(12 + 2 * q, 2), sr(SRD_X, 4), ST))
                a('s_cmp_lt_u32 %s, 4' % sr(S_WAVE))
                a('s_cbranch_scc1 %s' % L('fin'))
                a('v_subrev_u32 v3, 256, v0')
                a('v_lshlrev_b32 v4, 2, v3')
                for m in range(8):
                    a('ds_read_b32 %s, v4 offset:%d' % (vr(40 + m), 32768 + m * 1024))
                a('s_waitcnt lgkmcnt(0)')
                for m in range(1, 8):
                    a('v_add_f32 v40, v40, %s' % vr(40 + m))
                a('s_and_b32 %s, s2, 15' % T0)
                a('s_mul_i32 %s, %s, %d' % (T0, T0, F_ * 4))
                a('s_lshr_b32 %s, s2, 4' % T1)
                a('s_mul_i32 %s, %s, %d' % (T1, T1, 224 * 4))
                a('s_add_u32 %s, %s, %s' % (T0, T0, T1))
                a('v_add_u32 v4, %s, v4' % T0)
                a('v_cmp_gt_u32 vcc, 224, v3')
                a('v_mov_b32 v5, 0x%x' % OOB)
                a('s_nop 0')
                a('v_cndmask_b32 v4, v5, v4, vcc')
                a('buffer_store_dword v40, v4, %s, 0 offen%s' % (sr(SRD_Y, 4), ST))
    a.label(L('fin'))
    if c.prof:
        a('s_cmp_lg_u32 %s, 4' % sr(S_WAVE))
        a('s_cbranch_scc1 %s' % L('done'))
        a('s_waitcnt vmcnt(0)')
        a('s_memrealtime s[82:83]')
        a('s_memtime s[86:87]')
        a('s_getreg_b32 s90, hwreg(HW_REG_XCC_ID)')
        a('s_waitcnt lgkmcnt(0)')
        mk_srd(a, SRD_X, ('ws', WS_PROF + c.idx * 65536), 65536)
        for r in range(26):
            a('v_mov_b32 %s, s%d' % (vr(32 + r), 76 + r))
        a('s_lshl_b32 s3, s2, 8')
        a('v_mov_b32 v3, s3')
        a('v_cmp_eq_u32 vcc, 0, v2')
        a('v_mov_b32 v5, 0x%x' % OOB)
        a('s_nop 0')
        a('v_cndmask_b32 v3, v5, v3, vcc')
        if c.trace:
            mk_srd(a, SRD_Y, ('ws', WS_PROF + (8 + c.idx) * 65536), 65536)
            a('v_lshlrev_b32 v4, 2, v2')
            a('v_add_u32 v4, s3, v4')
            a('buffer_store_dword v254, v4, %s, 0 offen' % sr(SRD_Y, 4))
        for r in range(7):
            a('buffer_store_dwordx4 %s, v3, %s, 0 offen offset:%d' % (vr(32 + 4 * r, 4), sr(SRD_X, 4), 16 * r))
    a.label(L('done'))
    a('s_endpgm')
    a.label(name + '_end')
    return S * STAGE + (4096 if c.epi == 'gelu_pre' else 0)

def descriptor(name):
    return '''.amdhsa_kernel %s
  .amdhsa_next_free_vgpr 256
  .amdhsa_next_free_sgpr 102
  .amdhsa_accum_offset 256
  .amdhsa_group_segment_fixed_size 0
  .amdhsa_kernarg_size 64
  .amdhsa_user_sgpr_count 2
  .amdhsa_user_sgpr_kernarg_segment_ptr 1
  .amdhsa_system_sgpr_workgroup_id_x 1
.end_amdhsa_kernel
''' % name

def mk(name, **kw):
    c = Cfg()
    c.name = name
    c.prof = False; c.trace = False; c.shift = False; c.R = None; c.stflag = ' sc1'
    c.rot = 0; c.pf_at = []; c.grp0 = []; c.code0 = []; c.stats = 'mfma'; c.first = 2; c.rate = 2; c.split = False
    for k, v in kw.items():
        setattr(c, k, v)
    return c

def configs(opts, split4):
    base = 'standalone__mixer_s_mlp__prompt'
    k4 = dict(BN=128, S=4, map='split', split=True) if split4 else dict(BN=64, S=6, map='4x8')
    return [
        mk('k1_kernel', BN=64, K=1024, S=6, T='x', Tbytes=NB, Tstride=2048, W='w1', Wbytes=D_ * D_ * 2, Wstride=2048,
           O=('ws', WS_H), Obytes=S_ * HS, Ostride=HS, epi='gelu_inloop', map='4x8', **opts),
        mk('k2_kernel', BN=64, K=1024, S=6, T=('ws', WS_H), Tbytes=S_ * HS, Tstride=HS, W='w2', Wbytes=D_ * D_ * 2, Wstride=2048,
           O=('ws', WS_X1), Obytes=S_ * HS, Ostride=HS, epi='resid_stats', map='4x8', R='x', Rstride=2048, shift=True, **opts),
        mk('k3_kernel', BN=224, K=1024, S=3, T=('ws', WS_X1), Tbytes=S_ * HS, Tstride=HS, W='w3', Wbytes=D_ * F_ * 2, Wstride=7168,
           O=('ws', WS_G), Obytes=S_ * GS, Ostride=GS, epi='gelu_pre', map='8x4', **opts),
        mk(base + '_kernel', K=3584, T=('ws', WS_G), Tbytes=S_ * GS, Tstride=GS, W='w4', Wbytes=F_ * D_ * 2, Wstride=2048,
           O='out', Obytes=NB, Ostride=2048, epi='resid', R=('ws', WS_X1), Rstride=HS, **k4, **opts),
    ]

own_cols = lambda buf: (buf, D_ * D_ * 2, 2048, 3, 7, (0, 0, 0), 32, 32, (0, 1, 1024))
ITEMS = {
    'w2': own_cols('w2'),
    'w3': ('w3', D_ * F_ * 2, 7168, 6, 55, (0, 7, 128), 4, 4, (0, 0, 0)),
    'w4': ('w4', F_ * D_ * 2, 2048, 4, 15, (0, 7, 448), 14, 16, (0, 0, 0)),
}

def main():
    out = sys.argv[1]
    opts = {}
    for o in sys.argv[2:]:
        k, v = o.split('=', 1)
        opts[k] = eval(v)
    only = opts.pop('only', None)
    split4 = opts.pop('split4', True)
    pfat = opts.pop('pfat', {0: [(10, ['w2']), (13, ['w3'])], 2: [(2, ['w4:0']), (5, ['w4:1']), (8, ['w4:2']), (11, ['w4:3'])]})
    per = opts.pop('per', {})
    codepf = opts.pop('codepf', True)
    cfgs = configs(opts, split4)
    for ki, lst in pfat.items():
        def conv(n):
            if n[0] == 'g': return ('grp', int(n[1:]))
            if n[0] == 'b': return ('bad', 'w4', F_ * D_ * 2, int(n[1]) * 2048, int(n[2]))
            if n[0] == 'c': return ('code', cfgs[int(n[1])].name, 2)
            return ('onlywave', int(n[3]), ITEMS[n[:2]]) if len(n) > 2 else ITEMS[n]
        cfgs[ki].pf_at = [(it, [conv(n) for n in names]) for it, names in lst]
    if codepf:
        cfgs[0].code0 = [(cfgs[0].name, 2, False)]
    for ki, d in per.items():
        for k, v in d.items(): setattr(cfgs[ki], k, v)
    if only is not None:
        cfgs = [cfgs[i] for i in only]
    a = Asm()
    ldss = []
    for i, c in enumerate(cfgs):
        c.idx = i
        ldss.append(gen_kernel(a, c))
    hdr = open('standalone__mixer_s_mlp__prompt.s.ref').read().split('; Override')[0]
    s = hdr
    for c, lds in zip(cfgs, ldss):
        s += '; @launch kernel=%s grid=(256,1,1) block=(512,1,1) lds=%d\n' % (c.name, lds)
    s += '.amdgcn_target "amdgcn-amd-amdhsa--gfx950"\n.text\n'
    s += a.text()
    s += '.section .rodata,"a"\n.p2align 6\n'
    for c in cfgs:
        s += descriptor(c.name) + '.p2align 6\n'
    open(out, 'w').write(s)

if __name__ == '__main__':
    main()
```

```python
import sys, struct

S_, D_, F_ = 2048, 1024, 3584
NB = S_ * D_ * 2
HS, GS = 2176, 7296
WS_H, WS_X1, WS_G = 0, 5 << 20, 10 << 20
WS_PART2 = 26 << 20
WS_CS3 = (26 << 20) + (256 << 10)
WS_PROF = 28 << 20
WS_FLAG = 27 << 20
WS_XCH = 32 << 20
C0 = -2.0 * 0.7978845608028654 * 1.4426950408889634
C1 = C0 * 0.044715
OOB = 0x7ffffff0

def f2u(f):
    return struct.unpack('<I', struct.pack('<f', f))[0]

class Asm:
    def __init__(self):
        self.L = []
    def __call__(self, s):
        self.L.append('    ' + s)
    def label(self, s):
        self.L.append(s + ':')
    def text(self):
        return '\n'.join(self.L) + '\n'

def vr(b, n=1):
    return 'v%d' % b if n == 1 else 'v[%d:%d]' % (b, b + n - 1)
def sr(b, n=1):
    return 's%d' % b if n == 1 else 's[%d:%d]' % (b, b + n - 1)

SRD_T, SRD_W, SRD_R, SRD_O, SRD_X, SRD_Y, SRD_P = 8, 12, 16, 20, 24, 28, 72
S_WAVE, S_ROW, S_COL, S_ROLE, S_I, S_J = 32, 33, 34, 35, 36, 37
S_OFT, S_OFW, S_CNT, S_SLOT, S_PT, S_PW = 38, 39, 40, 41, 42, 43
S_T0, S_T1, S_T2, S_T3 = 44, 45, 46, 47
S_RB, S_CBK = 48, 49
S_C0, S_C1, S_MASK = 50, 51, 52
S_XCD, S_IDX, S_KH = 53, 54, 55
P = {'x': 56, 'w1': 58, 'w2': 60, 'w3': 62, 'w4': 64, 'out': 66, 'dbg': 68, 'ws': 70}

class Cfg:
    pass

def ptr(nm):
    if isinstance(nm, tuple):
        return P['ws'], P['ws'] + 1, nm[1]
    return P[nm], P[nm] + 1, 0

def mk_srd(a, dst, src, nbytes):
    lo, hi, add = ptr(src)
    if add:
        a('s_add_u32 %s, %s, 0x%x' % (sr(dst), sr(lo), add))
        a('s_addc_u32 %s, %s, 0' % (sr(dst + 1), sr(hi)))
    else:
        a('s_mov_b32 %s, %s' % (sr(dst), sr(lo)))
        a('s_mov_b32 %s, %s' % (sr(dst + 1), sr(hi)))
    a('s_mov_b32 %s, 0x%x' % (sr(dst + 2), nbytes))
    a('s_mov_b32 %s, 0x20000' % sr(dst + 3))

def gen_kernel(a, c):
    name = c.name
    BN, CB, S = c.BN, c.BN // 32, c.S
    KLEN = c.K // 2 if c.split else c.K
    NS = KLEN // 64
    if c.early:
        NHALF = NS; NF = c.early; NS = 2 * NHALF - NF
    WROW = BN * 2
    STAGE = 16384 + 64 * WROW
    NWQ = (64 * WROW // 1024) // 4
    NDMA = 4 + NWQ
    RS = BN * 2 + 16
    L = lambda s: '%s_%s' % (name, s)
    gelu = c.epi in ('gelu_inloop', 'gelu_pre')
    ST = c.stflag
    X, I = sr(S_XCD), sr(S_IDX)
    T0, T1, T2, T3 = sr(S_T0), sr(S_T1), sr(S_T2), sr(S_T3)

    a.L.append('.globl %s' % name)
    a.L.append('.p2align 8')
    a.L.append('.type %s,@function' % name)
    a.label(name)
    a('s_cmp_ge_u32 s2, 256')
    a('s_cbranch_scc1 %s' % L('done'))
    a('s_load_dwordx16 s[56:71], s[0:1], 0')
    if c.prof:
        a('s_memrealtime s[76:77]')
        a('s_memtime s[84:85]')
    a('s_and_b32 %s, s2, 7' % X)
    a('s_lshr_b32 %s, s2, 3' % I)
    def field(dst, src, shr, msk, shl):
        a('s_lshr_b32 %s, %s, %d' % (dst, src, shr))
        a('s_and_b32 %s, %s, %d' % (dst, dst, msk))
        if shl: a('s_lshl_b32 %s, %s, %d' % (dst, dst, shl))
    if c.map == '4x8':
        field(T1, X, 1, 3, 2); field(T2, I, 3, 3, 0); a('s_add_u32 %s, %s, %s' % (sr(S_RB), T1, T2))
        if c.rot:
            a('s_add_u32 %s, %s, %d' % (T3, I, c.rot))
            field(T1, X, 0, 1, 3); field(T2, T3, 0, 7, 0); a('s_add_u32 %s, %s, %s' % (sr(S_CBK), T1, T2))
        else:
            field(T1, X, 0, 1, 3); field(T2, I, 0, 7, 0); a('s_add_u32 %s, %s, %s' % (sr(S_CBK), T1, T2))
    elif c.map == '8x4':
        field(T1, X, 2, 1, 3); field(T2, I, 2, 7, 0); a('s_add_u32 %s, %s, %s' % (sr(S_RB), T1, T2))
        field(T1, X, 0, 3, 2); field(T2, I, 0, 3, 0); a('s_add_u32 %s, %s, %s' % (sr(S_CBK), T1, T2))
    elif c.map == 'split':
        field(sr(S_KH), X, 0, 1, 0)
        field(T1, X, 1, 1, 3); field(T2, I, 2, 7, 0); a('s_add_u32 %s, %s, %s' % (sr(S_RB), T1, T2))
        field(T1, X, 2, 1, 2); field(T2, I, 0, 3, 0); a('s_add_u32 %s, %s, %s' % (sr(S_CBK), T1, T2))
    a('s_lshl_b32 %s, %s, 7' % (sr(S_ROW), sr(S_RB)))
    a('s_mul_i32 %s, %s, %d' % (sr(S_COL), sr(S_CBK), BN))
    a('v_lshrrev_b32 v1, 6, v0')
    a('v_and_b32 v2, 63, v0')
    a('s_nop 0')
    a('v_readfirstlane_b32 %s, v1' % sr(S_WAVE))
    a('s_mov_b32 %s, 0x%x' % (sr(S_C0), f2u(C0)))
    a('s_mov_b32 %s, 0x%x' % (sr(S_C1), f2u(C1)))
    a('s_mov_b32 %s, 0xffff0000' % sr(S_MASK))
    a('s_waitcnt lgkmcnt(0)')
    if c.prof:
        a('s_memrealtime s[96:97]')
    mk_srd(a, SRD_T, c.T, c.Tbytes)
    mk_srd(a, SRD_W, c.W, c.Wbytes)
    a('s_cmp_ge_u32 %s, 4' % sr(S_WAVE))
    a('s_cbranch_scc1 %s' % L('prod'))

    def common_srds():
        mk_srd(a, SRD_O, c.O, c.Obytes)
        if c.R is not None:
            mk_srd(a, SRD_R, c.R, S_ * c.Rstride)
        if c.epi in ('resid_stats', 'gelu_pre'):
            mk_srd(a, SRD_X, ('ws', WS_PART2), 16 * S_ * 8)
            mk_srd(a, SRD_Y, ('ws', WS_CS3), 16 * F_ * 4)
        if c.split:
            mk_srd(a, SRD_X, ('ws', WS_XCH), 256 * 32768)
            mk_srd(a, SRD_Y, 'dbg', 256)

    V_RES, V_RBG, V_RBR = 240, 248, 252
    RB_SH = 3 if BN == 64 else 4
    def rb_idx(q, vrow, vch, vtmp):
        a('s_lshl_b32 %s, %s, 7' % (T0, sr(S_WAVE)))
        a('s_add_u32 %s, %s, %d' % (T0, T0, q * 64))
        a('v_add_u32 %s, %s, v2' % (vr(vtmp), T0))
        a('v_lshrrev_b32 %s, %d, %s' % (vr(vrow), RB_SH, vr(vtmp)))
        a('v_and_b32 %s, %d, %s' % (vr(vch), (1 << RB_SH) - 1, vr(vtmp)))
    def resid_loads():
        n = 0
        for q in range(2):
            rb_idx(q, 3, 4, 5)
            a('v_add_u32 v3, %s, v3' % sr(S_ROW))
            if c.split:
                a('s_lshl_b32 %s, %s, 6' % (T1, sr(S_KH)))
                a('v_add_u32 v3, %s, v3' % T1)
            a('v_lshlrev_b32 v4, 4, v4')
            a('s_lshl_b32 %s, %s, 1' % (T1, sr(S_COL)))
            a('v_add_u32 v4, %s, v4' % T1)
            a('v_mul_u32_u24 v5, %d, v3' % c.Ostride)
            a('v_add_u32 %s, v5, v4' % vr(V_RBG + q))
            if c.R is not None:
                a('v_mul_u32_u24 v5, %d, v3' % c.Rstride)
                a('v_add_u32 %s, v5, v4' % vr(V_RBR + q))
                a('buffer_load_dwordx4 %s, %s, %s, 0 offen' % (vr(V_RES + 4 * q, 4), vr(V_RBR + q), sr(SRD_R, 4)))
                n += 1
        return n

    def pf(item, onlywave=None):
        buf, nbytes, stride, sh, maxl, row_xcd, row_idx, rows_cu, col_xcd = item
        mk_srd(a, SRD_P, buf, nbytes)
        rpi = 64 >> sh
        per_wave = rows_cu // 4
        n = max(1, per_wave // rpi)
        def term(dst, spec):
            shr, msk, mul = spec
            a('s_lshr_b32 %s, %s, %d' % (dst, X, shr))
            a('s_and_b32 %s, %s, %d' % (dst, dst, msk))
            a('s_mul_i32 %s, %s, %d' % (dst, dst, mul))
        term(T0, row_xcd)
        a('s_mul_i32 %s, %s, %d' % (T1, I, row_idx))
        a('s_add_u32 %s, %s, %s' % (T0, T0, T1))
        a('s_mul_i32 %s, %s, %d' % (T1, sr(S_WAVE), per_wave))
        a('s_add_u32 %s, %s, %s' % (T0, T0, T1))
        term(T1, col_xcd)
        a('v_lshrrev_b32 v6, %d, v2' % sh)
        a('v_add_u32 v6, %s, v6' % T0)
        a('s_mov_b32 %s, %d' % (T2, stride))
        a('v_mul_lo_u32 v6, v6, %s' % T2)
        a('v_and_b32 v7, %d, v2' % ((1 << sh) - 1))
        if maxl < (1 << sh) - 1:
            a('v_min_u32 v7, %d, v7' % maxl)
        a('v_lshl_add_u32 v6, v7, 7, v6')
        a('v_add_u32 v6, %s, v6' % T1)
        for q in range(n):
            a('s_mov_b32 %s, %d' % (T2, q * rpi * stride))
            a('buffer_load_dword v250, v6, %s, %s offen' % (sr(SRD_P, 4), T2))

    cp_n = [0]
    def code_pf(target, nchunks, forward, skip=None):
        cp_n[0] += 1
        here = L('cpf%d' % cp_n[0])
        done = skip or (here + '_d')
        a('s_cmp_lg_u32 %s, 3' % sr(S_WAVE))
        a('s_cbranch_scc1 %s' % done)
        a('s_getpc_b64 s[4:5]')
        a.label(here)
        if forward:
            a('s_add_u32 s4, s4, %s-%s' % (target, here))
            a('s_addc_u32 s5, s5, 0')
        else:
            a('s_sub_u32 s4, s4, %s-%s' % (here, target))
            a('s_subb_u32 s5, s5, 0')
        a('s_and_b32 %s, %s, %d' % (T0, I, nchunks - 1))
        a('s_lshl_b32 %s, %s, 13' % (T0, T0))
        a('v_lshlrev_b32 v6, 7, v2')
        a('v_add_u32 v6, %s, v6' % T0)
        a('v_min_u32 v6, %s_end-%s-4, v6' % (target, target))
        a('global_load_dword v250, v6, s[4:5]')
        if skip is None:
            a.label(done)

    for (target, nch, fwd) in c.code0:
        code_pf(target, nch, fwd)
    a('s_lshr_b32 %s, %s, 1' % (sr(S_I), sr(S_WAVE)))
    a('s_and_b32 %s, %s, 1' % (sr(S_J), sr(S_WAVE)))
    VT = [[None] * 4, [None] * 4]
    VW = [[None] * CB, [None] * CB]
    nxt = 32
    for st in range(2):
        for tb in range(4):
            VT[st][tb] = nxt; nxt += 4
        for cb in range(CB):
            VW[st][cb] = nxt; nxt += 4
    assert nxt <= 128
    ACC = [[None] * CB for _ in range(4)]
    nxt = 128
    for tb in range(4):
        for cb in range(CB):
            ACC[tb][cb] = nxt; nxt += 4
    assert nxt <= 240
    NWA = 4 if BN == 128 else 2
    bT = [8, 9]; aT = [10, 11]
    bW = [12, 13, 14, 15][:NWA]; aW = [16, 17, 18, 19][:NWA]
    a('v_and_b32 v3, 15, v2')
    a('v_lshrrev_b32 v4, 4, v2')
    a('s_lshl_b32 %s, %s, 13' % (T0, sr(S_I)))
    a('v_lshlrev_b32 v5, 7, v3')
    a('v_lshrrev_b32 v6, 1, v3')
    a('v_xor_b32 v6, v6, v4')
    a('v_lshlrev_b32 v6, 4, v6')
    a('v_add3_u32 %s, v5, v6, %s' % (vr(bT[0]), T0))
    a('v_xor_b32 %s, 64, %s' % (vr(bT[1]), vr(bT[0])))
    a('v_lshrrev_b32 v5, 2, v3')
    a('v_lshl_add_u32 v6, v4, 3, v5')
    a('v_and_b32 v7, 3, v2')
    if BN == 64:
        a('v_lshlrev_b32 v6, 7, v6')
        a('v_lshl_add_u32 v6, v7, 3, v6')
        a('v_lshrrev_b32 v5, 1, v5')
        a('v_and_b32 v7, 1, v4')
        a('v_lshl_or_b32 v5, v7, 1, v5')
        a('s_lshl_b32 %s, %s, 1' % (T0, sr(S_J)))
        a('v_xor_b32 v5, %s, v5' % T0)
        a('v_lshl_add_u32 v6, v5, 5, v6')
        a('v_add_u32 %s, 16384, v6' % vr(bW[0]))
        a('v_xor_b32 %s, 32, %s' % (vr(bW[1]), vr(bW[0])))
        woff = lambda s, cb, h: s * 4096 + h * 512
        wreg = lambda cb: cb
    elif BN == 128:
        a('v_lshlrev_b32 v6, 8, v6')
        a('v_lshl_add_u32 v6, v7, 3, v6')
        a('v_and_b32 v7, 1, v4')
        a('v_lshl_or_b32 v5, v7, 2, v5')
        a('s_lshl_b32 %s, %s, 2' % (T0, sr(S_J)))
        a('v_xor_b32 v5, %s, v5' % T0)
        a('v_lshl_add_u32 v6, v5, 5, v6')
        a('v_add_u32 %s, 16384, v6' % vr(bW[0]))
        for cb in range(1, 4):
            a('v_xor_b32 %s, %d, %s' % (vr(bW[cb]), 32 * cb, vr(bW[0])))
        woff = lambda s, cb, h: s * 8192 + h * 1024
        wreg = lambda cb: cb
    else:
        a('v_mul_u32_u24 v6, 448, v6')
        a('v_lshl_add_u32 v6, v7, 3, v6')
        a('s_mul_i32 %s, %s, %d' % (T0, sr(S_J), 7 * 32))
        a('s_add_u32 %s, %s, 16384' % (T0, T0))
        a('v_add_u32 v6, %s, v6' % T0)
        a('v_and_b32 v7, 1, v4')
        a('v_lshlrev_b32 v7, 5, v7')
        a('v_add_u32 v5, v6, v7')
        a('v_sub_u32 v6, v6, v7')
        a('s_cmp_eq_u32 %s, 0' % sr(S_J))
        a('s_cselect_b64 vcc, -1, 0')
        a('v_cndmask_b32 %s, v6, v5, vcc' % vr(bW[0]))
        a('v_cndmask_b32 %s, v5, v6, vcc' % vr(bW[1]))
        woff = lambda s, cb, h: cb * 32 + s * 32 * 448 + h * 4 * 448
        wreg = lambda cb: cb & 1
    for tb in range(4):
        for cb in range(CB):
            for r in range(4):
                a('v_mov_b32 %s, 0' % vr(ACC[tb][cb] + r))
    SUMA, GRA, CSA, ONES = [176, 180], [184, 188], 192, 196
    if c.epi == 'gelu_inloop':
        for r in range(176, 196):
            a('v_mov_b32 %s, 0' % vr(r))
        for r in range(4):
            a('v_mov_b32 %s, 0x3f803f80' % vr(ONES + r))
    common_srds()
    if BN != 224:
        resid_loads()

    def grp_setup():
        a('s_lshr_b32 %s, %s, 1' % (T0, X))
        a('s_lshl_b32 %s, %s, 9' % (T0, T0))
        a('s_lshl_b32 %s, %s, 4' % (T1, I))
        a('s_add_u32 %s, %s, %s' % (T0, T0, T1))
        a('v_and_b32 v5, 15, v2')
        a('v_add_u32 v5, %s, v5' % T0)
        a('v_lshlrev_b32 v5, 11, v5')
        a('v_lshrrev_b32 v6, 4, v2')
        a('v_lshl_add_u32 v20, v6, 7, v5')
        a('v_and_b32 v5, 7, v2')
        a('v_lshlrev_b32 v5, 7, v5')
        a('v_bfe_u32 v7, v2, 3, 1')
        a('s_lshl_b32 %s, %s, 1' % (T0, I))
        a('v_add_u32 v7, %s, v7' % T0)
        a('v_lshl_add_u32 v7, v6, 6, v7')
        a('v_lshlrev_b32 v7, 11, v7')
        a('s_and_b32 %s, %s, 1' % (T0, X))
        a('s_lshl_b32 %s, %s, 10' % (T0, T0))
        a('v_add3_u32 v21, v5, v7, %s' % T0)
    def grp_pf(g, skip):
        a('s_cmp_gt_u32 %s, 1' % sr(S_WAVE))
        a('s_cbranch_scc1 %s' % skip)
        a('s_cmp_eq_u32 %s, 1' % sr(S_WAVE))
        lab = L('gw%d_%s' % (g, skip[-6:].replace('_', 'x')))
        a('s_cbranch_scc1 %s' % lab)
        a('s_mov_b32 %s, %d' % (T0, g * 512))
        a('buffer_load_dword v250, v20, %s, %s offen' % (sr(SRD_T, 4), T0))
        a('s_branch %s' % skip)
        a.label(lab)
        a('s_mov_b32 %s, %d' % (T0, g * 4 * 64 * 2048))
        a('buffer_load_dword v250, v21, %s, %s offen' % (sr(SRD_W, 4), T0))
    if c.grp0:
        grp_setup()
        for g in c.grp0:
            grp_pf(g, L('g0s%d' % g))
            a.label(L('g0s%d' % g))

    def reads(st, s):
        r = []
        order = [('T', 0), ('W', 0), ('T', 1), ('T', 2), ('T', 3)] + [('W', cb) for cb in range(1, CB)]
        for kind, i in order:
            if kind == 'T':
                r.append('ds_read_b128 %s, %s offset:%d' % (vr(VT[st][i], 4), vr(aT[s]), i * 2048))
            else:
                r.append('ds_read_b64_tr_b16 %s, %s offset:%d' % (vr(VW[st][i], 2), vr(aW[wreg(i)]), woff(s, i, 0)))
                r.append('ds_read_b64_tr_b16 %s, %s offset:%d' % (vr(VW[st][i] + 2, 2), vr(aW[wreg(i)]), woff(s, i, 1)))
        return r
    def mf(d, x, y):
        return 'v_mfma_f32_16x16x32_bf16 %s, %s, %s, %s' % (vr(d, 4), vr(x, 4), vr(y, 4), vr(d, 4))
    def mfmas(st, j=None, i=None):
        m = []
        for cb in range(CB):
            for tb in range(4):
                m.append(mf(ACC[tb][cb], VW[st][cb], VT[st][tb]))
        if c.epi == 'gelu_inloop' and c.stats == 'mfma':
            for z in range(2):
                tb = 2 * j + z
                m.append(mf(SUMA[z], ONES, VT[st][tb]))
                m.append(mf(GRA[z], VT[st][tb], VT[st][tb]))
            m.append(mf(CSA, VW[st][i], ONES))
        return m
    DS = 176
    def dots(st, j, i):
        if not (c.epi == 'gelu_inloop' and c.stats == 'dot'):
            return []
        e = []
        for d in range(4):
            for z in range(2):
                tb = 2 * j + z
                ch = (d & 1) * 4
                e.append('v_dot2c_f32_bf16 %s, %s, %s' % (vr(DS + ch + 2 * z), vr(VT[st][tb] + d), vr(ONES)))
                e.append('v_dot2c_f32_bf16 %s, %s, %s' % (vr(DS + ch + 2 * z + 1), vr(VT[st][tb] + d), vr(VT[st][tb] + d)))
            e.append('v_dot2c_f32_bf16 %s, %s, %s' % (vr(DS + 8 + (d & 1)), vr(VW[st][i] + d), vr(ONES)))
        return e
    def interleave(ms, rs, es=()):
        rs = list(rs); es = list(es)
        n = len(ms)
        for k, m in enumerate(ms):
            a(m)
            if rs:
                a(rs.pop(0))
            q = -(-len(es) // (n - k))
            for _ in range(q):
                a(es.pop(0))
        for r_ in rs: a(r_)
    def setaddr(regs):
        for ar, br in regs:
            a('v_add_u32 %s, %s, %s' % (vr(ar), sr(S_SLOT), vr(br)))
    WA = list(zip(aW, bW))

    ool = []
    def mainloop(tag, j, i):
        a('s_mov_b32 %s, 0' % sr(S_SLOT))
        if c.early:
            a('s_cmp_eq_u32 %s, %s' % (sr(S_I), sr(S_KH)))
            a('s_cselect_b32 %s, %d, %d' % (sr(S_CNT), NS, NF))
        else:
            a('s_mov_b32 %s, %d' % (sr(S_CNT), NS))
        a('s_barrier')
        setaddr([(aT[0], bT[0]), (aT[1], bT[1])] + WA)
        for r_ in reads(0, 0): a(r_)
        a.label(L('loop' + tag))
        for n_, (it, items) in enumerate(c.pf_at):
            lab = L('pfat%d%s' % (n_, tag)); ret = lab + '_r'
            a('s_cmp_eq_u32 %s, %d' % (sr(S_CNT), NS - it))
            a('s_cbranch_scc1 %s' % lab)
            a.label(ret)
            ool.append((lab, items, ret))
        a('s_waitcnt lgkmcnt(0)')
        interleave(mfmas(0, j, i), reads(1, 1), dots(0, j, i))
        a('s_add_u32 %s, %s, %d' % (sr(S_SLOT), sr(S_SLOT), STAGE))
        a('s_cmp_eq_u32 %s, %d' % (sr(S_SLOT), S * STAGE))
        a('s_cselect_b32 %s, 0, %s' % (sr(S_SLOT), sr(S_SLOT)))
        setaddr([(aT[0], bT[0])] + WA)
        a('s_waitcnt lgkmcnt(0)')
        a('s_barrier')
        interleave(mfmas(1, j, i), reads(0, 0), dots(1, j, i))
        setaddr([(aT[1], bT[1])])
        a('s_sub_u32 %s, %s, 1' % (sr(S_CNT), sr(S_CNT)))
        a('s_cmp_lg_u32 %s, 0' % sr(S_CNT))
        a('s_cbranch_scc1 %s' % L('loop' + tag))

    if c.epi == 'gelu_inloop':
        for w in range(4):
            if w < 3:
                a('s_cmp_lg_u32 %s, %d' % (sr(S_WAVE), w))
                a('s_cbranch_scc1 %s' % L('ver%d' % (w + 1)))
            mainloop('_%d' % w, w & 1, w >> 1)
            a('s_branch %s' % L('after'))
            if w < 3:
                a.label(L('ver%d' % (w + 1)))
    else:
        mainloop('', 0, 0)
        a('s_branch %s' % L('after'))
    for lab, items, ret in ool:
        a.label(lab)
        for item in items:
            if item[0] == 'grp':
                grp_pf(item[1], ret)
                continue
            if item[0] == 'bad':
                _, buf, nbytes, k0, wv = item
                a('s_cmp_lg_u32 %s, %d' % (sr(S_WAVE), wv))
                a('s_cbranch_scc1 %s' % ret)
                mk_srd(a, SRD_P, buf, nbytes)
                a('s_lshl_b32 %s, %s, 6' % (T0, I))
                a('s_add_u32 %s, %s, %d' % (T0, T0, k0))
                a('v_add_u32 v6, %s, v2' % T0)
                a('v_lshlrev_b32 v6, 11, v6')
                a('s_and_b32 %s, %s, 1' % (T0, X))
                a('s_lshl_b32 %s, %s, 10' % (T0, T0))
                a('s_add_u32 %s, %s, 384' % (T0, T0))
                a('buffer_load_dword v250, v6, %s, %s offen' % (sr(SRD_P, 4), T0))
                continue
            if item[0] == 'bad2':
                _, buf, nbytes, wv = item
                a('s_cmp_lg_u32 %s, %d' % (sr(S_WAVE), wv))
                a('s_cbranch_scc1 %s' % ret)
                mk_srd(a, SRD_P, buf, nbytes)
                a('s_and_b32 %s, %s, 1' % (T1, X))
                a('s_mul_i32 %s, %s, 1792' % (T1, T1))
                a('s_lshl_b32 %s, %s, 6' % (T0, I))
                a('s_add_u32 %s, %s, %s' % (T0, T0, T1))
                a('v_add_u32 v6, %s, v2' % T0)
                a('v_lshlrev_b32 v6, 11, v6')
                a('s_lshr_b32 %s, %s, 2' % (T0, X))
                a('s_lshl_b32 %s, %s, 10' % (T0, T0))
                a('s_add_u32 %s, %s, 384' % (T0, T0))
                a('buffer_load_dword v250, v6, %s, %s offen' % (sr(SRD_P, 4), T0))
                continue
            if item[0] == 'code':
                code_pf(item[1], item[2], True, ret)
                continue
            if item[0] == 'onlywave':
                a('s_cmp_lg_u32 %s, %d' % (sr(S_WAVE), item[1]))
                a('s_cbranch_scc1 %s' % ret)
                item = item[2]
            pf(item)
        a('s_branch %s' % ret)
    a.label(L('after'))
    a('s_waitcnt lgkmcnt(0)')
    a('s_nop 7')
    a('s_nop 7')
    a('v_and_b32 v3, 15, v2')
    a('v_lshrrev_b32 v4, 4, v2')
    if c.early:
        XL = 131072
        a('s_lshl_b32 %s, s2, 15' % T3)
        a('s_lshl_b32 %s, %s, 14' % (T0, sr(S_J)))
        a('s_add_u32 %s, %s, %s' % (T3, T3, T0))
        a('v_lshlrev_b32 v6, 4, v2')
        a('s_cmp_eq_u32 %s, %s' % (sr(S_I), sr(S_KH)))
        a('s_cbranch_scc1 %s' % L('keep'))
        a('v_add_u32 v7, %s, v6' % T3)
        for tb in range(4):
            for cb in range(4):
                a('s_mov_b32 %s, %d' % (T0, (tb * 4 + cb) * 1024))
                a('buffer_store_dwordx4 %s, v7, %s, %s offen sc1' % (vr(ACC[tb][cb], 4), sr(SRD_X, 4), T0))
        mk_srd(a, SRD_Y, ('ws', WS_FLAG), 512 * 128)
        a('s_lshl_b32 %s, s2, 1' % T0)
        a('s_add_u32 %s, %s, %s' % (T0, T0, sr(S_J)))
        a('s_lshl_b32 %s, %s, 7' % (T1, T0))
        a('s_xor_b32 %s, %s, 256' % (T2, T1))
        a('v_mov_b32 v8, %s' % T2)
        a('v_mov_b32 v9, 1')
        a('v_mov_b32 v12, %s' % T1)
        a('v_cmp_eq_u32 vcc, 0, v2')
        a('v_mov_b32 v10, 0x%x' % OOB)
        a('s_nop 0')
        a('v_cndmask_b32 v10, v10, v12, vcc')
        a('s_xor_b32 %s, %s, 0x8000' % (T3, T3))
        a('v_add_u32 v7, %s, v6' % T3)
        a('s_add_u32 %s, %s, %d' % (T0, T3, 0))
        a('s_lshl_b32 %s, %s, 14' % (T0, sr(S_J)))
        a('v_add_u32 v11, %s, v6' % T0)
        a('v_add_u32 v11, %d, v11' % XL)
        a('s_mov_b32 s4, 0')
        NB_REM = NS - NF
        WAITB = min(c.ackb, NB_REM)
        def try_fetch(tag):
            skip = L('tf%s' % tag)
            a('s_cmp_lg_u32 s4, 0')
            a('s_cbranch_scc1 %s' % skip)
            a('s_waitcnt vmcnt(0)')
            a('v_readfirstlane_b32 %s, v20' % T1)
            a('s_nop 3')
            a('s_cmp_lg_u32 %s, 0' % T1)
            a('s_cbranch_scc1 %s' % (skip + 'g'))
            a('buffer_load_dword v20, v8, %s, 0 offen sc1' % sr(SRD_Y, 4))
            a('s_branch %s' % skip)
            a.label(skip + 'g')
            for n in range(16):
                a('s_mov_b32 %s, %d' % (T0, n * 1024))
                a('buffer_load_dwordx4 %s, v7, %s, %s offen sc1' % (vr(32 + 4 * n, 4), sr(SRD_X, 4), T0))
            a('s_mov_b32 s4, 1')
            a.label(skip)
        for n in range(NB_REM):
            a('s_barrier')
            if n + 1 == WAITB:
                a('s_waitcnt vmcnt(0)')
                a('buffer_store_dword v9, v10, %s, 0 offen sc1' % sr(SRD_Y, 4))
                a('buffer_load_dword v20, v8, %s, 0 offen sc1' % sr(SRD_Y, 4))
            elif n + 1 in c.chk:
                try_fetch('%d' % n)
        a.label(L('fpoll'))
        try_fetch('z')
        a('s_cmp_eq_u32 s4, 0')
        a('s_cbranch_scc1 %s' % L('fpoll'))
        for n in range(16):
            a('s_waitcnt vmcnt(%d)' % (15 - n))
            a('ds_write_b128 v11, %s offset:%d' % (vr(32 + 4 * n, 4), n * 1024))
        a('s_waitcnt lgkmcnt(0)')
        a('s_barrier')
        a('s_branch %s' % L('store'))
        a.label(L('keep'))
        a('s_lshl_b32 %s, %s, 14' % (T0, sr(S_J)))
        a('v_add_u32 v11, %s, v6' % T0)
        a('v_add_u32 v11, %d, v11' % XL)
        a('s_barrier')
        for n in range(16):
            a('ds_read_b128 %s, v11 offset:%d' % (vr(32 + 4 * n, 4), n * 1024))
        for tb in range(4):
            a('s_waitcnt lgkmcnt(%d)' % (12 - 4 * tb))
            for cb in range(4):
                for h in range(2):
                    d = ACC[tb][cb] + 2 * h; s_ = 32 + (tb * 4 + cb) * 4 + 2 * h
                    a('v_pk_add_f32 %s, %s, %s' % (vr(d, 2), vr(d, 2), vr(s_, 2)))
        a('s_lshl_b32 %s, %s, 7' % (T1, sr(S_J)))
        a('v_mul_u32_u24 v5, %d, v3' % RS)
        a('v_lshl_add_u32 v5, v4, 3, v5')
        a('v_add_u32 v5, %s, v5' % T1)
    elif c.split:
        a('s_lshl_b32 %s, s2, 15' % T3)
        a('s_lshl_b32 %s, %s, 14' % (T0, sr(S_J)))
        a('s_add_u32 %s, %s, %s' % (T3, T3, T0))
        a('v_lshlrev_b32 v6, 4, v2')
        a('s_cmp_eq_u32 %s, %s' % (sr(S_I), sr(S_KH)))
        a('s_cbranch_scc1 %s' % L('recv'))
        a('v_add_u32 v6, %s, v6' % T3)
        for tb in range(4):
            for cb in range(4):
                a('s_mov_b32 %s, %d' % (T0, (tb * 4 + cb) * 1024))
                a('buffer_store_dwordx4 %s, v6, %s, %s offen sc1' % (vr(ACC[tb][cb], 4), sr(SRD_X, 4), T0))
        a('s_waitcnt vmcnt(0)')
        a('s_barrier')
        a('s_branch %s' % L('store'))
        a.label(L('recv'))
        a('s_barrier')
        a('s_xor_b32 %s, s2, 1' % T0)
        a('s_lshr_b32 %s, %s, 2' % (T1, T0))
        a('s_lshl_b32 %s, %s, 2' % (T1, T1))
        a('s_and_b32 %s, %s, 3' % (T2, T0))
        a('s_lshl_b32 %s, %s, 3' % (T2, T2))
        a('v_mov_b32 v7, %s' % T1)
        a.label(L('poll'))
        a('buffer_load_dword v20, v7, %s, 0 offen sc1' % sr(SRD_Y, 4))
        a('s_waitcnt vmcnt(0)')
        a('v_readfirstlane_b32 %s, v20' % T1)
        a('s_nop 3')
        a('s_lshr_b32 %s, %s, %s' % (T1, T1, T2))
        a('s_and_b32 %s, %s, 0xff' % (T1, T1))
        a('s_cmp_lg_u32 %s, 0' % T1)
        a('s_cbranch_scc1 %s' % L('got'))
        a('s_sleep 1')
        a('s_branch %s' % L('poll'))
        a.label(L('got'))
        a('s_xor_b32 %s, %s, 0x8000' % (T3, T3))
        a('v_add_u32 v6, %s, v6' % T3)
        for tb in range(4):
            for cb in range(4):
                a('s_mov_b32 %s, %d' % (T0, (tb * 4 + cb) * 1024))
                a('buffer_load_dwordx4 %s, v6, %s, %s offen sc1' % (vr(32 + (tb * 4 + cb) * 4, 4), sr(SRD_X, 4), T0))
        for tb in range(4):
            a('s_waitcnt vmcnt(%d)' % (12 - 4 * tb))
            for cb in range(4):
                for h in range(2):
                    d = ACC[tb][cb] + 2 * h; s_ = 32 + (tb * 4 + cb) * 4 + 2 * h
                    a('v_pk_add_f32 %s, %s, %s' % (vr(d, 2), vr(d, 2), vr(s_, 2)))
        a('s_lshl_b32 %s, %s, 7' % (T1, sr(S_J)))
        a('v_mul_u32_u24 v5, %d, v3' % RS)
        a('v_lshl_add_u32 v5, v4, 3, v5')
        a('v_add_u32 v5, %s, v5' % T1)
    else:
        a('s_mul_i32 %s, %s, %d' % (T0, sr(S_I), 64 * RS))
        a('s_mul_i32 %s, %s, %d' % (T1, sr(S_J), CB * 32))
        a('s_add_u32 %s, %s, %s' % (T0, T0, T1))
        a('v_mul_u32_u24 v5, %d, v3' % RS)
        a('v_lshl_add_u32 v5, v4, 3, v5')
        a('v_add_u32 v5, %s, v5' % T0)
    PC, VC = 32, 80
    if gelu:
        if c.epi == 'gelu_inloop':
          if c.stats == 'mfma':
              GR_OFF = 32768; SM_OFF = GR_OFF + 8192; CS_OFF = SM_OFF + 512
              a('s_lshl_b32 %s, %s, 2' % (T0, sr(S_I)))
              a('s_lshl_b32 %s, %s, 1' % (T1, sr(S_J)))
              a('s_add_u32 %s, %s, %s' % (T0, T0, T1))
              a('s_lshl_b32 %s, %s, 10' % (T1, T0))
              a('v_lshlrev_b32 v6, 8, v4')
              a('v_lshl_add_u32 v6, v3, 2, v6')
              a('v_add_u32 v6, %s, v6' % T1)
              for z in range(2):
                  for r in range(4):
                      a('ds_write_b32 v6, %s offset:%d' % (vr(GRA[z] + r), GR_OFF + z * 1024 + r * 64))
              a('s_lshl_b32 %s, %s, 6' % (T1, T0))
              a('v_lshlrev_b32 v6, 2, v3')
              a('v_add_u32 v6, %s, v6' % T1)
              for z in range(2):
                  a('ds_write_b32 v6, %s offset:%d' % (vr(SUMA[z]), SM_OFF + z * 64))
              a('s_lshl_b32 %s, %s, 1' % (T0, sr(S_J)))
              a('s_add_u32 %s, %s, %s' % (T0, T0, sr(S_I)))
              a('s_lshl_b32 %s, %s, 6' % (T0, T0))
              a('v_lshlrev_b32 v6, 4, v4')
              a('v_add_u32 v6, %s, v6' % T0)
              a('ds_write_b128 v6, %s offset:%d' % (vr(CSA, 4), CS_OFF))
              a('s_waitcnt lgkmcnt(0)')
              a('s_barrier')
              a('s_lshl_b32 %s, %s, 8' % (T0, sr(S_I)))
              a('v_lshlrev_b32 v6, 2, v3')
              a('v_add_u32 v6, %s, v6' % T0)
              a('s_lshl_b32 %s, %s, 12' % (T0, sr(S_I)))
              a('v_mul_u32_u24 v7, 68, v3')
              a('v_add_u32 v7, %s, v7' % T0)
              for tb in range(4):
                  a('ds_read_b32 %s, v6 offset:%d' % (vr(48 + 2 * tb), SM_OFF + tb * 64))
                  a('ds_read_b32 %s, v7 offset:%d' % (vr(49 + 2 * tb), GR_OFF + tb * 1024))
          else:
            SP_OFF = 32768; CSP_OFF = SP_OFF + 4096; CS_OFF = CSP_OFF + 1024
            for r in range(4):
                a('v_add_f32 %s, %s, %s' % (vr(DS + r), vr(DS + r), vr(DS + 4 + r)))
            a('v_add_f32 %s, %s, %s' % (vr(DS + 8), vr(DS + 8), vr(DS + 9)))
            a('s_lshl_b32 %s, %s, 6' % (T0, sr(S_I)))
            a('s_lshl_b32 %s, %s, 5' % (T1, sr(S_J)))
            a('s_add_u32 %s, %s, %s' % (T0, T0, T1))
            a('v_add_u32 v6, %s, v3' % T0)
            a('v_lshlrev_b32 v6, 3, v6')
            a('v_lshl_add_u32 v6, v4, 10, v6')
            a('ds_write_b64 v6, %s offset:%d' % (vr(DS, 2), SP_OFF))
            a('ds_write_b64 v6, %s offset:%d' % (vr(DS + 2, 2), SP_OFF + 128))
            a('s_lshl_b32 %s, %s, 1' % (T0, sr(S_J)))
            a('s_add_u32 %s, %s, %s' % (T0, T0, sr(S_I)))
            a('s_lshl_b32 %s, %s, 4' % (T0, T0))
            a('v_add_u32 v6, %s, v3' % T0)
            a('v_lshlrev_b32 v6, 2, v6')
            a('v_lshl_add_u32 v6, v4, 8, v6')
            a('ds_write_b32 v6, %s offset:%d' % (vr(DS + 8), CSP_OFF))
            a('s_waitcnt lgkmcnt(0)')
            a('s_barrier')
            a('s_lshl_b32 %s, %s, 6' % (T0, sr(S_I)))
            a('v_add_u32 v6, %s, v3' % T0)
            a('v_lshlrev_b32 v6, 3, v6')
            for tb in range(4):
                for g in range(4):
                    a('ds_read_b64 %s, v6 offset:%d' % (vr(96 + (tb * 4 + g) * 2, 2), SP_OFF + tb * 128 + g * 1024))
            a('s_lshl_b32 %s, %s, 7' % (T0, sr(S_J)))
            a('v_lshlrev_b32 v7, 4, v4')
            a('v_add_u32 v7, %s, v7' % T0)
            for cb in range(2):
                for g in range(4):
                    a('ds_read_b128 %s, v7 offset:%d' % (vr(200 + (cb * 4 + g) * 4, 4), CSP_OFF + cb * 64 + g * 256))
            a('s_waitcnt lgkmcnt(0)')
            for tb in range(4):
                b = 96 + tb * 8
                for h in range(2):
                    a('v_add_f32 %s, %s, %s' % (vr(b + h), vr(b + h), vr(b + 2 + h)))
                    a('v_add_f32 %s, %s, %s' % (vr(b + 4 + h), vr(b + 4 + h), vr(b + 6 + h)))
                    a('v_add_f32 %s, %s, %s' % (vr(48 + 2 * tb + h), vr(b + h), vr(b + 4 + h)))
            for cb in range(2):
                b = 200 + cb * 16
                for r in range(4):
                    a('v_add_f32 %s, %s, %s' % (vr(b + r), vr(b + r), vr(b + 4 + r)))
                    a('v_add_f32 %s, %s, %s' % (vr(b + 8 + r), vr(b + 8 + r), vr(b + 12 + r)))
                    a('v_add_f32 %s, %s, %s' % (vr(VC + 4 * cb + r), vr(b + r), vr(b + 8 + r)))
        else:
            SP_OFF = S * STAGE; CS_OFF = SP_OFF + 2048
            a('s_lshl_b32 %s, %s, 6' % (T0, sr(S_I)))
            a('v_add_u32 v6, %s, v3' % T0)
            a('v_lshlrev_b32 v6, 3, v6')
            a('v_add_u32 v6, 0x%x, v6' % SP_OFF)
            for tb in range(4):
                a('ds_read_b64 %s, v6 offset:%d' % (vr(48 + 2 * tb, 2), tb * 128))
                a('ds_read_b64 %s, v6 offset:%d' % (vr(56 + 2 * tb, 2), tb * 128 + 1024))
        if not (c.epi == 'gelu_inloop' and c.stats == 'dot'):
            a('s_mul_i32 %s, %s, %d' % (T0, sr(S_J), CB * 64))
            a('s_add_u32 %s, %s, 0x%x' % (T0, T0, CS_OFF))
            a('v_lshlrev_b32 v10, 4, v4')
            a('v_add_u32 v10, %s, v10' % T0)
            for cb in range(CB):
                a('ds_read_b128 %s, v10 offset:%d' % (vr(VC + 4 * cb, 4), cb * 64))
            a('s_waitcnt lgkmcnt(0)')
        chains = []
        for tb in range(4):
            ch = []
            e = ch.append
            sm, sq = 48 + 2 * tb, 49 + 2 * tb
            if c.epi == 'gelu_pre':
                e('v_add_f32 %s, %s, %s' % (vr(sm), vr(sm), vr(56 + 2 * tb)))
                e('v_add_f32 %s, %s, %s' % (vr(sq), vr(sq), vr(57 + 2 * tb)))
            NM, A0c, A1c, SI = PC + 4 * tb, PC + 4 * tb + 1, PC + 4 * tb + 2, PC + 4 * tb + 3
            e('v_mul_f32 %s, 0x%x, %s' % (vr(sm), f2u(1.0 / 1024), vr(sm)))
            e('v_mul_f32 %s, 0x%x, %s' % (vr(sq), f2u(1.0 / 1024), vr(sq)))
            e('v_fma_f32 %s, -%s, %s, %s' % (vr(sq), vr(sm), vr(sm), vr(sq)))
            e('v_max_f32 %s, 0, %s' % (vr(sq), vr(sq)))
            e('v_cvt_pk_bf16_f32 %s, %s, %s' % (vr(sm), vr(sm), vr(sq)))
            e('v_lshlrev_b32 %s, 16, %s' % (vr(NM), vr(sm)))
            e('v_and_b32 %s, %s, %s' % (vr(sq), sr(S_MASK), vr(sm)))
            e('v_xor_b32 %s, 0x80000000, %s' % (vr(NM), vr(NM)))
            e('v_add_f32 %s, 0x%x, %s' % (vr(sq), f2u(1e-5), vr(sq)))
            e('v_cvt_pk_bf16_f32 %s, %s, %s' % (vr(sq), vr(sq), vr(sq)))
            e('v_and_b32 %s, %s, %s' % (vr(sq), sr(S_MASK), vr(sq)))
            e('v_sqrt_f32 %s, %s' % (vr(sq), vr(sq)))
            e('v_cvt_pk_bf16_f32 %s, %s, %s' % (vr(sq), vr(sq), vr(sq)))
            e('v_and_b32 %s, %s, %s' % (vr(SI), sr(S_MASK), vr(sq)))
            e('v_rcp_f32 %s, %s' % (vr(sq), vr(SI)))
            e('v_mul_f32 %s, %s, %s' % (vr(A0c), sr(S_C0), vr(sq)))
            e('v_mul_f32 %s, %s, %s' % (vr(sm), vr(sq), vr(sq)))
            e('v_mul_f32 %s, %s, %s' % (vr(sm), vr(sm), vr(sq)))
            e('v_mul_f32 %s, %s, %s' % (vr(A1c), sr(S_C1), vr(sm)))
            chains.append(ch)
        for k in range(len(chains[0])):
            for ch in chains:
                a(ch[k])
    def finish_tiles(tiles):
        prs = []
        tmp = 16
        for (tb, cb) in tiles:
            for h in range(2):
                prs.append((ACC[tb][cb] + 2 * h, VC + 4 * cb + 2 * h, tb, tmp)); tmp += 2
        assert tmp <= 32
        if gelu:
            for (y, cs, tb, t) in prs:
                a('v_pk_fma_f32 %s, %s, %s, %s op_sel_hi:[1,0,1]' % (vr(y, 2), vr(cs, 2), vr(PC + 4 * tb, 2), vr(y, 2)))
            for (y, cs, tb, t) in prs:
                a('v_pk_mul_f32 %s, %s, %s' % (vr(t, 2), vr(y, 2), vr(y, 2)))
            for (y, cs, tb, t) in prs:
                a('v_pk_fma_f32 %s, %s, %s, %s op_sel:[0,0,1] op_sel_hi:[1,0,1]' % (vr(t, 2), vr(t, 2), vr(PC + 4 * tb + 2, 2), vr(PC + 4 * tb, 2)))
            for (y, cs, tb, t) in prs:
                a('v_pk_mul_f32 %s, %s, %s' % (vr(t, 2), vr(t, 2), vr(y, 2)))
            for (y, cs, tb, t) in prs:
                a('v_exp_f32 %s, %s' % (vr(t), vr(t)))
                a('v_exp_f32 %s, %s' % (vr(t + 1), vr(t + 1)))
            for (y, cs, tb, t) in prs:
                a('v_pk_fma_f32 %s, %s, %s, %s op_sel:[0,1,1] op_sel_hi:[1,1,1]' % (vr(t, 2), vr(t, 2), vr(PC + 4 * tb + 2, 2), vr(PC + 4 * tb + 2, 2)))
            for (y, cs, tb, t) in prs:
                a('v_rcp_f32 %s, %s' % (vr(t), vr(t)))
                a('v_rcp_f32 %s, %s' % (vr(t + 1), vr(t + 1)))
            for (y, cs, tb, t) in prs:
                a('v_pk_mul_f32 %s, %s, %s' % (vr(y, 2), vr(y, 2), vr(t, 2)))
        for (tb, cb) in tiles:
            A0 = ACC[tb][cb]
            a('v_cvt_pk_bf16_f32 %s, %s, %s' % (vr(A0), vr(A0), vr(A0 + 1)))
            a('v_cvt_pk_bf16_f32 %s, %s, %s' % (vr(A0 + 1), vr(A0 + 2), vr(A0 + 3)))
        for (tb, cb) in tiles:
            a('ds_write_b64 v5, %s offset:%d' % (vr(ACC[tb][cb], 2), tb * 16 * RS + cb * 32))
    if BN != 224:
        for tb in range(4):
            finish_tiles([(tb, cb) for cb in range(CB)])
        a('s_waitcnt lgkmcnt(0)')
        a('s_branch %s' % L('store'))
    else:
        for tb in range(4):
            tl = [(tb, cb) for cb in range(CB)]
            finish_tiles(tl[0:4]); finish_tiles(tl[4:7])
            a('s_waitcnt lgkmcnt(0)')
            a('s_barrier')
        a('s_endpgm')

    a.label(L('prod'))
    a('s_sub_u32 %s, %s, 4' % (sr(S_ROLE), sr(S_WAVE)))
    a('v_lshrrev_b32 v3, 3, v2')
    a('v_and_b32 v4, 7, v2')
    a('v_lshrrev_b32 v5, 4, v2')
    a('s_lshl_b32 %s, %s, 5' % (T0, sr(S_ROLE)))
    a('s_add_u32 %s, %s, %s' % (T0, T0, sr(S_ROW)))
    a('s_mov_b32 %s, %d' % (T1, c.Tstride))
    a('v_add_u32 v6, %s, v3' % T0)
    a('v_mul_lo_u32 v6, v6, %s' % T1)
    if c.split and not c.early:
        a('s_mul_i32 %s, %s, %d' % (T0, sr(S_KH), KLEN * 2))
        a('v_add_u32 v6, %s, v6' % T0)
    if c.early:
        a('s_mul_i32 s72, %s, %d' % (sr(S_KH), KLEN * 2))
        a('s_sub_u32 s73, %d, s72' % (KLEN * 2))
        a('s_mul_i32 s74, %s, %d' % (sr(S_KH), KLEN * c.Wstride))
        a('s_sub_u32 s75, %d, s74' % (KLEN * c.Wstride))
        a('s_lshl_b32 %s, %s, 6' % (T0, sr(S_KH)))
        a('s_lshl_b32 %s, %s, 4' % (T2, sr(S_ROLE)))
        a('s_add_u32 %s, %s, %s' % (T0, T0, T2))
        a('s_lshl_b32 s5, %s, 7' % T0)
        a('s_add_u32 %s, %s, %s' % (T0, T0, sr(S_ROW)))
        a('v_add_u32 v16, %s, v3' % T0)
        a('v_mul_lo_u32 v16, v16, %s' % T1)
        a('v_xor_b32 v7, v4, v5')
        a('v_xor_b32 v20, 4, v7')
        a('v_lshl_add_u32 v17, v20, 4, v16')
        a('v_add_u32 v17, %d, v17' % (8 * c.Tstride))
        a('v_lshl_add_u32 v16, v7, 4, v16')
    a('v_xor_b32 v7, v4, v5')
    a('v_lshl_add_u32 v8, v7, 4, v6')
    a('v_xor_b32 v7, 4, v7')
    a('v_lshl_add_u32 v9, v7, 4, v6')
    a('v_add_u32 v9, %d, v9' % (8 * c.Tstride))
    a('v_add_u32 v10, %d, v8' % (16 * c.Tstride))
    a('v_add_u32 v11, %d, v9' % (16 * c.Tstride))
    a('s_lshl_b32 %s, %s, 1' % (T2, sr(S_COL)))
    if c.split and not c.early:
        a('s_mul_i32 %s, %s, %d' % (T0, sr(S_KH), KLEN * c.Wstride))
        a('s_add_u32 %s, %s, %s' % (T2, T2, T0))
    a('s_mov_b32 %s, %d' % (T1, c.Wstride))
    if BN == 64:
        a('s_lshl_b32 %s, %s, 4' % (T0, sr(S_ROLE)))
        a('v_add_u32 v6, %s, v3' % T0)
        a('v_mul_lo_u32 v6, v6, %s' % T1)
        a('v_add_u32 v6, %s, v6' % T2)
        a('v_and_b32 v7, 1, v5')
        a('v_lshlrev_b32 v7, 1, v7')
        a('v_xor_b32 v7, v4, v7')
        a('v_lshl_add_u32 v12, v7, 4, v6')
        a('v_xor_b32 v7, 4, v7')
        a('v_lshl_add_u32 v13, v7, 4, v6')
        a('v_add_u32 v13, %d, v13' % (8 * c.Wstride))
    elif BN == 128:
        a('s_lshl_b32 %s, %s, 4' % (T0, sr(S_ROLE)))
        a('v_add_u32 v6, %s, v5' % T0)
        a('v_mul_lo_u32 v6, v6, %s' % T1)
        a('v_add_u32 v6, %s, v6' % T2)
        a('v_and_b32 v7, 15, v2')
        a('v_lshlrev_b32 v20, 1, v5')
        a('v_xor_b32 v7, v7, v20')
        a('v_lshl_add_u32 v12, v7, 4, v6')
        a('v_add_u32 v13, %d, v12' % (4 * c.Wstride))
        a('v_xor_b32 v7, 8, v7')
        a('v_lshl_add_u32 v14, v7, 4, v6')
        a('v_add_u32 v14, %d, v14' % (8 * c.Wstride))
        a('v_add_u32 v15, %d, v14' % (4 * c.Wstride))
    else:
        for q in range(NWQ):
            a('s_mul_i32 %s, %s, %d' % (T0, sr(S_ROLE), NWQ * 64))
            a('s_add_u32 %s, %s, %d' % (T0, T0, q * 64))
            a('v_add_u32 v6, %s, v2' % T0)
            a('v_mul_u32_u24 v7, 2341, v6')
            a('v_lshrrev_b32 v7, 16, v7')
            a('v_mul_u32_u24 v20, 28, v7')
            a('v_sub_u32 v6, v6, v20')
            a('v_bfe_u32 v20, v7, 3, 1')
            a('v_lshlrev_b32 v20, 1, v20')
            a('v_xor_b32 v6, v6, v20')
            a('v_mul_lo_u32 v7, v7, %s' % T1)
            a('v_lshl_add_u32 v6, v6, 4, v7')
            a('v_add_u32 %s, %s, v6' % (vr(12 + q), T2))
    a('s_lshl_b32 %s, %s, 12' % (sr(S_PT), sr(S_ROLE)))
    a('s_mul_i32 %s, %s, %d' % (sr(S_PW), sr(S_ROLE), NWQ * 1024))
    a('s_add_u32 %s, %s, 16384' % (sr(S_PW), sr(S_PW)))
    shift = [0]
    log = []
    def other(n):
        log.extend([('x',)] * n)
    def issue(st):
        slot = st % S
        if c.shift:
            d = [-1, 1, -2, 2][st // 4]
            if d != shift[0]:
                for q in range(4):
                    a('v_add_u32 %s, 0x%x, %s' % (vr(8 + q), ((d - shift[0]) * c.Tstride) & 0xffffffff, vr(8 + q)))
                shift[0] = d
        full = True
        if c.early:
            full = st < NF
            if st < NHALF:
                a('s_add_u32 %s, s72, 0x%x' % (sr(S_OFT), st * 128))
                a('s_add_u32 %s, s74, 0x%x' % (sr(S_OFW), st * 64 * c.Wstride))
            else:
                s2_ = NF + (st - NHALF)
                a('s_add_u32 %s, s73, 0x%x' % (sr(S_OFT), s2_ * 128))
                a('s_add_u32 %s, s75, 0x%x' % (sr(S_OFW), s2_ * 64 * c.Wstride))
        else:
            a('s_mov_b32 %s, 0x%x' % (sr(S_OFT), st * 128))
            a('s_mov_b32 %s, 0x%x' % (sr(S_OFW), st * 64 * c.Wstride))
        if full:
            for q in range(4):
                a('s_add_u32 m0, %s, 0x%x' % (sr(S_PT), slot * STAGE + q * 1024))
                a('s_nop 0')
                a('buffer_load_dwordx4 %s, %s, %s offen lds' % (vr(8 + q), sr(SRD_T, 4), sr(S_OFT)))
        else:
            for q in range(2):
                a('s_add_u32 m0, s5, 0x%x' % (slot * STAGE + q * 1024))
                a('s_nop 0')
                a('buffer_load_dwordx4 %s, %s, %s offen lds' % (vr(16 + q), sr(SRD_T, 4), sr(S_OFT)))
        for q in range(NWQ):
            a('s_add_u32 m0, %s, 0x%x' % (sr(S_PW), slot * STAGE + q * 1024))
            a('s_nop 0')
            a('buffer_load_dwordx4 %s, %s, %s offen lds' % (vr(12 + q), sr(SRD_W, 4), sr(S_OFW)))
        log.extend([('st', st)] * ((4 if full else 2) + NWQ))
        if st == NS - 1:
            after_last_issue()
    def pre_stats_loads():
        a('v_subrev_u32 v28, 256, v0')
        a('v_and_b32 v5, 127, v28')
        a('v_lshrrev_b32 v6, 7, v28')
        a('v_add_u32 v7, %s, v5' % sr(S_ROW))
        a('v_lshlrev_b32 v7, 3, v7')
        a('v_lshl_add_u32 v7, v6, 17, v7')
        for m in range(8):
            a('s_mov_b32 %s, 0x%x' % (T0, m * S_ * 8))
            a('buffer_load_dwordx2 %s, v7, %s, %s offen' % (vr(32 + 2 * m, 2), sr(SRD_X, 4), T0))
        a('v_add_u32 v22, %s, v28' % sr(S_COL))
        a('v_lshlrev_b32 v22, 2, v22')
        a('v_cmp_gt_u32 vcc, 224, v28')
        a('v_mov_b32 v23, 0x%x' % OOB)
        a('s_nop 0')
        a('v_cndmask_b32 v22, v23, v22, vcc')
        for m in range(16):
            a('s_mov_b32 %s, 0x%x' % (T0, m * F_ * 4))
            a('buffer_load_dword %s, v22, %s, %s offen' % (vr(48 + m), sr(SRD_Y, 4), T0))
        other(24)
    def pre_stats_finish():
        SP_OFF = S * STAGE
        CS_OFF = SP_OFF + 2048
        for m in range(1, 8):
            a('v_add_f32 v32, v32, %s' % vr(32 + 2 * m))
            a('v_add_f32 v33, v33, %s' % vr(33 + 2 * m))
        a('v_and_b32 v5, 127, v28')
        a('v_lshrrev_b32 v6, 7, v28')
        a('v_lshlrev_b32 v5, 3, v5')
        a('v_lshl_add_u32 v5, v6, 10, v5')
        a('v_add_u32 v5, 0x%x, v5' % SP_OFF)
        a('ds_write_b64 v5, v[32:33]')
        for m in range(1, 16):
            a('v_add_f32 v48, v48, %s' % vr(48 + m))
        a('v_lshlrev_b32 v5, 2, v28')
        a('v_add_u32 v5, 0x%x, v5' % CS_OFF)
        a('ds_write_b32 v5, v48')
        a('s_waitcnt lgkmcnt(0)')
    def after_last_issue():
        if BN != 224:
            other(resid_loads())
        if c.epi == 'resid_stats':
            mk_srd(a, SRD_P, 'w3', D_ * F_ * 2)
            a('s_and_b32 %s, s2, 15' % T0)
            a('s_lshl_b32 %s, %s, 6' % (T0, T0))
            a('s_lshl_b32 %s, %s, 4' % (T1, sr(S_ROLE)))
            a('s_add_u32 %s, %s, %s' % (T0, T0, T1))
            a('v_lshrrev_b32 v3, 5, v2')
            a('v_add_u32 v3, %s, v3' % T0)
            a('v_mul_u32_u24 v3, 7168, v3')
            a('v_and_b32 v4, 31, v2')
            a('v_lshl_add_u32 v3, v4, 4, v3')
            a('s_lshr_b32 %s, s2, 4' % T1)
            a('s_mul_i32 %s, %s, 448' % (T1, T1))
            a('v_add_u32 v3, %s, v3' % T1)
            a('v_cmp_gt_u32 vcc, 28, v4')
            a('v_mov_b32 v5, 0x%x' % OOB)
            a('s_nop 0')
            a('v_cndmask_b32 v3, v5, v3, vcc')
            for m in range(8):
                a('s_mov_b32 %s, 0x%x' % (T0, m * 2 * 7168))
                a('buffer_load_dwordx4 %s, v3, %s, %s offen' % (vr(64 + 4 * m, 4), sr(SRD_P, 4), T0))
            other(8)
    if c.prof:
        a('s_memrealtime s[98:99]')
    nxt_issue = 0
    for _ in range(min(c.first, S)):
        issue(nxt_issue); nxt_issue += 1
    common_srds()
    if c.prof:
        a('s_memrealtime s[100:101]')
    pre_idx = None
    for t in range(NS):
        lastpos = max(i for i, e in enumerate(log) if e == ('st', t))
        n_after = len(log) - 1 - lastpos
        assert n_after <= 63, n_after
        a('s_waitcnt vmcnt(%d)' % n_after)
        a('s_barrier')
        if c.prof and c.trace and t < 64:
            a('s_memrealtime s[6:7]')
            a('s_waitcnt lgkmcnt(0)')
            a('v_writelane_b32 v254, s6, %d' % t)
        if c.prof and t == 0:
            a('s_memrealtime s[78:79]')
            a('s_memtime s[92:93]')
        if c.prof and t == NS // 2:
            a('s_memrealtime s[88:89]')
        k = 0
        while nxt_issue < NS and nxt_issue <= max(S - 1, t - 1 + S) and k < c.rate:
            issue(nxt_issue); nxt_issue += 1; k += 1
        if c.epi == 'gelu_pre' and t == 0:
            pre_stats_loads(); pre_idx = len(log) - 1
            if c.zflags:
                mk_srd(a, SRD_P, ('ws', WS_FLAG), 512 * 128)
                a('s_lshl_b32 %s, s2, 8' % T0)
                a('v_lshlrev_b32 v6, 7, v2')
                a('v_add_u32 v6, %s, v6' % T0)
                a('v_cmp_gt_u32 vcc, 2, v2')
                a('v_mov_b32 v7, 0x%x' % OOB)
                a('v_mov_b32 v20, 0')
                a('v_cndmask_b32 v6, v7, v6, vcc')
                a('buffer_store_dword v20, v6, %s, 0 offen sc1' % sr(SRD_P, 4))
                other(1)
        if c.epi == 'gelu_pre' and t > 1 and pre_idx is not None and pre_idx >= 0 and lastpos > pre_idx:
            pre_stats_finish(); pre_idx = -1
    assert nxt_issue == NS
    a('s_barrier')
    if c.prof:
        a('s_memrealtime s[80:81]')
        a('s_memtime s[94:95]')
    if c.epi == 'gelu_inloop':
        a('s_barrier')
    if c.early:
        a('s_barrier')
    elif c.split:
        a('s_barrier')
        a('s_cmp_lg_u32 %s, 4' % sr(S_WAVE))
        a('s_cbranch_scc1 %s' % L('store'))
        a('s_lshr_b32 %s, s2, 2' % T1)
        a('s_lshl_b32 %s, %s, 2' % (T1, T1))
        a('s_and_b32 %s, s2, 3' % T2)
        a('s_lshl_b32 %s, %s, 3' % (T2, T2))
        a('s_lshl_b32 %s, 1, %s' % (T2, T2))
        a('v_mov_b32 v7, %s' % T1)
        a('v_mov_b32 v20, %s' % T2)
        a('v_cmp_eq_u32 vcc, 0, v2')
        a('v_mov_b32 v21, 0x%x' % OOB)
        a('s_nop 0')
        a('v_cndmask_b32 v7, v21, v7, vcc')
        a('buffer_atomic_or v20, v7, %s, 0 offen sc1' % sr(SRD_Y, 4))
    if c.epi == 'resid_stats':
        a('s_waitcnt vmcnt(0)')
        for r in range(8):
            a('v_mov_b32 %s, 0' % vr(24 + r))
        for m in range(8):
            for d in range(4):
                a('v_lshlrev_b32 v20, 16, %s' % vr(64 + 4 * m + d))
                a('v_and_b32 v21, %s, %s' % (sr(S_MASK), vr(64 + 4 * m + d)))
                a('v_add_f32 %s, %s, v20' % (vr(24 + 2 * d), vr(24 + 2 * d)))
                a('v_add_f32 %s, %s, v21' % (vr(25 + 2 * d), vr(25 + 2 * d)))
        a('v_lshrrev_b32 v3, 5, v2')
        a('s_lshl_b32 %s, %s, 1' % (T0, sr(S_ROLE)))
        a('v_add_u32 v3, %s, v3' % T0)
        a('v_mul_u32_u24 v3, 1024, v3')
        a('v_and_b32 v4, 31, v2')
        a('v_lshl_add_u32 v3, v4, 5, v3')
        a('ds_write_b128 v3, v[24:27] offset:32768')
        a('ds_write_b128 v3, v[28:31] offset:32784')
        a('s_waitcnt lgkmcnt(0)')
    if BN == 224:
        for q in range(4):
            a('s_mul_i32 %s, %s, 224' % (T0, sr(S_ROLE)))
            a('s_add_u32 %s, %s, %d' % (T0, T0, q * 64))
            a('v_add_u32 v6, %s, v2' % T0)
            a('v_mul_u32_u24 v7, 2341, v6')
            a('v_lshrrev_b32 v7, 16, v7')
            a('v_mul_u32_u24 v20, 28, v7')
            a('v_sub_u32 v6, v6, v20')
            a('v_and_b32 v20, 15, v7')
            a('v_lshrrev_b32 v7, 4, v7')
            a('v_lshl_add_u32 v7, v7, 6, v20')
            a('v_mul_u32_u24 v20, %d, v7' % RS)
            a('v_lshl_add_u32 %s, v6, 4, v20' % vr(24 + q))
            a('v_add_u32 v7, %s, v7' % sr(S_ROW))
            a('s_mov_b32 %s, %d' % (T1, c.Ostride))
            a('v_mul_lo_u32 v7, v7, %s' % T1)
            a('v_lshl_add_u32 v7, v6, 4, v7')
            a('s_lshl_b32 %s, %s, 1' % (T1, sr(S_COL)))
            a('v_add_u32 %s, %s, v7' % (vr(28 + q), T1))
            if q == 3:
                a('v_cmp_gt_u32 vcc, 32, v2')
                a('v_mov_b32 v20, 0x%x' % OOB)
                a('v_mov_b32 v21, 0')
                a('v_cndmask_b32 v31, v20, v31, vcc')
                a('v_cndmask_b32 v27, v21, v27, vcc')
        for tb in range(4):
            a('s_barrier')
            for q in range(4):
                a('ds_read_b128 %s, %s offset:%d' % (vr(32 + 16 * (tb & 1) + 4 * q, 4), vr(24 + q), tb * 16 * RS))
            a('s_mov_b32 %s, %d' % (T0, tb * 16 * c.Ostride))
            for q in range(4):
                a('s_waitcnt lgkmcnt(%d)' % (3 - q))
                a('buffer_store_dwordx4 %s, %s, %s, %s offen%s' % (vr(32 + 16 * (tb & 1) + 4 * q, 4), vr(28 + q), sr(SRD_O, 4), T0, ST))
        a('s_branch %s' % L('fin'))

    a.label(L('store'))
    if BN != 224:
        a('s_barrier')
        a('v_and_b32 v2, 63, v0')
        for q in range(2):
            rb_idx(q, 3, 4, 5)
            a('v_mul_u32_u24 v6, %d, v3' % RS)
            a('v_lshl_add_u32 v6, v4, 4, v6')
            a('ds_read_b128 %s, v6' % vr(32 + 4 * q, 4))
        if c.R is None:
            for q in range(2):
                a('s_waitcnt lgkmcnt(%d)' % (1 - q))
                a('buffer_store_dwordx4 %s, %s, %s, 0 offen%s' % (vr(32 + 4 * q, 4), vr(V_RBG + q), sr(SRD_O, 4), ST))
        else:
            a('s_waitcnt vmcnt(0) lgkmcnt(0)')
            for q in range(2):
                for d in range(4):
                    h = 32 + 4 * q + d; x = V_RES + 4 * q + d
                    a('v_lshlrev_b32 v8, 16, %s' % vr(h))
                    a('v_lshlrev_b32 v9, 16, %s' % vr(x))
                    a('v_and_b32 v10, %s, %s' % (sr(S_MASK), vr(h)))
                    a('v_and_b32 v11, %s, %s' % (sr(S_MASK), vr(x)))
                    a('v_add_f32 v8, v8, v9')
                    a('v_add_f32 v10, v10, v11')
                    a('v_cvt_pk_bf16_f32 %s, v8, v10' % vr(h))
                a('buffer_store_dwordx4 %s, %s, %s, 0 offen%s' % (vr(32 + 4 * q, 4), vr(V_RBG + q), sr(SRD_O, 4), ST))
            if c.epi == 'resid_stats':
                a('v_mov_b32 v21, 0x3f803f80')
                for q in range(2):
                    sv = 12 + 2 * q
                    a('v_mov_b32 %s, 0' % vr(sv))
                    a('v_mov_b32 %s, 0' % vr(sv + 1))
                    for d in range(4):
                        h = 32 + 4 * q + d
                        a('v_dot2c_f32_bf16 %s, %s, v21' % (vr(sv), vr(h)))
                        a('v_dot2c_f32_bf16 %s, %s, %s' % (vr(sv + 1), vr(h), vr(h)))
                a('s_nop 3')
                for dpp in ('quad_perm:[1,0,3,2]', 'quad_perm:[2,3,0,1]', 'row_half_mirror'):
                    for r in range(12, 16):
                        a('v_add_f32_dpp %s, %s, %s %s row_mask:0xf bank_mask:0xf' % (vr(r), vr(r), vr(r), dpp))
                    a('s_nop 0')
                for q in range(2):
                    rb_idx(q, 3, 4, 5)
                    a('v_add_u32 v3, %s, v3' % sr(S_ROW))
                    a('v_lshlrev_b32 v3, 3, v3')
                    a('s_lshl_b32 %s, %s, 14' % (T1, sr(S_CBK)))
                    a('v_add_u32 v3, %s, v3' % T1)
                    a('v_cmp_eq_u32 vcc, 0, v4')
                    a('v_mov_b32 v5, 0x%x' % OOB)
                    a('s_nop 0')
                    a('v_cndmask_b32 v3, v5, v3, vcc')
                    a('buffer_store_dwordx2 %s, v3, %s, 0 offen%s' % (vr(12 + 2 * q, 2), sr(SRD_X, 4), ST))
                a('s_cmp_lt_u32 %s, 4' % sr(S_WAVE))
                a('s_cbranch_scc1 %s' % L('fin'))
                a('v_subrev_u32 v3, 256, v0')
                a('v_lshlrev_b32 v4, 2, v3')
                for m in range(8):
                    a('ds_read_b32 %s, v4 offset:%d' % (vr(40 + m), 32768 + m * 1024))
                a('s_waitcnt lgkmcnt(0)')
                for m in range(1, 8):
                    a('v_add_f32 v40, v40, %s' % vr(40 + m))
                a('s_and_b32 %s, s2, 15' % T0)
                a('s_mul_i32 %s, %s, %d' % (T0, T0, F_ * 4))
                a('s_lshr_b32 %s, s2, 4' % T1)
                a('s_mul_i32 %s, %s, %d' % (T1, T1, 224 * 4))
                a('s_add_u32 %s, %s, %s' % (T0, T0, T1))
                a('v_add_u32 v4, %s, v4' % T0)
                a('v_cmp_gt_u32 vcc, 224, v3')
                a('v_mov_b32 v5, 0x%x' % OOB)
                a('s_nop 0')
                a('v_cndmask_b32 v4, v5, v4, vcc')
                a('buffer_store_dword v40, v4, %s, 0 offen%s' % (sr(SRD_Y, 4), ST))
    a.label(L('fin'))
    if c.prof:
        a('s_cmp_lg_u32 %s, 4' % sr(S_WAVE))
        a('s_cbranch_scc1 %s' % L('done'))
        a('s_waitcnt vmcnt(0)')
        a('s_memrealtime s[82:83]')
        a('s_memtime s[86:87]')
        a('s_getreg_b32 s90, hwreg(HW_REG_XCC_ID)')
        a('s_waitcnt lgkmcnt(0)')
        mk_srd(a, SRD_X, ('ws', WS_PROF + c.idx * 65536), 65536)
        for r in range(26):
            a('v_mov_b32 %s, s%d' % (vr(32 + r), 76 + r))
        a('s_lshl_b32 s3, s2, 8')
        a('v_mov_b32 v3, s3')
        a('v_cmp_eq_u32 vcc, 0, v2')
        a('v_mov_b32 v5, 0x%x' % OOB)
        a('s_nop 0')
        a('v_cndmask_b32 v3, v5, v3, vcc')
        if c.trace:
            mk_srd(a, SRD_Y, ('ws', WS_PROF + (8 + c.idx) * 65536), 65536)
            a('v_lshlrev_b32 v4, 2, v2')
            a('v_add_u32 v4, s3, v4')
            a('buffer_store_dword v254, v4, %s, 0 offen' % sr(SRD_Y, 4))
        for r in range(7):
            a('buffer_store_dwordx4 %s, v3, %s, 0 offen offset:%d' % (vr(32 + 4 * r, 4), sr(SRD_X, 4), 16 * r))
    a.label(L('done'))
    a('s_endpgm')
    a.label(name + '_end')
    return S * STAGE + (4096 if c.epi == 'gelu_pre' else 0) + (32768 if c.early else 0)

def descriptor(name):
    return '''.amdhsa_kernel %s
  .amdhsa_next_free_vgpr 256
  .amdhsa_next_free_sgpr 102
  .amdhsa_accum_offset 256
  .amdhsa_group_segment_fixed_size 0
  .amdhsa_kernarg_size 64
  .amdhsa_user_sgpr_count 2
  .amdhsa_user_sgpr_kernarg_segment_ptr 1
  .amdhsa_system_sgpr_workgroup_id_x 1
.end_amdhsa_kernel
''' % name

def mk(name, **kw):
    c = Cfg()
    c.name = name
    c.prof = False; c.trace = False; c.shift = False; c.R = None; c.stflag = ' sc1'
    c.rot = 0; c.early = 0; c.ackb = 5; c.chk = []; c.zflags = False; c.pf_at = []; c.grp0 = []; c.code0 = []; c.stats = 'mfma'; c.first = 2; c.rate = 2; c.split = False
    for k, v in kw.items():
        setattr(c, k, v)
    return c

def configs(opts, split4):
    base = 'standalone__mixer_s_mlp__prompt'
    k4 = dict(BN=128, S=4, map='split', split=True) if split4 else dict(BN=64, S=6, map='4x8')
    return [
        mk('k1_kernel', BN=64, K=1024, S=6, T='x', Tbytes=NB, Tstride=2048, W='w1', Wbytes=D_ * D_ * 2, Wstride=2048,
           O=('ws', WS_H), Obytes=S_ * HS, Ostride=HS, epi='gelu_inloop', map='4x8', **opts),
        mk('k2_kernel', BN=64, K=1024, S=6, T=('ws', WS_H), Tbytes=S_ * HS, Tstride=HS, W='w2', Wbytes=D_ * D_ * 2, Wstride=2048,
           O=('ws', WS_X1), Obytes=S_ * HS, Ostride=HS, epi='resid_stats', map='4x8', R='x', Rstride=2048, shift=True, **opts),
        mk('k3_kernel', BN=224, K=1024, S=3, T=('ws', WS_X1), Tbytes=S_ * HS, Tstride=HS, W='w3', Wbytes=D_ * F_ * 2, Wstride=7168,
           O=('ws', WS_G), Obytes=S_ * GS, Ostride=GS, epi='gelu_pre', map='8x4', **opts),
        mk(base + '_kernel', K=3584, T=('ws', WS_G), Tbytes=S_ * GS, Tstride=GS, W='w4', Wbytes=F_ * D_ * 2, Wstride=2048,
           O='out', Obytes=NB, Ostride=2048, epi='resid', R=('ws', WS_X1), Rstride=HS, **k4, **opts),
    ]

own_cols = lambda buf: (buf, D_ * D_ * 2, 2048, 3, 7, (0, 0, 0), 32, 32, (0, 1, 1024))
ITEMS = {
    'w2': own_cols('w2'),
    'w3': ('w3', D_ * F_ * 2, 7168, 6, 55, (0, 7, 128), 4, 4, (0, 0, 0)),
    'w4': ('w4', F_ * D_ * 2, 2048, 4, 15, (0, 7, 448), 14, 16, (0, 0, 0)),
}

def main():
    out = sys.argv[1]
    opts = {}
    for o in sys.argv[2:]:
        k, v = o.split('=', 1)
        opts[k] = eval(v)
    only = opts.pop('only', None)
    split4 = opts.pop('split4', True)
    pfat = opts.pop('pfat', {0: [(10, ['w2']), (13, ['w3'])], 2: [(2, ['w4:0']), (5, ['w4:1']), (8, ['w4:2']), (11, ['w4:3'])]})
    per = opts.pop('per', {})
    codepf = opts.pop('codepf', True)
    cfgs = configs(opts, split4)
    for ki, lst in pfat.items():
        def conv(n):
            if n[0] == 'g': return ('grp', int(n[1:]))
            if n[0] == 'B': return ('bad2', 'w4', F_ * D_ * 2, int(n[1]))
            if n[0] == 'b': return ('bad', 'w4', F_ * D_ * 2, int(n[1]) * 2048, int(n[2]))
            if n[0] == 'c': return ('code', cfgs[int(n[1])].name, 2)
            return ('onlywave', int(n[3]), ITEMS[n[:2]]) if len(n) > 2 else ITEMS[n]
        cfgs[ki].pf_at = [(it, [conv(n) for n in names]) for it, names in lst]
    if cfgs[3].__dict__.get('early') or any(d.get('early') for k, d in per.items() if k == 3):
        cfgs[2].zflags = True
    if codepf:
        cfgs[0].code0 = [(cfgs[0].name, 2, False)]
    for ki, d in per.items():
        for k, v in d.items(): setattr(cfgs[ki], k, v)
    if only is not None:
        cfgs = [cfgs[i] for i in only]
    a = Asm()
    ldss = []
    for i, c in enumerate(cfgs):
        c.idx = i
        ldss.append(gen_kernel(a, c))
    hdr = open('standalone__mixer_s_mlp__prompt.s.ref').read().split('; Override')[0]
    s = hdr
    for c, lds in zip(cfgs, ldss):
        s += '; @launch kernel=%s grid=(256,1,1) block=(512,1,1) lds=%d\n' % (c.name, lds)
    s += '.amdgcn_target "amdgcn-amd-amdhsa--gfx950"\n.text\n'
    s += a.text()
    s += '.section .rodata,"a"\n.p2align 6\n'
    for c in cfgs:
        s += descriptor(c.name) + '.p2align 6\n'
    open(out, 'w').write(s)

if __name__ == '__main__':
    main()
```

```python
import sys, struct

S_, D_, F_ = 2048, 1024, 3584
NB = S_ * D_ * 2
HS, GS = 2176, 7296
WS_H, WS_X1, WS_G = 0, 5 << 20, 10 << 20
WS_PART2 = 26 << 20
WS_CS3 = (26 << 20) + (256 << 10)
WS_PROF = 28 << 20
WS_FLAG = 27 << 20
WS_XCH = 32 << 20
C0 = -2.0 * 0.7978845608028654 * 1.4426950408889634
C1 = C0 * 0.044715
OOB = 0x7ffffff0

def f2u(f):
    return struct.unpack('<I', struct.pack('<f', f))[0]

class Asm:
    def __init__(self):
        self.L = []
    def __call__(self, s):
        self.L.append('    ' + s)
    def label(self, s):
        self.L.append(s + ':')
    def text(self):
        return '\n'.join(self.L) + '\n'

def vr(b, n=1):
    return 'v%d' % b if n == 1 else 'v[%d:%d]' % (b, b + n - 1)
def sr(b, n=1):
    return 's%d' % b if n == 1 else 's[%d:%d]' % (b, b + n - 1)

SRD_T, SRD_W, SRD_R, SRD_O, SRD_X, SRD_Y, SRD_P = 8, 12, 16, 20, 24, 28, 72
S_WAVE, S_ROW, S_COL, S_ROLE, S_I, S_J = 32, 33, 34, 35, 36, 37
S_OFT, S_OFW, S_CNT, S_SLOT, S_PT, S_PW = 38, 39, 40, 41, 42, 43
S_T0, S_T1, S_T2, S_T3 = 44, 45, 46, 47
S_RB, S_CBK = 48, 49
S_C0, S_C1, S_MASK = 50, 51, 52
S_XCD, S_IDX, S_KH = 53, 54, 55
P = {'x': 56, 'w1': 58, 'w2': 60, 'w3': 62, 'w4': 64, 'out': 66, 'dbg': 68, 'ws': 70}

class Cfg:
    pass

def ptr(nm):
    if isinstance(nm, tuple):
        return P['ws'], P['ws'] + 1, nm[1]
    return P[nm], P[nm] + 1, 0

def mk_srd(a, dst, src, nbytes):
    lo, hi, add = ptr(src)
    if add:
        a('s_add_u32 %s, %s, 0x%x' % (sr(dst), sr(lo), add))
        a('s_addc_u32 %s, %s, 0' % (sr(dst + 1), sr(hi)))
    else:
        a('s_mov_b32 %s, %s' % (sr(dst), sr(lo)))
        a('s_mov_b32 %s, %s' % (sr(dst + 1), sr(hi)))
    a('s_mov_b32 %s, 0x%x' % (sr(dst + 2), nbytes))
    a('s_mov_b32 %s, 0x20000' % sr(dst + 3))

def gen_kernel(a, c):
    name = c.name
    BN, CB, S = c.BN, c.BN // 32, c.S
    KLEN = c.K // 2 if c.split else c.K
    NS = KLEN // 64
    if c.early:
        NHALF = NS; NF = c.early; NS = 2 * NHALF - NF
    WROW = BN * 2
    STAGE = 16384 + 64 * WROW
    NWQ = (64 * WROW // 1024) // 4
    NDMA = 4 + NWQ
    RS = BN * 2 + 16
    L = lambda s: '%s_%s' % (name, s)
    gelu = c.epi in ('gelu_inloop', 'gelu_pre')
    ST = c.stflag
    X, I = sr(S_XCD), sr(S_IDX)
    T0, T1, T2, T3 = sr(S_T0), sr(S_T1), sr(S_T2), sr(S_T3)

    a.L.append('.globl %s' % name)
    a.L.append('.p2align 8')
    a.L.append('.type %s,@function' % name)
    a.label(name)
    a('s_cmp_ge_u32 s2, 256')
    a('s_cbranch_scc1 %s' % L('done'))
    a('s_load_dwordx16 s[56:71], s[0:1], 0')
    if c.prof:
        a('s_memrealtime s[76:77]')
        a('s_memtime s[84:85]')
    a('s_and_b32 %s, s2, 7' % X)
    a('s_lshr_b32 %s, s2, 3' % I)
    def field(dst, src, shr, msk, shl):
        a('s_lshr_b32 %s, %s, %d' % (dst, src, shr))
        a('s_and_b32 %s, %s, %d' % (dst, dst, msk))
        if shl: a('s_lshl_b32 %s, %s, %d' % (dst, dst, shl))
    if c.map == '4x8':
        field(T1, X, 1, 3, 2); field(T2, I, 3, 3, 0); a('s_add_u32 %s, %s, %s' % (sr(S_RB), T1, T2))
        if c.rot:
            a('s_add_u32 %s, %s, %d' % (T3, I, c.rot))
            field(T1, X, 0, 1, 3); field(T2, T3, 0, 7, 0); a('s_add_u32 %s, %s, %s' % (sr(S_CBK), T1, T2))
        else:
            field(T1, X, 0, 1, 3); field(T2, I, 0, 7, 0); a('s_add_u32 %s, %s, %s' % (sr(S_CBK), T1, T2))
    elif c.map == '8x4':
        field(T1, X, 2, 1, 3); field(T2, I, 2, 7, 0); a('s_add_u32 %s, %s, %s' % (sr(S_RB), T1, T2))
        field(T1, X, 0, 3, 2); field(T2, I, 0, 3, 0); a('s_add_u32 %s, %s, %s' % (sr(S_CBK), T1, T2))
    elif c.map == 'split':
        field(sr(S_KH), X, 0, 1, 0)
        field(T1, X, 1, 1, 3); field(T2, I, 2, 7, 0); a('s_add_u32 %s, %s, %s' % (sr(S_RB), T1, T2))
        field(T1, X, 2, 1, 2); field(T2, I, 0, 3, 0); a('s_add_u32 %s, %s, %s' % (sr(S_CBK), T1, T2))
    a('s_lshl_b32 %s, %s, 7' % (sr(S_ROW), sr(S_RB)))
    a('s_mul_i32 %s, %s, %d' % (sr(S_COL), sr(S_CBK), BN))
    a('v_lshrrev_b32 v1, 6, v0')
    a('v_and_b32 v2, 63, v0')
    a('s_nop 0')
    a('v_readfirstlane_b32 %s, v1' % sr(S_WAVE))
    a('s_mov_b32 %s, 0x%x' % (sr(S_C0), f2u(C0)))
    a('s_mov_b32 %s, 0x%x' % (sr(S_C1), f2u(C1)))
    a('s_mov_b32 %s, 0xffff0000' % sr(S_MASK))
    a('s_waitcnt lgkmcnt(0)')
    if c.prof:
        a('s_memrealtime s[96:97]')
    mk_srd(a, SRD_T, c.T, c.Tbytes)
    mk_srd(a, SRD_W, c.W, c.Wbytes)
    a('s_cmp_ge_u32 %s, 4' % sr(S_WAVE))
    a('s_cbranch_scc1 %s' % L('prod'))

    def common_srds():
        mk_srd(a, SRD_O, c.O, c.Obytes)
        if c.R is not None:
            mk_srd(a, SRD_R, c.R, S_ * c.Rstride)
        if c.epi in ('resid_stats', 'gelu_pre'):
            mk_srd(a, SRD_X, ('ws', WS_PART2), 16 * S_ * 8)
            mk_srd(a, SRD_Y, ('ws', WS_CS3), 16 * F_ * 4)
        if c.split:
            mk_srd(a, SRD_X, ('ws', WS_XCH), 256 * 32768)
            mk_srd(a, SRD_Y, 'dbg', 256)

    V_RES, V_RBG, V_RBR = 240, 248, 252
    RB_SH = 3 if BN == 64 else 4
    def rb_idx(q, vrow, vch, vtmp):
        a('s_lshl_b32 %s, %s, 7' % (T0, sr(S_WAVE)))
        a('s_add_u32 %s, %s, %d' % (T0, T0, q * 64))
        a('v_add_u32 %s, %s, v2' % (vr(vtmp), T0))
        a('v_lshrrev_b32 %s, %d, %s' % (vr(vrow), RB_SH, vr(vtmp)))
        a('v_and_b32 %s, %d, %s' % (vr(vch), (1 << RB_SH) - 1, vr(vtmp)))
    def resid_loads():
        n = 0
        for q in range(2):
            rb_idx(q, 3, 4, 5)
            a('v_add_u32 v3, %s, v3' % sr(S_ROW))
            if c.split:
                a('s_lshl_b32 %s, %s, 6' % (T1, sr(S_KH)))
                a('v_add_u32 v3, %s, v3' % T1)
            a('v_lshlrev_b32 v4, 4, v4')
            a('s_lshl_b32 %s, %s, 1' % (T1, sr(S_COL)))
            a('v_add_u32 v4, %s, v4' % T1)
            a('v_mul_u32_u24 v5, %d, v3' % c.Ostride)
            a('v_add_u32 %s, v5, v4' % vr(V_RBG + q))
            if c.R is not None:
                a('v_mul_u32_u24 v5, %d, v3' % c.Rstride)
                a('v_add_u32 %s, v5, v4' % vr(V_RBR + q))
                a('buffer_load_dwordx4 %s, %s, %s, 0 offen' % (vr(V_RES + 4 * q, 4), vr(V_RBR + q), sr(SRD_R, 4)))
                n += 1
        return n

    def pf(item, onlywave=None):
        buf, nbytes, stride, sh, maxl, row_xcd, row_idx, rows_cu, col_xcd = item
        mk_srd(a, SRD_P, buf, nbytes)
        rpi = 64 >> sh
        per_wave = rows_cu // 4
        n = max(1, per_wave // rpi)
        def term(dst, spec):
            shr, msk, mul = spec
            a('s_lshr_b32 %s, %s, %d' % (dst, X, shr))
            a('s_and_b32 %s, %s, %d' % (dst, dst, msk))
            a('s_mul_i32 %s, %s, %d' % (dst, dst, mul))
        term(T0, row_xcd)
        a('s_mul_i32 %s, %s, %d' % (T1, I, row_idx))
        a('s_add_u32 %s, %s, %s' % (T0, T0, T1))
        a('s_mul_i32 %s, %s, %d' % (T1, sr(S_WAVE), per_wave))
        a('s_add_u32 %s, %s, %s' % (T0, T0, T1))
        term(T1, col_xcd)
        a('v_lshrrev_b32 v6, %d, v2' % sh)
        a('v_add_u32 v6, %s, v6' % T0)
        a('s_mov_b32 %s, %d' % (T2, stride))
        a('v_mul_lo_u32 v6, v6, %s' % T2)
        a('v_and_b32 v7, %d, v2' % ((1 << sh) - 1))
        if maxl < (1 << sh) - 1:
            a('v_min_u32 v7, %d, v7' % maxl)
        a('v_lshl_add_u32 v6, v7, 7, v6')
        a('v_add_u32 v6, %s, v6' % T1)
        for q in range(n):
            a('s_mov_b32 %s, %d' % (T2, q * rpi * stride))
            a('buffer_load_dword v250, v6, %s, %s offen' % (sr(SRD_P, 4), T2))

    cp_n = [0]
    def code_pf(target, nchunks, forward, skip=None):
        cp_n[0] += 1
        here = L('cpf%d' % cp_n[0])
        done = skip or (here + '_d')
        a('s_cmp_lg_u32 %s, 3' % sr(S_WAVE))
        a('s_cbranch_scc1 %s' % done)
        a('s_getpc_b64 s[4:5]')
        a.label(here)
        if forward:
            a('s_add_u32 s4, s4, %s-%s' % (target, here))
            a('s_addc_u32 s5, s5, 0')
        else:
            a('s_sub_u32 s4, s4, %s-%s' % (here, target))
            a('s_subb_u32 s5, s5, 0')
        a('s_and_b32 %s, %s, %d' % (T0, I, nchunks - 1))
        a('s_lshl_b32 %s, %s, 13' % (T0, T0))
        a('v_lshlrev_b32 v6, 7, v2')
        a('v_add_u32 v6, %s, v6' % T0)
        a('v_min_u32 v6, %s_end-%s-4, v6' % (target, target))
        a('global_load_dword v250, v6, s[4:5]')
        if skip is None:
            a.label(done)

    for (target, nch, fwd) in c.code0:
        code_pf(target, nch, fwd)
    a('s_lshr_b32 %s, %s, 1' % (sr(S_I), sr(S_WAVE)))
    a('s_and_b32 %s, %s, 1' % (sr(S_J), sr(S_WAVE)))
    VT = [[None] * 4, [None] * 4]
    VW = [[None] * CB, [None] * CB]
    nxt = 32
    for st in range(2):
        for tb in range(4):
            VT[st][tb] = nxt; nxt += 4
        for cb in range(CB):
            VW[st][cb] = nxt; nxt += 4
    assert nxt <= 128
    ACC = [[None] * CB for _ in range(4)]
    nxt = 128
    for tb in range(4):
        for cb in range(CB):
            ACC[tb][cb] = nxt; nxt += 4
    assert nxt <= 240
    NWA = 4 if BN == 128 else 2
    bT = [8, 9]; aT = [10, 11]
    bW = [12, 13, 14, 15][:NWA]; aW = [16, 17, 18, 19][:NWA]
    a('v_and_b32 v3, 15, v2')
    a('v_lshrrev_b32 v4, 4, v2')
    a('s_lshl_b32 %s, %s, 13' % (T0, sr(S_I)))
    a('v_lshlrev_b32 v5, 7, v3')
    a('v_lshrrev_b32 v6, 1, v3')
    a('v_xor_b32 v6, v6, v4')
    a('v_lshlrev_b32 v6, 4, v6')
    a('v_add3_u32 %s, v5, v6, %s' % (vr(bT[0]), T0))
    a('v_xor_b32 %s, 64, %s' % (vr(bT[1]), vr(bT[0])))
    a('v_lshrrev_b32 v5, 2, v3')
    a('v_lshl_add_u32 v6, v4, 3, v5')
    a('v_and_b32 v7, 3, v2')
    if BN == 64:
        a('v_lshlrev_b32 v6, 7, v6')
        a('v_lshl_add_u32 v6, v7, 3, v6')
        a('v_lshrrev_b32 v5, 1, v5')
        a('v_and_b32 v7, 1, v4')
        a('v_lshl_or_b32 v5, v7, 1, v5')
        a('s_lshl_b32 %s, %s, 1' % (T0, sr(S_J)))
        a('v_xor_b32 v5, %s, v5' % T0)
        a('v_lshl_add_u32 v6, v5, 5, v6')
        a('v_add_u32 %s, 16384, v6' % vr(bW[0]))
        a('v_xor_b32 %s, 32, %s' % (vr(bW[1]), vr(bW[0])))
        woff = lambda s, cb, h: s * 4096 + h * 512
        wreg = lambda cb: cb
    elif BN == 128:
        a('v_lshlrev_b32 v6, 8, v6')
        a('v_lshl_add_u32 v6, v7, 3, v6')
        a('v_and_b32 v7, 1, v4')
        a('v_lshl_or_b32 v5, v7, 2, v5')
        a('s_lshl_b32 %s, %s, 2' % (T0, sr(S_J)))
        a('v_xor_b32 v5, %s, v5' % T0)
        a('v_lshl_add_u32 v6, v5, 5, v6')
        a('v_add_u32 %s, 16384, v6' % vr(bW[0]))
        for cb in range(1, 4):
            a('v_xor_b32 %s, %d, %s' % (vr(bW[cb]), 32 * cb, vr(bW[0])))
        woff = lambda s, cb, h: s * 8192 + h * 1024
        wreg = lambda cb: cb
    else:
        a('v_mul_u32_u24 v6, 448, v6')
        a('v_lshl_add_u32 v6, v7, 3, v6')
        a('s_mul_i32 %s, %s, %d' % (T0, sr(S_J), 7 * 32))
        a('s_add_u32 %s, %s, 16384' % (T0, T0))
        a('v_add_u32 v6, %s, v6' % T0)
        a('v_and_b32 v7, 1, v4')
        a('v_lshlrev_b32 v7, 5, v7')
        a('v_add_u32 v5, v6, v7')
        a('v_sub_u32 v6, v6, v7')
        a('s_cmp_eq_u32 %s, 0' % sr(S_J))
        a('s_cselect_b64 vcc, -1, 0')
        a('v_cndmask_b32 %s, v6, v5, vcc' % vr(bW[0]))
        a('v_cndmask_b32 %s, v5, v6, vcc' % vr(bW[1]))
        woff = lambda s, cb, h: cb * 32 + s * 32 * 448 + h * 4 * 448
        wreg = lambda cb: cb & 1
    for tb in range(4):
        for cb in range(CB):
            for r in range(4):
                a('v_mov_b32 %s, 0' % vr(ACC[tb][cb] + r))
    SUMA, GRA, CSA, ONES = [176, 180], [184, 188], 192, 196
    if c.epi == 'gelu_inloop':
        for r in range(176, 196):
            a('v_mov_b32 %s, 0' % vr(r))
        for r in range(4):
            a('v_mov_b32 %s, 0x3f803f80' % vr(ONES + r))
    common_srds()
    if BN != 224:
        resid_loads()

    def grp_setup():
        a('s_lshr_b32 %s, %s, 1' % (T0, X))
        a('s_lshl_b32 %s, %s, 9' % (T0, T0))
        a('s_lshl_b32 %s, %s, 4' % (T1, I))
        a('s_add_u32 %s, %s, %s' % (T0, T0, T1))
        a('v_and_b32 v5, 15, v2')
        a('v_add_u32 v5, %s, v5' % T0)
        a('v_lshlrev_b32 v5, 11, v5')
        a('v_lshrrev_b32 v6, 4, v2')
        a('v_lshl_add_u32 v20, v6, 7, v5')
        a('v_and_b32 v5, 7, v2')
        a('v_lshlrev_b32 v5, 7, v5')
        a('v_bfe_u32 v7, v2, 3, 1')
        a('s_lshl_b32 %s, %s, 1' % (T0, I))
        a('v_add_u32 v7, %s, v7' % T0)
        a('v_lshl_add_u32 v7, v6, 6, v7')
        a('v_lshlrev_b32 v7, 11, v7')
        a('s_and_b32 %s, %s, 1' % (T0, X))
        a('s_lshl_b32 %s, %s, 10' % (T0, T0))
        a('v_add3_u32 v21, v5, v7, %s' % T0)
    def grp_pf(g, skip):
        a('s_cmp_gt_u32 %s, 1' % sr(S_WAVE))
        a('s_cbranch_scc1 %s' % skip)
        a('s_cmp_eq_u32 %s, 1' % sr(S_WAVE))
        lab = L('gw%d_%s' % (g, skip[-6:].replace('_', 'x')))
        a('s_cbranch_scc1 %s' % lab)
        a('s_mov_b32 %s, %d' % (T0, g * 512))
        a('buffer_load_dword v250, v20, %s, %s offen' % (sr(SRD_T, 4), T0))
        a('s_branch %s' % skip)
        a.label(lab)
        a('s_mov_b32 %s, %d' % (T0, g * 4 * 64 * 2048))
        a('buffer_load_dword v250, v21, %s, %s offen' % (sr(SRD_W, 4), T0))
    if c.grp0:
        grp_setup()
        for g in c.grp0:
            grp_pf(g, L('g0s%d' % g))
            a.label(L('g0s%d' % g))

    def reads(st, s):
        r = []
        order = [('T', 0), ('W', 0), ('T', 1), ('T', 2), ('T', 3)] + [('W', cb) for cb in range(1, CB)]
        for kind, i in order:
            if kind == 'T':
                r.append('ds_read_b128 %s, %s offset:%d' % (vr(VT[st][i], 4), vr(aT[s]), i * 2048))
            else:
                r.append('ds_read_b64_tr_b16 %s, %s offset:%d' % (vr(VW[st][i], 2), vr(aW[wreg(i)]), woff(s, i, 0)))
                r.append('ds_read_b64_tr_b16 %s, %s offset:%d' % (vr(VW[st][i] + 2, 2), vr(aW[wreg(i)]), woff(s, i, 1)))
        return r
    def mf(d, x, y):
        return 'v_mfma_f32_16x16x32_bf16 %s, %s, %s, %s' % (vr(d, 4), vr(x, 4), vr(y, 4), vr(d, 4))
    def mfmas(st, j=None, i=None):
        m = []
        for cb in range(CB):
            for tb in range(4):
                m.append(mf(ACC[tb][cb], VW[st][cb], VT[st][tb]))
        if c.epi == 'gelu_inloop' and c.stats == 'mfma':
            for z in range(2):
                tb = 2 * j + z
                m.append(mf(SUMA[z], ONES, VT[st][tb]))
                m.append(mf(GRA[z], VT[st][tb], VT[st][tb]))
            m.append(mf(CSA, VW[st][i], ONES))
        return m
    DS = 176
    def dots(st, j, i):
        if not (c.epi == 'gelu_inloop' and c.stats == 'dot'):
            return []
        e = []
        for d in range(4):
            for z in range(2):
                tb = 2 * j + z
                ch = (d & 1) * 4
                e.append('v_dot2c_f32_bf16 %s, %s, %s' % (vr(DS + ch + 2 * z), vr(VT[st][tb] + d), vr(ONES)))
                e.append('v_dot2c_f32_bf16 %s, %s, %s' % (vr(DS + ch + 2 * z + 1), vr(VT[st][tb] + d), vr(VT[st][tb] + d)))
            e.append('v_dot2c_f32_bf16 %s, %s, %s' % (vr(DS + 8 + (d & 1)), vr(VW[st][i] + d), vr(ONES)))
        return e
    def interleave(ms, rs, es=()):
        rs = list(rs); es = list(es)
        n = len(ms)
        for k, m in enumerate(ms):
            a(m)
            if rs:
                a(rs.pop(0))
            q = -(-len(es) // (n - k))
            for _ in range(q):
                a(es.pop(0))
        for r_ in rs: a(r_)
    def setaddr(regs):
        for ar, br in regs:
            a('v_add_u32 %s, %s, %s' % (vr(ar), sr(S_SLOT), vr(br)))
    WA = list(zip(aW, bW))

    ool = []
    def mainloop(tag, j, i):
        a('s_mov_b32 %s, 0' % sr(S_SLOT))
        if c.early:
            a('s_cmp_eq_u32 %s, %s' % (sr(S_I), sr(S_KH)))
            a('s_cselect_b32 %s, %d, %d' % (sr(S_CNT), NS, NF))
        else:
            a('s_mov_b32 %s, %d' % (sr(S_CNT), NS))
        a('s_barrier')
        setaddr([(aT[0], bT[0]), (aT[1], bT[1])] + WA)
        for r_ in reads(0, 0): a(r_)
        a.label(L('loop' + tag))
        for n_, (it, items) in enumerate(c.pf_at):
            lab = L('pfat%d%s' % (n_, tag)); ret = lab + '_r'
            a('s_cmp_eq_u32 %s, %d' % (sr(S_CNT), NS - it))
            a('s_cbranch_scc1 %s' % lab)
            a.label(ret)
            ool.append((lab, items, ret))
        a('s_waitcnt lgkmcnt(0)')
        interleave(mfmas(0, j, i), reads(1, 1), dots(0, j, i))
        a('s_add_u32 %s, %s, %d' % (sr(S_SLOT), sr(S_SLOT), STAGE))
        a('s_cmp_eq_u32 %s, %d' % (sr(S_SLOT), S * STAGE))
        a('s_cselect_b32 %s, 0, %s' % (sr(S_SLOT), sr(S_SLOT)))
        setaddr([(aT[0], bT[0])] + WA)
        a('s_waitcnt lgkmcnt(0)')
        a('s_barrier')
        interleave(mfmas(1, j, i), reads(0, 0), dots(1, j, i))
        setaddr([(aT[1], bT[1])])
        a('s_sub_u32 %s, %s, 1' % (sr(S_CNT), sr(S_CNT)))
        a('s_cmp_lg_u32 %s, 0' % sr(S_CNT))
        a('s_cbranch_scc1 %s' % L('loop' + tag))

    if c.epi == 'gelu_inloop':
        for w in range(4):
            if w < 3:
                a('s_cmp_lg_u32 %s, %d' % (sr(S_WAVE), w))
                a('s_cbranch_scc1 %s' % L('ver%d' % (w + 1)))
            mainloop('_%d' % w, w & 1, w >> 1)
            a('s_branch %s' % L('after'))
            if w < 3:
                a.label(L('ver%d' % (w + 1)))
    else:
        mainloop('', 0, 0)
        a('s_branch %s' % L('after'))
    for lab, items, ret in ool:
        a.label(lab)
        for item in items:
            if item[0] == 'grp':
                grp_pf(item[1], ret)
                continue
            if item[0] == 'bad':
                _, buf, nbytes, k0, wv = item
                a('s_cmp_lg_u32 %s, %d' % (sr(S_WAVE), wv))
                a('s_cbranch_scc1 %s' % ret)
                mk_srd(a, SRD_P, buf, nbytes)
                a('s_lshl_b32 %s, %s, 6' % (T0, I))
                a('s_add_u32 %s, %s, %d' % (T0, T0, k0))
                a('v_add_u32 v6, %s, v2' % T0)
                a('v_lshlrev_b32 v6, 11, v6')
                a('s_and_b32 %s, %s, 1' % (T0, X))
                a('s_lshl_b32 %s, %s, 10' % (T0, T0))
                a('s_add_u32 %s, %s, 384' % (T0, T0))
                a('buffer_load_dword v250, v6, %s, %s offen' % (sr(SRD_P, 4), T0))
                continue
            if item[0] == 'bad2':
                _, buf, nbytes, wv = item
                a('s_cmp_lg_u32 %s, %d' % (sr(S_WAVE), wv))
                a('s_cbranch_scc1 %s' % ret)
                mk_srd(a, SRD_P, buf, nbytes)
                a('s_and_b32 %s, %s, 1' % (T1, X))
                a('s_mul_i32 %s, %s, 1792' % (T1, T1))
                a('s_lshl_b32 %s, %s, 6' % (T0, I))
                a('s_add_u32 %s, %s, %s' % (T0, T0, T1))
                a('v_add_u32 v6, %s, v2' % T0)
                a('v_lshlrev_b32 v6, 11, v6')
                a('s_lshr_b32 %s, %s, 2' % (T0, X))
                a('s_lshl_b32 %s, %s, 10' % (T0, T0))
                a('s_add_u32 %s, %s, 384' % (T0, T0))
                a('buffer_load_dword v250, v6, %s, %s offen' % (sr(SRD_P, 4), T0))
                continue
            if item[0] == 'code':
                code_pf(item[1], item[2], True, ret)
                continue
            if item[0] == 'onlywave':
                a('s_cmp_lg_u32 %s, %d' % (sr(S_WAVE), item[1]))
                a('s_cbranch_scc1 %s' % ret)
                item = item[2]
            pf(item)
        a('s_branch %s' % ret)
    a.label(L('after'))
    a('s_waitcnt lgkmcnt(0)')
    a('s_nop 7')
    a('s_nop 7')
    a('v_and_b32 v3, 15, v2')
    a('v_lshrrev_b32 v4, 4, v2')
    if c.early:
        XL = 131072
        a('s_lshl_b32 %s, s2, 15' % T3)
        a('s_lshl_b32 %s, %s, 14' % (T0, sr(S_J)))
        a('s_add_u32 %s, %s, %s' % (T3, T3, T0))
        a('v_lshlrev_b32 v6, 4, v2')
        a('s_cmp_eq_u32 %s, %s' % (sr(S_I), sr(S_KH)))
        a('s_cbranch_scc1 %s' % L('keep'))
        a('v_add_u32 v7, %s, v6' % T3)
        for tb in range(4):
            for cb in range(4):
                a('s_mov_b32 %s, %d' % (T0, (tb * 4 + cb) * 1024))
                a('buffer_store_dwordx4 %s, v7, %s, %s offen sc1' % (vr(ACC[tb][cb], 4), sr(SRD_X, 4), T0))
        mk_srd(a, SRD_Y, ('ws', WS_FLAG), 512 * 128)
        a('s_lshl_b32 %s, s2, 1' % T0)
        a('s_add_u32 %s, %s, %s' % (T0, T0, sr(S_J)))
        a('s_lshl_b32 %s, %s, 7' % (T1, T0))
        a('s_xor_b32 %s, %s, 256' % (T2, T1))
        a('v_mov_b32 v8, %s' % T2)
        a('v_mov_b32 v9, 1')
        a('v_mov_b32 v12, %s' % T1)
        a('v_cmp_eq_u32 vcc, 0, v2')
        a('v_mov_b32 v10, 0x%x' % OOB)
        a('s_nop 0')
        a('v_cndmask_b32 v10, v10, v12, vcc')
        a('s_xor_b32 %s, %s, 0x8000' % (T3, T3))
        a('v_add_u32 v7, %s, v6' % T3)
        a('s_add_u32 %s, %s, %d' % (T0, T3, 0))
        a('s_lshl_b32 %s, %s, 14' % (T0, sr(S_J)))
        a('v_add_u32 v11, %s, v6' % T0)
        a('v_add_u32 v11, %d, v11' % XL)
        a('s_mov_b32 s4, 0')
        NB_REM = NS - NF
        WAITB = min(c.ackb, NB_REM)
        def try_fetch(tag):
            skip = L('tf%s' % tag)
            a('s_cmp_lg_u32 s4, 0')
            a('s_cbranch_scc1 %s' % skip)
            a('s_waitcnt vmcnt(0)')
            a('v_readfirstlane_b32 %s, v20' % T1)
            a('s_nop 3')
            a('s_cmp_lg_u32 %s, 0' % T1)
            a('s_cbranch_scc1 %s' % (skip + 'g'))
            a('buffer_load_dword v20, v8, %s, 0 offen sc1' % sr(SRD_Y, 4))
            a('s_branch %s' % skip)
            a.label(skip + 'g')
            for n in range(16):
                a('s_mov_b32 %s, %d' % (T0, n * 1024))
                a('buffer_load_dwordx4 %s, v7, %s, %s offen sc1' % (vr(32 + 4 * n, 4), sr(SRD_X, 4), T0))
            a('s_mov_b32 s4, 1')
            a.label(skip)
        for n in range(NB_REM):
            a('s_barrier')
            if n + 1 == WAITB:
                a('s_waitcnt vmcnt(0)')
                a('buffer_store_dword v9, v10, %s, 0 offen sc1' % sr(SRD_Y, 4))
                a('buffer_load_dword v20, v8, %s, 0 offen sc1' % sr(SRD_Y, 4))
            elif n + 1 in c.chk:
                try_fetch('%d' % n)
        a.label(L('fpoll'))
        try_fetch('z')
        a('s_cmp_eq_u32 s4, 0')
        a('s_cbranch_scc1 %s' % L('fpoll'))
        for n in range(16):
            a('s_waitcnt vmcnt(%d)' % (15 - n))
            a('ds_write_b128 v11, %s offset:%d' % (vr(32 + 4 * n, 4), n * 1024))
        a('s_waitcnt lgkmcnt(0)')
        a('s_barrier')
        a('s_branch %s' % L('store'))
        a.label(L('keep'))
        a('s_lshl_b32 %s, %s, 14' % (T0, sr(S_J)))
        a('v_add_u32 v11, %s, v6' % T0)
        a('v_add_u32 v11, %d, v11' % XL)
        a('s_barrier')
        for n in range(16):
            a('ds_read_b128 %s, v11 offset:%d' % (vr(32 + 4 * n, 4), n * 1024))
        for tb in range(4):
            a('s_waitcnt lgkmcnt(%d)' % (12 - 4 * tb))
            for cb in range(4):
                for h in range(2):
                    d = ACC[tb][cb] + 2 * h; s_ = 32 + (tb * 4 + cb) * 4 + 2 * h
                    a('v_pk_add_f32 %s, %s, %s' % (vr(d, 2), vr(d, 2), vr(s_, 2)))
        a('s_lshl_b32 %s, %s, 7' % (T1, sr(S_J)))
        a('v_mul_u32_u24 v5, %d, v3' % RS)
        a('v_lshl_add_u32 v5, v4, 3, v5')
        a('v_add_u32 v5, %s, v5' % T1)
    elif c.split:
        a('s_lshl_b32 %s, s2, 15' % T3)
        a('s_lshl_b32 %s, %s, 14' % (T0, sr(S_J)))
        a('s_add_u32 %s, %s, %s' % (T3, T3, T0))
        a('v_lshlrev_b32 v6, 4, v2')
        a('s_cmp_eq_u32 %s, %s' % (sr(S_I), sr(S_KH)))
        a('s_cbranch_scc1 %s' % L('recv'))
        a('v_add_u32 v6, %s, v6' % T3)
        for tb in range(4):
            for cb in range(4):
                a('s_mov_b32 %s, %d' % (T0, (tb * 4 + cb) * 1024))
                a('buffer_store_dwordx4 %s, v6, %s, %s offen sc1' % (vr(ACC[tb][cb], 4), sr(SRD_X, 4), T0))
        a('s_waitcnt vmcnt(0)')
        a('s_barrier')
        a('s_branch %s' % L('store'))
        a.label(L('recv'))
        a('s_barrier')
        a('s_xor_b32 %s, s2, 1' % T0)
        a('s_lshr_b32 %s, %s, 2' % (T1, T0))
        a('s_lshl_b32 %s, %s, 2' % (T1, T1))
        a('s_and_b32 %s, %s, 3' % (T2, T0))
        a('s_lshl_b32 %s, %s, 3' % (T2, T2))
        a('v_mov_b32 v7, %s' % T1)
        a.label(L('poll'))
        a('buffer_load_dword v20, v7, %s, 0 offen sc1' % sr(SRD_Y, 4))
        a('s_waitcnt vmcnt(0)')
        a('v_readfirstlane_b32 %s, v20' % T1)
        a('s_nop 3')
        a('s_lshr_b32 %s, %s, %s' % (T1, T1, T2))
        a('s_and_b32 %s, %s, 0xff' % (T1, T1))
        a('s_cmp_lg_u32 %s, 0' % T1)
        a('s_cbranch_scc1 %s' % L('got'))
        a('s_sleep 1')
        a('s_branch %s' % L('poll'))
        a.label(L('got'))
        a('s_xor_b32 %s, %s, 0x8000' % (T3, T3))
        a('v_add_u32 v6, %s, v6' % T3)
        for tb in range(4):
            for cb in range(4):
                a('s_mov_b32 %s, %d' % (T0, (tb * 4 + cb) * 1024))
                a('buffer_load_dwordx4 %s, v6, %s, %s offen sc1' % (vr(32 + (tb * 4 + cb) * 4, 4), sr(SRD_X, 4), T0))
        for tb in range(4):
            a('s_waitcnt vmcnt(%d)' % (12 - 4 * tb))
            for cb in range(4):
                for h in range(2):
                    d = ACC[tb][cb] + 2 * h; s_ = 32 + (tb * 4 + cb) * 4 + 2 * h
                    a('v_pk_add_f32 %s, %s, %s' % (vr(d, 2), vr(d, 2), vr(s_, 2)))
        a('s_lshl_b32 %s, %s, 7' % (T1, sr(S_J)))
        a('v_mul_u32_u24 v5, %d, v3' % RS)
        a('v_lshl_add_u32 v5, v4, 3, v5')
        a('v_add_u32 v5, %s, v5' % T1)
    else:
        a('s_mul_i32 %s, %s, %d' % (T0, sr(S_I), 64 * RS))
        a('s_mul_i32 %s, %s, %d' % (T1, sr(S_J), CB * 32))
        a('s_add_u32 %s, %s, %s' % (T0, T0, T1))
        a('v_mul_u32_u24 v5, %d, v3' % RS)
        a('v_lshl_add_u32 v5, v4, 3, v5')
        a('v_add_u32 v5, %s, v5' % T0)
    PC, VC = 32, 80
    if gelu:
        if c.epi == 'gelu_inloop':
          if c.stats == 'mfma':
              GR_OFF = 32768; SM_OFF = GR_OFF + 8192; CS_OFF = SM_OFF + 512
              a('s_lshl_b32 %s, %s, 2' % (T0, sr(S_I)))
              a('s_lshl_b32 %s, %s, 1' % (T1, sr(S_J)))
              a('s_add_u32 %s, %s, %s' % (T0, T0, T1))
              a('s_lshl_b32 %s, %s, 10' % (T1, T0))
              a('v_lshlrev_b32 v6, 8, v4')
              a('v_lshl_add_u32 v6, v3, 2, v6')
              a('v_add_u32 v6, %s, v6' % T1)
              for z in range(2):
                  for r in range(4):
                      a('ds_write_b32 v6, %s offset:%d' % (vr(GRA[z] + r), GR_OFF + z * 1024 + r * 64))
              a('s_lshl_b32 %s, %s, 6' % (T1, T0))
              a('v_lshlrev_b32 v6, 2, v3')
              a('v_add_u32 v6, %s, v6' % T1)
              for z in range(2):
                  a('ds_write_b32 v6, %s offset:%d' % (vr(SUMA[z]), SM_OFF + z * 64))
              a('s_lshl_b32 %s, %s, 1' % (T0, sr(S_J)))
              a('s_add_u32 %s, %s, %s' % (T0, T0, sr(S_I)))
              a('s_lshl_b32 %s, %s, 6' % (T0, T0))
              a('v_lshlrev_b32 v6, 4, v4')
              a('v_add_u32 v6, %s, v6' % T0)
              a('ds_write_b128 v6, %s offset:%d' % (vr(CSA, 4), CS_OFF))
              a('s_waitcnt lgkmcnt(0)')
              a('s_barrier')
              a('s_lshl_b32 %s, %s, 8' % (T0, sr(S_I)))
              a('v_lshlrev_b32 v6, 2, v3')
              a('v_add_u32 v6, %s, v6' % T0)
              a('s_lshl_b32 %s, %s, 12' % (T0, sr(S_I)))
              a('v_mul_u32_u24 v7, 68, v3')
              a('v_add_u32 v7, %s, v7' % T0)
              for tb in range(4):
                  a('ds_read_b32 %s, v6 offset:%d' % (vr(48 + 2 * tb), SM_OFF + tb * 64))
                  a('ds_read_b32 %s, v7 offset:%d' % (vr(49 + 2 * tb), GR_OFF + tb * 1024))
          else:
            SP_OFF = 32768; CSP_OFF = SP_OFF + 4096; CS_OFF = CSP_OFF + 1024
            for r in range(4):
                a('v_add_f32 %s, %s, %s' % (vr(DS + r), vr(DS + r), vr(DS + 4 + r)))
            a('v_add_f32 %s, %s, %s' % (vr(DS + 8), vr(DS + 8), vr(DS + 9)))
            a('s_lshl_b32 %s, %s, 6' % (T0, sr(S_I)))
            a('s_lshl_b32 %s, %s, 5' % (T1, sr(S_J)))
            a('s_add_u32 %s, %s, %s' % (T0, T0, T1))
            a('v_add_u32 v6, %s, v3' % T0)
            a('v_lshlrev_b32 v6, 3, v6')
            a('v_lshl_add_u32 v6, v4, 10, v6')
            a('ds_write_b64 v6, %s offset:%d' % (vr(DS, 2), SP_OFF))
            a('ds_write_b64 v6, %s offset:%d' % (vr(DS + 2, 2), SP_OFF + 128))
            a('s_lshl_b32 %s, %s, 1' % (T0, sr(S_J)))
            a('s_add_u32 %s, %s, %s' % (T0, T0, sr(S_I)))
            a('s_lshl_b32 %s, %s, 4' % (T0, T0))
            a('v_add_u32 v6, %s, v3' % T0)
            a('v_lshlrev_b32 v6, 2, v6')
            a('v_lshl_add_u32 v6, v4, 8, v6')
            a('ds_write_b32 v6, %s offset:%d' % (vr(DS + 8), CSP_OFF))
            a('s_waitcnt lgkmcnt(0)')
            a('s_barrier')
            a('s_lshl_b32 %s, %s, 6' % (T0, sr(S_I)))
            a('v_add_u32 v6, %s, v3' % T0)
            a('v_lshlrev_b32 v6, 3, v6')
            for tb in range(4):
                for g in range(4):
                    a('ds_read_b64 %s, v6 offset:%d' % (vr(96 + (tb * 4 + g) * 2, 2), SP_OFF + tb * 128 + g * 1024))
            a('s_lshl_b32 %s, %s, 7' % (T0, sr(S_J)))
            a('v_lshlrev_b32 v7, 4, v4')
            a('v_add_u32 v7, %s, v7' % T0)
            for cb in range(2):
                for g in range(4):
                    a('ds_read_b128 %s, v7 offset:%d' % (vr(200 + (cb * 4 + g) * 4, 4), CSP_OFF + cb * 64 + g * 256))
            a('s_waitcnt lgkmcnt(0)')
            for tb in range(4):
                b = 96 + tb * 8
                for h in range(2):
                    a('v_add_f32 %s, %s, %s' % (vr(b + h), vr(b + h), vr(b + 2 + h)))
                    a('v_add_f32 %s, %s, %s' % (vr(b + 4 + h), vr(b + 4 + h), vr(b + 6 + h)))
                    a('v_add_f32 %s, %s, %s' % (vr(48 + 2 * tb + h), vr(b + h), vr(b + 4 + h)))
            for cb in range(2):
                b = 200 + cb * 16
                for r in range(4):
                    a('v_add_f32 %s, %s, %s' % (vr(b + r), vr(b + r), vr(b + 4 + r)))
                    a('v_add_f32 %s, %s, %s' % (vr(b + 8 + r), vr(b + 8 + r), vr(b + 12 + r)))
                    a('v_add_f32 %s, %s, %s' % (vr(VC + 4 * cb + r), vr(b + r), vr(b + 8 + r)))
        else:
            SP_OFF = S * STAGE; CS_OFF = SP_OFF + 2048
            a('s_lshl_b32 %s, %s, 6' % (T0, sr(S_I)))
            a('v_add_u32 v6, %s, v3' % T0)
            a('v_lshlrev_b32 v6, 3, v6')
            a('v_add_u32 v6, 0x%x, v6' % SP_OFF)
            for tb in range(4):
                a('ds_read_b64 %s, v6 offset:%d' % (vr(48 + 2 * tb, 2), tb * 128))
                a('ds_read_b64 %s, v6 offset:%d' % (vr(56 + 2 * tb, 2), tb * 128 + 1024))
        if not (c.epi == 'gelu_inloop' and c.stats == 'dot'):
            a('s_mul_i32 %s, %s, %d' % (T0, sr(S_J), CB * 64))
            a('s_add_u32 %s, %s, 0x%x' % (T0, T0, CS_OFF))
            a('v_lshlrev_b32 v10, 4, v4')
            a('v_add_u32 v10, %s, v10' % T0)
            for cb in range(CB):
                a('ds_read_b128 %s, v10 offset:%d' % (vr(VC + 4 * cb, 4), cb * 64))
            a('s_waitcnt lgkmcnt(0)')
        chains = []
        for tb in range(4):
            ch = []
            e = ch.append
            sm, sq = 48 + 2 * tb, 49 + 2 * tb
            if c.epi == 'gelu_pre':
                e('v_add_f32 %s, %s, %s' % (vr(sm), vr(sm), vr(56 + 2 * tb)))
                e('v_add_f32 %s, %s, %s' % (vr(sq), vr(sq), vr(57 + 2 * tb)))
            NM, A0c, A1c, SI = PC + 4 * tb, PC + 4 * tb + 1, PC + 4 * tb + 2, PC + 4 * tb + 3
            e('v_mul_f32 %s, 0x%x, %s' % (vr(sm), f2u(1.0 / 1024), vr(sm)))
            e('v_mul_f32 %s, 0x%x, %s' % (vr(sq), f2u(1.0 / 1024), vr(sq)))
            e('v_fma_f32 %s, -%s, %s, %s' % (vr(sq), vr(sm), vr(sm), vr(sq)))
            e('v_max_f32 %s, 0, %s' % (vr(sq), vr(sq)))
            e('v_cvt_pk_bf16_f32 %s, %s, %s' % (vr(sm), vr(sm), vr(sq)))
            e('v_lshlrev_b32 %s, 16, %s' % (vr(NM), vr(sm)))
            e('v_and_b32 %s, %s, %s' % (vr(sq), sr(S_MASK), vr(sm)))
            e('v_xor_b32 %s, 0x80000000, %s' % (vr(NM), vr(NM)))
            e('v_add_f32 %s, 0x%x, %s' % (vr(sq), f2u(1e-5), vr(sq)))
            e('v_cvt_pk_bf16_f32 %s, %s, %s' % (vr(sq), vr(sq), vr(sq)))
            e('v_and_b32 %s, %s, %s' % (vr(sq), sr(S_MASK), vr(sq)))
            e('v_sqrt_f32 %s, %s' % (vr(sq), vr(sq)))
            e('v_cvt_pk_bf16_f32 %s, %s, %s' % (vr(sq), vr(sq), vr(sq)))
            e('v_and_b32 %s, %s, %s' % (vr(SI), sr(S_MASK), vr(sq)))
            e('v_rcp_f32 %s, %s' % (vr(sq), vr(SI)))
            e('v_mul_f32 %s, %s, %s' % (vr(A0c), sr(S_C0), vr(sq)))
            e('v_mul_f32 %s, %s, %s' % (vr(sm), vr(sq), vr(sq)))
            e('v_mul_f32 %s, %s, %s' % (vr(sm), vr(sm), vr(sq)))
            e('v_mul_f32 %s, %s, %s' % (vr(A1c), sr(S_C1), vr(sm)))
            chains.append(ch)
        for k in range(len(chains[0])):
            for ch in chains:
                a(ch[k])
    def finish_tiles(tiles):
        prs = []
        tmp = 16
        for (tb, cb) in tiles:
            for h in range(2):
                prs.append((ACC[tb][cb] + 2 * h, VC + 4 * cb + 2 * h, tb, tmp)); tmp += 2
        assert tmp <= 32
        if gelu:
            for (y, cs, tb, t) in prs:
                a('v_pk_fma_f32 %s, %s, %s, %s op_sel_hi:[1,0,1]' % (vr(y, 2), vr(cs, 2), vr(PC + 4 * tb, 2), vr(y, 2)))
            for (y, cs, tb, t) in prs:
                a('v_pk_mul_f32 %s, %s, %s' % (vr(t, 2), vr(y, 2), vr(y, 2)))
            for (y, cs, tb, t) in prs:
                a('v_pk_fma_f32 %s, %s, %s, %s op_sel:[0,0,1] op_sel_hi:[1,0,1]' % (vr(t, 2), vr(t, 2), vr(PC + 4 * tb + 2, 2), vr(PC + 4 * tb, 2)))
            for (y, cs, tb, t) in prs:
                a('v_pk_mul_f32 %s, %s, %s' % (vr(t, 2), vr(t, 2), vr(y, 2)))
            for (y, cs, tb, t) in prs:
                a('v_exp_f32 %s, %s' % (vr(t), vr(t)))
                a('v_exp_f32 %s, %s' % (vr(t + 1), vr(t + 1)))
            for (y, cs, tb, t) in prs:
                a('v_pk_fma_f32 %s, %s, %s, %s op_sel:[0,1,1] op_sel_hi:[1,1,1]' % (vr(t, 2), vr(t, 2), vr(PC + 4 * tb + 2, 2), vr(PC + 4 * tb + 2, 2)))
            for (y, cs, tb, t) in prs:
                a('v_rcp_f32 %s, %s' % (vr(t), vr(t)))
                a('v_rcp_f32 %s, %s' % (vr(t + 1), vr(t + 1)))
            for (y, cs, tb, t) in prs:
                a('v_pk_mul_f32 %s, %s, %s' % (vr(y, 2), vr(y, 2), vr(t, 2)))
        for (tb, cb) in tiles:
            A0 = ACC[tb][cb]
            a('v_cvt_pk_bf16_f32 %s, %s, %s' % (vr(A0), vr(A0), vr(A0 + 1)))
            a('v_cvt_pk_bf16_f32 %s, %s, %s' % (vr(A0 + 1), vr(A0 + 2), vr(A0 + 3)))
        for (tb, cb) in tiles:
            a('ds_write_b64 v5, %s offset:%d' % (vr(ACC[tb][cb], 2), tb * 16 * RS + cb * 32))
    if BN != 224:
        for tb in range(4):
            finish_tiles([(tb, cb) for cb in range(CB)])
        a('s_waitcnt lgkmcnt(0)')
        a('s_branch %s' % L('store'))
    else:
        for tb in range(4):
            tl = [(tb, cb) for cb in range(CB)]
            finish_tiles(tl[0:4]); finish_tiles(tl[4:7])
            a('s_waitcnt lgkmcnt(0)')
            a('s_barrier')
        a('s_endpgm')

    a.label(L('prod'))
    a('s_sub_u32 %s, %s, 4' % (sr(S_ROLE), sr(S_WAVE)))
    a('v_lshrrev_b32 v3, 3, v2')
    a('v_and_b32 v4, 7, v2')
    a('v_lshrrev_b32 v5, 4, v2')
    a('s_lshl_b32 %s, %s, 5' % (T0, sr(S_ROLE)))
    a('s_add_u32 %s, %s, %s' % (T0, T0, sr(S_ROW)))
    a('s_mov_b32 %s, %d' % (T1, c.Tstride))
    a('v_add_u32 v6, %s, v3' % T0)
    a('v_mul_lo_u32 v6, v6, %s' % T1)
    if c.split and not c.early:
        a('s_mul_i32 %s, %s, %d' % (T0, sr(S_KH), KLEN * 2))
        a('v_add_u32 v6, %s, v6' % T0)
    if c.early:
        a('s_mul_i32 s72, %s, %d' % (sr(S_KH), KLEN * 2))
        a('s_sub_u32 s73, %d, s72' % (KLEN * 2))
        a('s_mul_i32 s74, %s, %d' % (sr(S_KH), KLEN * c.Wstride))
        a('s_sub_u32 s75, %d, s74' % (KLEN * c.Wstride))
        a('s_lshl_b32 %s, %s, 6' % (T0, sr(S_KH)))
        a('s_lshl_b32 %s, %s, 4' % (T2, sr(S_ROLE)))
        a('s_add_u32 %s, %s, %s' % (T0, T0, T2))
        a('s_lshl_b32 s5, %s, 7' % T0)
        a('s_add_u32 %s, %s, %s' % (T0, T0, sr(S_ROW)))
        a('v_add_u32 v16, %s, v3' % T0)
        a('v_mul_lo_u32 v16, v16, %s' % T1)
        a('v_xor_b32 v7, v4, v5')
        a('v_xor_b32 v20, 4, v7')
        a('v_lshl_add_u32 v17, v20, 4, v16')
        a('v_add_u32 v17, %d, v17' % (8 * c.Tstride))
        a('v_lshl_add_u32 v16, v7, 4, v16')
    a('v_xor_b32 v7, v4, v5')
    a('v_lshl_add_u32 v8, v7, 4, v6')
    a('v_xor_b32 v7, 4, v7')
    a('v_lshl_add_u32 v9, v7, 4, v6')
    a('v_add_u32 v9, %d, v9' % (8 * c.Tstride))
    a('v_add_u32 v10, %d, v8' % (16 * c.Tstride))
    a('v_add_u32 v11, %d, v9' % (16 * c.Tstride))
    a('s_lshl_b32 %s, %s, 1' % (T2, sr(S_COL)))
    if c.split and not c.early:
        a('s_mul_i32 %s, %s, %d' % (T0, sr(S_KH), KLEN * c.Wstride))
        a('s_add_u32 %s, %s, %s' % (T2, T2, T0))
    a('s_mov_b32 %s, %d' % (T1, c.Wstride))
    if BN == 64:
        a('s_lshl_b32 %s, %s, 4' % (T0, sr(S_ROLE)))
        a('v_add_u32 v6, %s, v3' % T0)
        a('v_mul_lo_u32 v6, v6, %s' % T1)
        a('v_add_u32 v6, %s, v6' % T2)
        a('v_and_b32 v7, 1, v5')
        a('v_lshlrev_b32 v7, 1, v7')
        a('v_xor_b32 v7, v4, v7')
        a('v_lshl_add_u32 v12, v7, 4, v6')
        a('v_xor_b32 v7, 4, v7')
        a('v_lshl_add_u32 v13, v7, 4, v6')
        a('v_add_u32 v13, %d, v13' % (8 * c.Wstride))
    elif BN == 128:
        a('s_lshl_b32 %s, %s, 4' % (T0, sr(S_ROLE)))
        a('v_add_u32 v6, %s, v5' % T0)
        a('v_mul_lo_u32 v6, v6, %s' % T1)
        a('v_add_u32 v6, %s, v6' % T2)
        a('v_and_b32 v7, 15, v2')
        a('v_lshlrev_b32 v20, 1, v5')
        a('v_xor_b32 v7, v7, v20')
        a('v_lshl_add_u32 v12, v7, 4, v6')
        a('v_add_u32 v13, %d, v12' % (4 * c.Wstride))
        a('v_xor_b32 v7, 8, v7')
        a('v_lshl_add_u32 v14, v7, 4, v6')
        a('v_add_u32 v14, %d, v14' % (8 * c.Wstride))
        a('v_add_u32 v15, %d, v14' % (4 * c.Wstride))
    else:
        for q in range(NWQ):
            a('s_mul_i32 %s, %s, %d' % (T0, sr(S_ROLE), NWQ * 64))
            a('s_add_u32 %s, %s, %d' % (T0, T0, q * 64))
            a('v_add_u32 v6, %s, v2' % T0)
            a('v_mul_u32_u24 v7, 2341, v6')
            a('v_lshrrev_b32 v7, 16, v7')
            a('v_mul_u32_u24 v20, 28, v7')
            a('v_sub_u32 v6, v6, v20')
            a('v_bfe_u32 v20, v7, 3, 1')
            a('v_lshlrev_b32 v20, 1, v20')
            a('v_xor_b32 v6, v6, v20')
            a('v_mul_lo_u32 v7, v7, %s' % T1)
            a('v_lshl_add_u32 v6, v6, 4, v7')
            a('v_add_u32 %s, %s, v6' % (vr(12 + q), T2))
    a('s_lshl_b32 %s, %s, 12' % (sr(S_PT), sr(S_ROLE)))
    a('s_mul_i32 %s, %s, %d' % (sr(S_PW), sr(S_ROLE), NWQ * 1024))
    a('s_add_u32 %s, %s, 16384' % (sr(S_PW), sr(S_PW)))
    shift = [0]
    log = []
    def other(n):
        log.extend([('x',)] * n)
    def issue(st):
        slot = st % S
        if c.shift:
            d = [-1, 1, -2, 2][st // 4]
            if d != shift[0]:
                for q in range(4):
                    a('v_add_u32 %s, 0x%x, %s' % (vr(8 + q), ((d - shift[0]) * c.Tstride) & 0xffffffff, vr(8 + q)))
                shift[0] = d
        full = True
        if c.early:
            full = st < NF
            if st < NHALF:
                a('s_add_u32 %s, s72, 0x%x' % (sr(S_OFT), st * 128))
                a('s_add_u32 %s, s74, 0x%x' % (sr(S_OFW), st * 64 * c.Wstride))
            else:
                s2_ = NF + (st - NHALF)
                a('s_add_u32 %s, s73, 0x%x' % (sr(S_OFT), s2_ * 128))
                a('s_add_u32 %s, s75, 0x%x' % (sr(S_OFW), s2_ * 64 * c.Wstride))
        else:
            a('s_mov_b32 %s, 0x%x' % (sr(S_OFT), st * 128))
            a('s_mov_b32 %s, 0x%x' % (sr(S_OFW), st * 64 * c.Wstride))
        if full:
            for q in range(4):
                a('s_add_u32 m0, %s, 0x%x' % (sr(S_PT), slot * STAGE + q * 1024))
                a('s_nop 0')
                a('buffer_load_dwordx4 %s, %s, %s offen lds' % (vr(8 + q), sr(SRD_T, 4), sr(S_OFT)))
        else:
            for q in range(2):
                a('s_add_u32 m0, s5, 0x%x' % (slot * STAGE + q * 1024))
                a('s_nop 0')
                a('buffer_load_dwordx4 %s, %s, %s offen lds' % (vr(16 + q), sr(SRD_T, 4), sr(S_OFT)))
        for q in range(NWQ):
            a('s_add_u32 m0, %s, 0x%x' % (sr(S_PW), slot * STAGE + q * 1024))
            a('s_nop 0')
            a('buffer_load_dwordx4 %s, %s, %s offen lds' % (vr(12 + q), sr(SRD_W, 4), sr(S_OFW)))
        log.extend([('st', st)] * ((4 if full else 2) + NWQ))
        if st == NS - 1:
            after_last_issue()
    def pre_stats_loads():
        a('v_subrev_u32 v28, 256, v0')
        a('v_and_b32 v5, 127, v28')
        a('v_lshrrev_b32 v6, 7, v28')
        a('v_add_u32 v7, %s, v5' % sr(S_ROW))
        a('v_lshlrev_b32 v7, 3, v7')
        a('v_lshl_add_u32 v7, v6, 17, v7')
        for m in range(8):
            a('s_mov_b32 %s, 0x%x' % (T0, m * S_ * 8))
            a('buffer_load_dwordx2 %s, v7, %s, %s offen' % (vr(32 + 2 * m, 2), sr(SRD_X, 4), T0))
        a('v_add_u32 v22, %s, v28' % sr(S_COL))
        a('v_lshlrev_b32 v22, 2, v22')
        a('v_cmp_gt_u32 vcc, 224, v28')
        a('v_mov_b32 v23, 0x%x' % OOB)
        a('s_nop 0')
        a('v_cndmask_b32 v22, v23, v22, vcc')
        for m in range(16):
            a('s_mov_b32 %s, 0x%x' % (T0, m * F_ * 4))
            a('buffer_load_dword %s, v22, %s, %s offen' % (vr(48 + m), sr(SRD_Y, 4), T0))
        other(24)
    def pre_stats_finish():
        SP_OFF = S * STAGE
        CS_OFF = SP_OFF + 2048
        for m in range(1, 8):
            a('v_add_f32 v32, v32, %s' % vr(32 + 2 * m))
            a('v_add_f32 v33, v33, %s' % vr(33 + 2 * m))
        a('v_and_b32 v5, 127, v28')
        a('v_lshrrev_b32 v6, 7, v28')
        a('v_lshlrev_b32 v5, 3, v5')
        a('v_lshl_add_u32 v5, v6, 10, v5')
        a('v_add_u32 v5, 0x%x, v5' % SP_OFF)
        a('ds_write_b64 v5, v[32:33]')
        for m in range(1, 16):
            a('v_add_f32 v48, v48, %s' % vr(48 + m))
        a('v_lshlrev_b32 v5, 2, v28')
        a('v_add_u32 v5, 0x%x, v5' % CS_OFF)
        a('ds_write_b32 v5, v48')
        a('s_waitcnt lgkmcnt(0)')
    def after_last_issue():
        if BN != 224:
            other(resid_loads())
        if c.epi == 'resid_stats':
            mk_srd(a, SRD_P, 'w3', D_ * F_ * 2)
            a('s_and_b32 %s, s2, 15' % T0)
            a('s_lshl_b32 %s, %s, 6' % (T0, T0))
            a('s_lshl_b32 %s, %s, 4' % (T1, sr(S_ROLE)))
            a('s_add_u32 %s, %s, %s' % (T0, T0, T1))
            a('v_lshrrev_b32 v3, 5, v2')
            a('v_add_u32 v3, %s, v3' % T0)
            a('v_mul_u32_u24 v3, 7168, v3')
            a('v_and_b32 v4, 31, v2')
            a('v_lshl_add_u32 v3, v4, 4, v3')
            a('s_lshr_b32 %s, s2, 4' % T1)
            a('s_mul_i32 %s, %s, 448' % (T1, T1))
            a('v_add_u32 v3, %s, v3' % T1)
            a('v_cmp_gt_u32 vcc, 28, v4')
            a('v_mov_b32 v5, 0x%x' % OOB)
            a('s_nop 0')
            a('v_cndmask_b32 v3, v5, v3, vcc')
            for m in range(8):
                a('s_mov_b32 %s, 0x%x' % (T0, m * 2 * 7168))
                a('buffer_load_dwordx4 %s, v3, %s, %s offen' % (vr(64 + 4 * m, 4), sr(SRD_P, 4), T0))
            other(8)
    if c.prof:
        a('s_memrealtime s[98:99]')
    nxt_issue = 0
    for _ in range(min(c.first, S)):
        issue(nxt_issue); nxt_issue += 1
    common_srds()
    if c.prof:
        a('s_memrealtime s[100:101]')
    pre_idx = None
    for t in range(NS):
        lastpos = max(i for i, e in enumerate(log) if e == ('st', t))
        n_after = len(log) - 1 - lastpos
        assert n_after <= 63, n_after
        a('s_waitcnt vmcnt(%d)' % n_after)
        a('s_barrier')
        if c.prof and c.trace and t < 64:
            a('s_memrealtime s[6:7]')
            a('s_waitcnt lgkmcnt(0)')
            a('v_writelane_b32 v254, s6, %d' % t)
        if c.prof and t == 0:
            a('s_memrealtime s[78:79]')
            a('s_memtime s[92:93]')
        if c.prof and t == NS // 2:
            a('s_memrealtime s[88:89]')
        k = 0
        while nxt_issue < NS and nxt_issue <= max(S - 1, t - 1 + S) and k < c.rate:
            issue(nxt_issue); nxt_issue += 1; k += 1
        if c.epi == 'gelu_pre' and t == 0:
            pre_stats_loads(); pre_idx = len(log) - 1
            if c.zflags:
                mk_srd(a, SRD_P, ('ws', WS_FLAG), 512 * 128)
                a('s_lshl_b32 %s, s2, 8' % T0)
                a('v_lshlrev_b32 v6, 7, v2')
                a('v_add_u32 v6, %s, v6' % T0)
                a('v_cmp_gt_u32 vcc, 2, v2')
                a('v_mov_b32 v7, 0x%x' % OOB)
                a('v_mov_b32 v20, 0')
                a('v_cndmask_b32 v6, v7, v6, vcc')
                a('buffer_store_dword v20, v6, %s, 0 offen sc1' % sr(SRD_P, 4))
                other(1)
        if c.epi == 'gelu_pre' and t > 1 and pre_idx is not None and pre_idx >= 0 and lastpos > pre_idx:
            pre_stats_finish(); pre_idx = -1
    assert nxt_issue == NS
    a('s_barrier')
    if c.prof:
        a('s_memrealtime s[80:81]')
        a('s_memtime s[94:95]')
    if c.epi == 'gelu_inloop':
        a('s_barrier')
    if c.early:
        a('s_barrier')
    elif c.split:
        a('s_barrier')
        a('s_cmp_lg_u32 %s, 4' % sr(S_WAVE))
        a('s_cbranch_scc1 %s' % L('store'))
        a('s_lshr_b32 %s, s2, 2' % T1)
        a('s_lshl_b32 %s, %s, 2' % (T1, T1))
        a('s_and_b32 %s, s2, 3' % T2)
        a('s_lshl_b32 %s, %s, 3' % (T2, T2))
        a('s_lshl_b32 %s, 1, %s' % (T2, T2))
        a('v_mov_b32 v7, %s' % T1)
        a('v_mov_b32 v20, %s' % T2)
        a('v_cmp_eq_u32 vcc, 0, v2')
        a('v_mov_b32 v21, 0x%x' % OOB)
        a('s_nop 0')
        a('v_cndmask_b32 v7, v21, v7, vcc')
        a('buffer_atomic_or v20, v7, %s, 0 offen sc1' % sr(SRD_Y, 4))
    if c.epi == 'resid_stats':
        a('s_waitcnt vmcnt(0)')
        for r in range(8):
            a('v_mov_b32 %s, 0' % vr(24 + r))
        for m in range(8):
            for d in range(4):
                a('v_lshlrev_b32 v20, 16, %s' % vr(64 + 4 * m + d))
                a('v_and_b32 v21, %s, %s' % (sr(S_MASK), vr(64 + 4 * m + d)))
                a('v_add_f32 %s, %s, v20' % (vr(24 + 2 * d), vr(24 + 2 * d)))
                a('v_add_f32 %s, %s, v21' % (vr(25 + 2 * d), vr(25 + 2 * d)))
        a('v_lshrrev_b32 v3, 5, v2')
        a('s_lshl_b32 %s, %s, 1' % (T0, sr(S_ROLE)))
        a('v_add_u32 v3, %s, v3' % T0)
        a('v_mul_u32_u24 v3, 1024, v3')
        a('v_and_b32 v4, 31, v2')
        a('v_lshl_add_u32 v3, v4, 5, v3')
        a('ds_write_b128 v3, v[24:27] offset:32768')
        a('ds_write_b128 v3, v[28:31] offset:32784')
        a('s_waitcnt lgkmcnt(0)')
    if BN == 224:
        for q in range(4):
            a('s_mul_i32 %s, %s, 224' % (T0, sr(S_ROLE)))
            a('s_add_u32 %s, %s, %d' % (T0, T0, q * 64))
            a('v_add_u32 v6, %s, v2' % T0)
            a('v_mul_u32_u24 v7, 2341, v6')
            a('v_lshrrev_b32 v7, 16, v7')
            a('v_mul_u32_u24 v20, 28, v7')
            a('v_sub_u32 v6, v6, v20')
            a('v_and_b32 v20, 15, v7')
            a('v_lshrrev_b32 v7, 4, v7')
            a('v_lshl_add_u32 v7, v7, 6, v20')
            a('v_mul_u32_u24 v20, %d, v7' % RS)
            a('v_lshl_add_u32 %s, v6, 4, v20' % vr(24 + q))
            a('v_add_u32 v7, %s, v7' % sr(S_ROW))
            a('s_mov_b32 %s, %d' % (T1, c.Ostride))
            a('v_mul_lo_u32 v7, v7, %s' % T1)
            a('v_lshl_add_u32 v7, v6, 4, v7')
            a('s_lshl_b32 %s, %s, 1' % (T1, sr(S_COL)))
            a('v_add_u32 %s, %s, v7' % (vr(28 + q), T1))
            if q == 3:
                a('v_cmp_gt_u32 vcc, 32, v2')
                a('v_mov_b32 v20, 0x%x' % OOB)
                a('v_mov_b32 v21, 0')
                a('v_cndmask_b32 v31, v20, v31, vcc')
                a('v_cndmask_b32 v27, v21, v27, vcc')
        for tb in range(4):
            a('s_barrier')
            for q in range(4):
                a('ds_read_b128 %s, %s offset:%d' % (vr(32 + 16 * (tb & 1) + 4 * q, 4), vr(24 + q), tb * 16 * RS))
            a('s_mov_b32 %s, %d' % (T0, tb * 16 * c.Ostride))
            for q in range(4):
                a('s_waitcnt lgkmcnt(%d)' % (3 - q))
                a('buffer_store_dwordx4 %s, %s, %s, %s offen%s' % (vr(32 + 16 * (tb & 1) + 4 * q, 4), vr(28 + q), sr(SRD_O, 4), T0, ST))
        a('s_branch %s' % L('fin'))

    a.label(L('store'))
    if BN != 224:
        a('s_barrier')
        a('v_and_b32 v2, 63, v0')
        for q in range(2):
            rb_idx(q, 3, 4, 5)
            a('v_mul_u32_u24 v6, %d, v3' % RS)
            a('v_lshl_add_u32 v6, v4, 4, v6')
            a('ds_read_b128 %s, v6' % vr(32 + 4 * q, 4))
        if c.R is None:
            for q in range(2):
                a('s_waitcnt lgkmcnt(%d)' % (1 - q))
                a('buffer_store_dwordx4 %s, %s, %s, 0 offen%s' % (vr(32 + 4 * q, 4), vr(V_RBG + q), sr(SRD_O, 4), ST))
        else:
            a('s_waitcnt vmcnt(0) lgkmcnt(0)')
            for q in range(2):
                for d in range(4):
                    h = 32 + 4 * q + d; x = V_RES + 4 * q + d
                    a('v_lshlrev_b32 v8, 16, %s' % vr(h))
                    a('v_lshlrev_b32 v9, 16, %s' % vr(x))
                    a('v_and_b32 v10, %s, %s' % (sr(S_MASK), vr(h)))
                    a('v_and_b32 v11, %s, %s' % (sr(S_MASK), vr(x)))
                    a('v_add_f32 v8, v8, v9')
                    a('v_add_f32 v10, v10, v11')
                    a('v_cvt_pk_bf16_f32 %s, v8, v10' % vr(h))
                a('buffer_store_dwordx4 %s, %s, %s, 0 offen%s' % (vr(32 + 4 * q, 4), vr(V_RBG + q), sr(SRD_O, 4), ST))
            if c.epi == 'resid_stats':
                a('v_mov_b32 v21, 0x3f803f80')
                for q in range(2):
                    sv = 12 + 2 * q
                    a('v_mov_b32 %s, 0' % vr(sv))
                    a('v_mov_b32 %s, 0' % vr(sv + 1))
                    for d in range(4):
                        h = 32 + 4 * q + d
                        a('v_dot2c_f32_bf16 %s, %s, v21' % (vr(sv), vr(h)))
                        a('v_dot2c_f32_bf16 %s, %s, %s' % (vr(sv + 1), vr(h), vr(h)))
                a('s_nop 3')
                for dpp in ('quad_perm:[1,0,3,2]', 'quad_perm:[2,3,0,1]', 'row_half_mirror'):
                    for r in range(12, 16):
                        a('v_add_f32_dpp %s, %s, %s %s row_mask:0xf bank_mask:0xf' % (vr(r), vr(r), vr(r), dpp))
                    a('s_nop 0')
                for q in range(2):
                    rb_idx(q, 3, 4, 5)
                    a('v_add_u32 v3, %s, v3' % sr(S_ROW))
                    a('v_lshlrev_b32 v3, 3, v3')
                    a('s_lshl_b32 %s, %s, 14' % (T1, sr(S_CBK)))
                    a('v_add_u32 v3, %s, v3' % T1)
                    a('v_cmp_eq_u32 vcc, 0, v4')
                    a('v_mov_b32 v5, 0x%x' % OOB)
                    a('s_nop 0')
                    a('v_cndmask_b32 v3, v5, v3, vcc')
                    a('buffer_store_dwordx2 %s, v3, %s, 0 offen%s' % (vr(12 + 2 * q, 2), sr(SRD_X, 4), ST))
                a('s_cmp_lt_u32 %s, 4' % sr(S_WAVE))
                a('s_cbranch_scc1 %s' % L('fin'))
                a('v_subrev_u32 v3, 256, v0')
                a('v_lshlrev_b32 v4, 2, v3')
                for m in range(8):
                    a('ds_read_b32 %s, v4 offset:%d' % (vr(40 + m), 32768 + m * 1024))
                a('s_waitcnt lgkmcnt(0)')
                for m in range(1, 8):
                    a('v_add_f32 v40, v40, %s' % vr(40 + m))
                a('s_and_b32 %s, s2, 15' % T0)
                a('s_mul_i32 %s, %s, %d' % (T0, T0, F_ * 4))
                a('s_lshr_b32 %s, s2, 4' % T1)
                a('s_mul_i32 %s, %s, %d' % (T1, T1, 224 * 4))
                a('s_add_u32 %s, %s, %s' % (T0, T0, T1))
                a('v_add_u32 v4, %s, v4' % T0)
                a('v_cmp_gt_u32 vcc, 224, v3')
                a('v_mov_b32 v5, 0x%x' % OOB)
                a('s_nop 0')
                a('v_cndmask_b32 v4, v5, v4, vcc')
                a('buffer_store_dword v40, v4, %s, 0 offen%s' % (sr(SRD_Y, 4), ST))
    a.label(L('fin'))
    if c.prof:
        a('s_cmp_lg_u32 %s, 4' % sr(S_WAVE))
        a('s_cbranch_scc1 %s' % L('done'))
        a('s_waitcnt vmcnt(0)')
        a('s_memrealtime s[82:83]')
        a('s_memtime s[86:87]')
        a('s_getreg_b32 s90, hwreg(HW_REG_XCC_ID)')
        a('s_waitcnt lgkmcnt(0)')
        mk_srd(a, SRD_X, ('ws', WS_PROF + c.idx * 65536), 65536)
        for r in range(26):
            a('v_mov_b32 %s, s%d' % (vr(32 + r), 76 + r))
        a('s_lshl_b32 s3, s2, 8')
        a('v_mov_b32 v3, s3')
        a('v_cmp_eq_u32 vcc, 0, v2')
        a('v_mov_b32 v5, 0x%x' % OOB)
        a('s_nop 0')
        a('v_cndmask_b32 v3, v5, v3, vcc')
        if c.trace:
            mk_srd(a, SRD_Y, ('ws', WS_PROF + (8 + c.idx) * 65536), 65536)
            a('v_lshlrev_b32 v4, 2, v2')
            a('v_add_u32 v4, s3, v4')
            a('buffer_store_dword v254, v4, %s, 0 offen' % sr(SRD_Y, 4))
        for r in range(7):
            a('buffer_store_dwordx4 %s, v3, %s, 0 offen offset:%d' % (vr(32 + 4 * r, 4), sr(SRD_X, 4), 16 * r))
        if c.dbgout:
            a('s_cmp_lg_u32 s2, 0')
            a('s_cbranch_scc1 %s' % L('done'))
            a('s_waitcnt vmcnt(0)')
            mk_srd(a, SRD_X, ('ws', WS_PROF), 4 * 65536)
            mk_srd(a, SRD_Y, 'dbg', 256)
            a('v_lshrrev_b32 v3, 2, v2')
            a('v_lshlrev_b32 v3, 16, v3')
            a('v_and_b32 v4, 3, v2')
            a('v_lshl_add_u32 v3, v4, 3, v3')
            a('v_cmp_gt_u32 vcc, 16, v2')
            a('v_mov_b32 v5, 0x%x' % OOB)
            a('s_nop 0')
            a('v_cndmask_b32 v3, v5, v3, vcc')
            a('buffer_load_dword v6, v3, %s, 0 offen sc1' % sr(SRD_X, 4))
            a('v_lshlrev_b32 v4, 2, v2')
            a('v_cndmask_b32 v4, v5, v4, vcc')
            a('s_waitcnt vmcnt(0)')
            a('v_readfirstlane_b32 %s, v6' % T0)
            a('s_nop 3')
            a('v_subrev_u32 v6, %s, v6' % T0)
            a('buffer_store_dword v6, v4, %s, 0 offen' % sr(SRD_Y, 4))
    a.label(L('done'))
    a('s_endpgm')
    a.label(name + '_end')
    return S * STAGE + (4096 if c.epi == 'gelu_pre' else 0) + (32768 if c.early else 0)

def descriptor(name):
    return '''.amdhsa_kernel %s
  .amdhsa_next_free_vgpr 256
  .amdhsa_next_free_sgpr 102
  .amdhsa_accum_offset 256
  .amdhsa_group_segment_fixed_size 0
  .amdhsa_kernarg_size 64
  .amdhsa_user_sgpr_count 2
  .amdhsa_user_sgpr_kernarg_segment_ptr 1
  .amdhsa_system_sgpr_workgroup_id_x 1
.end_amdhsa_kernel
''' % name

def mk(name, **kw):
    c = Cfg()
    c.name = name
    c.prof = False; c.trace = False; c.shift = False; c.R = None; c.stflag = ' sc1'
    c.rot = 0; c.dbgout = False; c.early = 0; c.ackb = 5; c.chk = []; c.zflags = False; c.pf_at = []; c.grp0 = []; c.code0 = []; c.stats = 'mfma'; c.first = 2; c.rate = 2; c.split = False
    for k, v in kw.items():
        setattr(c, k, v)
    return c

def configs(opts, split4):
    base = 'standalone__mixer_s_mlp__prompt'
    k4 = dict(BN=128, S=4, map='split', split=True) if split4 else dict(BN=64, S=6, map='4x8')
    return [
        mk('k1_kernel', BN=64, K=1024, S=6, T='x', Tbytes=NB, Tstride=2048, W='w1', Wbytes=D_ * D_ * 2, Wstride=2048,
           O=('ws', WS_H), Obytes=S_ * HS, Ostride=HS, epi='gelu_inloop', map='4x8', **opts),
        mk('k2_kernel', BN=64, K=1024, S=6, T=('ws', WS_H), Tbytes=S_ * HS, Tstride=HS, W='w2', Wbytes=D_ * D_ * 2, Wstride=2048,
           O=('ws', WS_X1), Obytes=S_ * HS, Ostride=HS, epi='resid_stats', map='4x8', R='x', Rstride=2048, shift=True, **opts),
        mk('k3_kernel', BN=224, K=1024, S=3, T=('ws', WS_X1), Tbytes=S_ * HS, Tstride=HS, W='w3', Wbytes=D_ * F_ * 2, Wstride=7168,
           O=('ws', WS_G), Obytes=S_ * GS, Ostride=GS, epi='gelu_pre', map='8x4', **opts),
        mk(base + '_kernel', K=3584, T=('ws', WS_G), Tbytes=S_ * GS, Tstride=GS, W='w4', Wbytes=F_ * D_ * 2, Wstride=2048,
           O='out', Obytes=NB, Ostride=2048, epi='resid', R=('ws', WS_X1), Rstride=HS, **k4, **opts),
    ]

own_cols = lambda buf: (buf, D_ * D_ * 2, 2048, 3, 7, (0, 0, 0), 32, 32, (0, 1, 1024))
ITEMS = {
    'w2': own_cols('w2'),
    'w3': ('w3', D_ * F_ * 2, 7168, 6, 55, (0, 7, 128), 4, 4, (0, 0, 0)),
    'w4': ('w4', F_ * D_ * 2, 2048, 4, 15, (0, 7, 448), 14, 16, (0, 0, 0)),
}

def main():
    out = sys.argv[1]
    opts = {}
    for o in sys.argv[2:]:
        k, v = o.split('=', 1)
        opts[k] = eval(v)
    only = opts.pop('only', None)
    split4 = opts.pop('split4', True)
    pfat = opts.pop('pfat', {0: [(10, ['w2']), (13, ['w3'])], 2: [(2, ['w4:0']), (5, ['w4:1']), (8, ['w4:2']), (11, ['w4:3'])]})
    per = opts.pop('per', {})
    codepf = opts.pop('codepf', True)
    cfgs = configs(opts, split4)
    for ki, lst in pfat.items():
        def conv(n):
            if n[0] == 'g': return ('grp', int(n[1:]))
            if n[0] == 'B': return ('bad2', 'w4', F_ * D_ * 2, int(n[1]))
            if n[0] == 'b': return ('bad', 'w4', F_ * D_ * 2, int(n[1]) * 2048, int(n[2]))
            if n[0] == 'c': return ('code', cfgs[int(n[1])].name, 2)
            return ('onlywave', int(n[3]), ITEMS[n[:2]]) if len(n) > 2 else ITEMS[n]
        cfgs[ki].pf_at = [(it, [conv(n) for n in names]) for it, names in lst]
    if cfgs[3].__dict__.get('early') or any(d.get('early') for k, d in per.items() if k == 3):
        cfgs[2].zflags = True
    if codepf:
        cfgs[0].code0 = [(cfgs[0].name, 2, False)]
    for ki, d in per.items():
        for k, v in d.items(): setattr(cfgs[ki], k, v)
    if only is not None:
        cfgs = [cfgs[i] for i in only]
    a = Asm()
    ldss = []
    for i, c in enumerate(cfgs):
        c.idx = i
        ldss.append(gen_kernel(a, c))
    hdr = open('standalone__mixer_s_mlp__prompt.s.ref').read().split('; Override')[0]
    s = hdr
    for c, lds in zip(cfgs, ldss):
        s += '; @launch kernel=%s grid=(256,1,1) block=(512,1,1) lds=%d\n' % (c.name, lds)
    s += '.amdgcn_target "amdgcn-amd-amdhsa--gfx950"\n.text\n'
    s += a.text()
    s += '.section .rodata,"a"\n.p2align 6\n'
    for c in cfgs:
        s += descriptor(c.name) + '.p2align 6\n'
    open(out, 'w').write(s)

if __name__ == '__main__':
    main()
```

```python
import sys, struct

S_, D_, F_ = 2048, 1024, 3584
NB = S_ * D_ * 2
HS, GS = 2176, 7296
WS_H, WS_X1, WS_G = 0, 5 << 20, 10 << 20
WS_PART2 = 26 << 20
WS_CS3 = (26 << 20) + (256 << 10)
WS_PROF = 28 << 20
WS_FLAG = 27 << 20
WS_XCH = 32 << 20
C0 = -2.0 * 0.7978845608028654 * 1.4426950408889634
C1 = C0 * 0.044715
OOB = 0x7ffffff0

def f2u(f):
    return struct.unpack('<I', struct.pack('<f', f))[0]

class Asm:
    def __init__(self):
        self.L = []
    def __call__(self, s):
        self.L.append('    ' + s)
    def label(self, s):
        self.L.append(s + ':')
    def text(self):
        return '\n'.join(self.L) + '\n'

def vr(b, n=1):
    return 'v%d' % b if n == 1 else 'v[%d:%d]' % (b, b + n - 1)
def sr(b, n=1):
    return 's%d' % b if n == 1 else 's[%d:%d]' % (b, b + n - 1)

SRD_T, SRD_W, SRD_R, SRD_O, SRD_X, SRD_Y, SRD_P = 8, 12, 16, 20, 24, 28, 72
S_WAVE, S_ROW, S_COL, S_ROLE, S_I, S_J = 32, 33, 34, 35, 36, 37
S_OFT, S_OFW, S_CNT, S_SLOT, S_PT, S_PW = 38, 39, 40, 41, 42, 43
S_T0, S_T1, S_T2, S_T3 = 44, 45, 46, 47
S_RB, S_CBK = 48, 49
S_C0, S_C1, S_MASK = 50, 51, 52
S_XCD, S_IDX, S_KH = 53, 54, 55
P = {'x': 56, 'w1': 58, 'w2': 60, 'w3': 62, 'w4': 64, 'out': 66, 'dbg': 68, 'ws': 70}

class Cfg:
    pass

def ptr(nm):
    if isinstance(nm, tuple):
        return P['ws'], P['ws'] + 1, nm[1]
    return P[nm], P[nm] + 1, 0

def mk_srd(a, dst, src, nbytes):
    lo, hi, add = ptr(src)
    if add:
        a('s_add_u32 %s, %s, 0x%x' % (sr(dst), sr(lo), add))
        a('s_addc_u32 %s, %s, 0' % (sr(dst + 1), sr(hi)))
    else:
        a('s_mov_b32 %s, %s' % (sr(dst), sr(lo)))
        a('s_mov_b32 %s, %s' % (sr(dst + 1), sr(hi)))
    a('s_mov_b32 %s, 0x%x' % (sr(dst + 2), nbytes))
    a('s_mov_b32 %s, 0x20000' % sr(dst + 3))

def gen_kernel(a, c):
    name = c.name
    BN, CB, S = c.BN, c.BN // 32, c.S
    KLEN = c.K // 2 if c.split else c.K
    NS = KLEN // 64
    if c.early:
        NHALF = NS; NF = c.early; NS = 2 * NHALF - NF
    WROW = BN * 2
    STAGE = 16384 + 64 * WROW
    WT = 64 * WROW
    if c.rings:
        RT, RW = c.rings
        WBASE = RT * 16384
        RING = WBASE + RW * WT
    else:
        WBASE = 16384
        RING = S * STAGE
    NWQ = (64 * WROW // 1024) // 4
    NDMA = 4 + NWQ
    RS = BN * 2 + 16
    L = lambda s: '%s_%s' % (name, s)
    gelu = c.epi in ('gelu_inloop', 'gelu_pre')
    ST = c.stflag
    X, I = sr(S_XCD), sr(S_IDX)
    T0, T1, T2, T3 = sr(S_T0), sr(S_T1), sr(S_T2), sr(S_T3)

    a.L.append('.globl %s' % name)
    a.L.append('.p2align 8')
    a.L.append('.type %s,@function' % name)
    a.label(name)
    a('s_cmp_ge_u32 s2, 256')
    a('s_cbranch_scc1 %s' % L('done'))
    a('s_load_dwordx16 s[56:71], s[0:1], 0')
    if c.prof:
        a('s_memrealtime s[76:77]')
        a('s_memtime s[84:85]')
    a('s_and_b32 %s, s2, 7' % X)
    a('s_lshr_b32 %s, s2, 3' % I)
    def field(dst, src, shr, msk, shl):
        a('s_lshr_b32 %s, %s, %d' % (dst, src, shr))
        a('s_and_b32 %s, %s, %d' % (dst, dst, msk))
        if shl: a('s_lshl_b32 %s, %s, %d' % (dst, dst, shl))
    if c.map == '4x8':
        field(T1, X, 1, 3, 2); field(T2, I, 3, 3, 0); a('s_add_u32 %s, %s, %s' % (sr(S_RB), T1, T2))
        if c.rot:
            a('s_add_u32 %s, %s, %d' % (T3, I, c.rot))
            field(T1, X, 0, 1, 3); field(T2, T3, 0, 7, 0); a('s_add_u32 %s, %s, %s' % (sr(S_CBK), T1, T2))
        else:
            field(T1, X, 0, 1, 3); field(T2, I, 0, 7, 0); a('s_add_u32 %s, %s, %s' % (sr(S_CBK), T1, T2))
    elif c.map == '8x4':
        field(T1, X, 2, 1, 3); field(T2, I, 2, 7, 0); a('s_add_u32 %s, %s, %s' % (sr(S_RB), T1, T2))
        field(T1, X, 0, 3, 2); field(T2, I, 0, 3, 0); a('s_add_u32 %s, %s, %s' % (sr(S_CBK), T1, T2))
    elif c.map == 'split':
        field(sr(S_KH), X, 0, 1, 0)
        field(T1, X, 1, 1, 3); field(T2, I, 2, 7, 0); a('s_add_u32 %s, %s, %s' % (sr(S_RB), T1, T2))
        field(T1, X, 2, 1, 2); field(T2, I, 0, 3, 0); a('s_add_u32 %s, %s, %s' % (sr(S_CBK), T1, T2))
    a('s_lshl_b32 %s, %s, 7' % (sr(S_ROW), sr(S_RB)))
    a('s_mul_i32 %s, %s, %d' % (sr(S_COL), sr(S_CBK), BN))
    a('v_lshrrev_b32 v1, 6, v0')
    a('v_and_b32 v2, 63, v0')
    a('s_nop 0')
    a('v_readfirstlane_b32 %s, v1' % sr(S_WAVE))
    a('s_mov_b32 %s, 0x%x' % (sr(S_C0), f2u(C0)))
    a('s_mov_b32 %s, 0x%x' % (sr(S_C1), f2u(C1)))
    a('s_mov_b32 %s, 0xffff0000' % sr(S_MASK))
    a('s_waitcnt lgkmcnt(0)')
    if c.prof:
        a('s_memrealtime s[96:97]')
    mk_srd(a, SRD_T, c.T, c.Tbytes)
    mk_srd(a, SRD_W, c.W, c.Wbytes)
    if c.pfirst:
        a('s_cmp_lt_u32 %s, 4' % sr(S_WAVE))
        a('s_cbranch_scc1 %s' % L('cons'))
    else:
        a('s_cmp_ge_u32 %s, 4' % sr(S_WAVE))
        a('s_cbranch_scc1 %s' % L('prod'))
    IDX_C = len(a.L)
    a.label(L('cons'))

    def common_srds():
        mk_srd(a, SRD_O, c.O, c.Obytes)
        if c.R is not None:
            mk_srd(a, SRD_R, c.R, S_ * c.Rstride)
        if c.epi in ('resid_stats', 'gelu_pre'):
            mk_srd(a, SRD_X, ('ws', WS_PART2), 16 * S_ * 8)
            mk_srd(a, SRD_Y, ('ws', WS_CS3), 16 * F_ * 4)
        if c.split:
            mk_srd(a, SRD_X, ('ws', WS_XCH), 256 * 32768)
            mk_srd(a, SRD_Y, 'dbg', 256)

    V_RES, V_RBG, V_RBR = 240, 248, 252
    RB_SH = 3 if BN == 64 else 4
    def rb_idx(q, vrow, vch, vtmp):
        a('s_lshl_b32 %s, %s, 7' % (T0, sr(S_WAVE)))
        a('s_add_u32 %s, %s, %d' % (T0, T0, q * 64))
        a('v_add_u32 %s, %s, v2' % (vr(vtmp), T0))
        a('v_lshrrev_b32 %s, %d, %s' % (vr(vrow), RB_SH, vr(vtmp)))
        a('v_and_b32 %s, %d, %s' % (vr(vch), (1 << RB_SH) - 1, vr(vtmp)))
    def resid_loads():
        n = 0
        for q in range(2):
            rb_idx(q, 3, 4, 5)
            a('v_add_u32 v3, %s, v3' % sr(S_ROW))
            if c.split:
                a('s_lshl_b32 %s, %s, 6' % (T1, sr(S_KH)))
                a('v_add_u32 v3, %s, v3' % T1)
            a('v_lshlrev_b32 v4, 4, v4')
            a('s_lshl_b32 %s, %s, 1' % (T1, sr(S_COL)))
            a('v_add_u32 v4, %s, v4' % T1)
            a('v_mul_u32_u24 v5, %d, v3' % c.Ostride)
            a('v_add_u32 %s, v5, v4' % vr(V_RBG + q))
            if c.R is not None:
                a('v_mul_u32_u24 v5, %d, v3' % c.Rstride)
                a('v_add_u32 %s, v5, v4' % vr(V_RBR + q))
                a('buffer_load_dwordx4 %s, %s, %s, 0 offen' % (vr(V_RES + 4 * q, 4), vr(V_RBR + q), sr(SRD_R, 4)))
                n += 1
        return n

    def pf(item, onlywave=None, wreg=None):
        buf, nbytes, stride, sh, maxl, row_xcd, row_idx, rows_cu, col_xcd = item
        mk_srd(a, SRD_P, buf, nbytes)
        rpi = 64 >> sh
        per_wave = rows_cu // 4
        n = max(1, per_wave // rpi)
        def term(dst, spec):
            shr, msk, mul = spec
            a('s_lshr_b32 %s, %s, %d' % (dst, X, shr))
            a('s_and_b32 %s, %s, %d' % (dst, dst, msk))
            a('s_mul_i32 %s, %s, %d' % (dst, dst, mul))
        term(T0, row_xcd)
        a('s_mul_i32 %s, %s, %d' % (T1, I, row_idx))
        a('s_add_u32 %s, %s, %s' % (T0, T0, T1))
        a('s_mul_i32 %s, %s, %d' % (T1, sr(S_WAVE if wreg is None else wreg), per_wave))
        a('s_add_u32 %s, %s, %s' % (T0, T0, T1))
        term(T1, col_xcd)
        a('v_lshrrev_b32 v6, %d, v2' % sh)
        a('v_add_u32 v6, %s, v6' % T0)
        a('s_mov_b32 %s, %d' % (T2, stride))
        a('v_mul_lo_u32 v6, v6, %s' % T2)
        a('v_and_b32 v7, %d, v2' % ((1 << sh) - 1))
        if maxl < (1 << sh) - 1:
            a('v_min_u32 v7, %d, v7' % maxl)
        a('v_lshl_add_u32 v6, v7, 7, v6')
        a('v_add_u32 v6, %s, v6' % T1)
        for q in range(n):
            a('s_mov_b32 %s, %d' % (T2, q * rpi * stride))
            a('buffer_load_dword v250, v6, %s, %s offen' % (sr(SRD_P, 4), T2))

    cp_n = [0]
    def code_pf(target, nchunks, forward, skip=None):
        cp_n[0] += 1
        here = L('cpf%d' % cp_n[0])
        done = skip or (here + '_d')
        a('s_cmp_lg_u32 %s, 3' % sr(S_WAVE))
        a('s_cbranch_scc1 %s' % done)
        a('s_getpc_b64 s[4:5]')
        a.label(here)
        if forward:
            a('s_add_u32 s4, s4, %s-%s' % (target, here))
            a('s_addc_u32 s5, s5, 0')
        else:
            a('s_sub_u32 s4, s4, %s-%s' % (here, target))
            a('s_subb_u32 s5, s5, 0')
        a('s_and_b32 %s, %s, %d' % (T0, I, nchunks - 1))
        a('s_lshl_b32 %s, %s, 13' % (T0, T0))
        a('v_lshlrev_b32 v6, 7, v2')
        a('v_add_u32 v6, %s, v6' % T0)
        a('v_min_u32 v6, %s_end-%s-4, v6' % (target, target))
        a('global_load_dword v250, v6, s[4:5]')
        if skip is None:
            a.label(done)

    for (target, nch, fwd) in c.code0:
        code_pf(target, nch, fwd)
    a('s_lshr_b32 %s, %s, 1' % (sr(S_I), sr(S_WAVE)))
    a('s_and_b32 %s, %s, 1' % (sr(S_J), sr(S_WAVE)))
    VT = [[None] * 4, [None] * 4]
    VW = [[None] * CB, [None] * CB]
    nxt = 32
    for st in range(2):
        for tb in range(4):
            VT[st][tb] = nxt; nxt += 4
        for cb in range(CB):
            VW[st][cb] = nxt; nxt += 4
    assert nxt <= 128
    ACC = [[None] * CB for _ in range(4)]
    nxt = 128
    for tb in range(4):
        for cb in range(CB):
            ACC[tb][cb] = nxt; nxt += 4
    assert nxt <= 240
    NWA = 4 if BN == 128 else 2
    bT = [8, 9]; aT = [10, 11]
    bW = [12, 13, 14, 15][:NWA]; aW = [16, 17, 18, 19][:NWA]
    a('v_and_b32 v3, 15, v2')
    a('v_lshrrev_b32 v4, 4, v2')
    a('s_lshl_b32 %s, %s, 13' % (T0, sr(S_I)))
    a('v_lshlrev_b32 v5, 7, v3')
    a('v_lshrrev_b32 v6, 1, v3')
    a('v_xor_b32 v6, v6, v4')
    a('v_lshlrev_b32 v6, 4, v6')
    a('v_add3_u32 %s, v5, v6, %s' % (vr(bT[0]), T0))
    a('v_xor_b32 %s, 64, %s' % (vr(bT[1]), vr(bT[0])))
    a('v_lshrrev_b32 v5, 2, v3')
    a('v_lshl_add_u32 v6, v4, 3, v5')
    a('v_and_b32 v7, 3, v2')
    if BN == 64:
        a('v_lshlrev_b32 v6, 7, v6')
        a('v_lshl_add_u32 v6, v7, 3, v6')
        a('v_lshrrev_b32 v5, 1, v5')
        a('v_and_b32 v7, 1, v4')
        a('v_lshl_or_b32 v5, v7, 1, v5')
        a('s_lshl_b32 %s, %s, 1' % (T0, sr(S_J)))
        a('v_xor_b32 v5, %s, v5' % T0)
        a('v_lshl_add_u32 v6, v5, 5, v6')
        a('v_add_u32 %s, %d, v6' % (vr(bW[0]), WBASE))
        a('v_xor_b32 %s, 32, %s' % (vr(bW[1]), vr(bW[0])))
        woff = lambda s, cb, h: s * 4096 + h * 512
        wreg = lambda cb: cb
    elif BN == 128:
        a('v_lshlrev_b32 v6, 8, v6')
        a('v_lshl_add_u32 v6, v7, 3, v6')
        a('v_and_b32 v7, 1, v4')
        a('v_lshl_or_b32 v5, v7, 2, v5')
        a('s_lshl_b32 %s, %s, 2' % (T0, sr(S_J)))
        a('v_xor_b32 v5, %s, v5' % T0)
        a('v_lshl_add_u32 v6, v5, 5, v6')
        a('v_add_u32 %s, %d, v6' % (vr(bW[0]), WBASE))
        for cb in range(1, 4):
            a('v_xor_b32 %s, %d, %s' % (vr(bW[cb]), 32 * cb, vr(bW[0])))
        woff = lambda s, cb, h: s * 8192 + h * 1024
        wreg = lambda cb: cb
    else:
        a('v_mul_u32_u24 v6, 448, v6')
        a('v_lshl_add_u32 v6, v7, 3, v6')
        a('s_mul_i32 %s, %s, %d' % (T0, sr(S_J), 7 * 32))
        a('s_add_u32 %s, %s, %d' % (T0, T0, WBASE))
        a('v_add_u32 v6, %s, v6' % T0)
        a('v_and_b32 v7, 1, v4')
        a('v_lshlrev_b32 v7, 5, v7')
        a('v_add_u32 v5, v6, v7')
        a('v_sub_u32 v6, v6, v7')
        a('s_cmp_eq_u32 %s, 0' % sr(S_J))
        a('s_cselect_b64 vcc, -1, 0')
        a('v_cndmask_b32 %s, v6, v5, vcc' % vr(bW[0]))
        a('v_cndmask_b32 %s, v5, v6, vcc' % vr(bW[1]))
        woff = lambda s, cb, h: cb * 32 + s * 32 * 448 + h * 4 * 448
        wreg = lambda cb: cb & 1
    for tb in range(4):
        for cb in range(CB):
            for r in range(4):
                a('v_mov_b32 %s, 0' % vr(ACC[tb][cb] + r))
    SUMA, GRA, CSA, ONES = [176, 180], [184, 188], 192, 196
    if c.epi == 'gelu_inloop':
        for r in range(176, 196):
            a('v_mov_b32 %s, 0' % vr(r))
        for r in range(4):
            a('v_mov_b32 %s, 0x3f803f80' % vr(ONES + r))
    common_srds()
    if BN != 224:
        resid_loads()

    def grp_setup():
        a('s_lshr_b32 %s, %s, 1' % (T0, X))
        a('s_lshl_b32 %s, %s, 9' % (T0, T0))
        a('s_lshl_b32 %s, %s, 4' % (T1, I))
        a('s_add_u32 %s, %s, %s' % (T0, T0, T1))
        a('v_and_b32 v5, 15, v2')
        a('v_add_u32 v5, %s, v5' % T0)
        a('v_lshlrev_b32 v5, 11, v5')
        a('v_lshrrev_b32 v6, 4, v2')
        a('v_lshl_add_u32 v20, v6, 7, v5')
        a('v_and_b32 v5, 7, v2')
        a('v_lshlrev_b32 v5, 7, v5')
        a('v_bfe_u32 v7, v2, 3, 1')
        a('s_lshl_b32 %s, %s, 1' % (T0, I))
        a('v_add_u32 v7, %s, v7' % T0)
        a('v_lshl_add_u32 v7, v6, 6, v7')
        a('v_lshlrev_b32 v7, 11, v7')
        a('s_and_b32 %s, %s, 1' % (T0, X))
        a('s_lshl_b32 %s, %s, 10' % (T0, T0))
        a('v_add3_u32 v21, v5, v7, %s' % T0)
    def grp_pf(g, skip):
        a('s_cmp_gt_u32 %s, 1' % sr(S_WAVE))
        a('s_cbranch_scc1 %s' % skip)
        a('s_cmp_eq_u32 %s, 1' % sr(S_WAVE))
        lab = L('gw%d_%s' % (g, skip[-6:].replace('_', 'x')))
        a('s_cbranch_scc1 %s' % lab)
        a('s_mov_b32 %s, %d' % (T0, g * 512))
        a('buffer_load_dword v250, v20, %s, %s offen' % (sr(SRD_T, 4), T0))
        a('s_branch %s' % skip)
        a.label(lab)
        a('s_mov_b32 %s, %d' % (T0, g * 4 * 64 * 2048))
        a('buffer_load_dword v250, v21, %s, %s offen' % (sr(SRD_W, 4), T0))
    def k3_setup():
        a('s_lshr_b32 %s, %s, 2' % (T0, X))
        a('s_lshl_b32 %s, %s, 10' % (T0, T0))
        a('s_lshl_b32 %s, %s, 5' % (T1, I))
        a('s_add_u32 %s, %s, %s' % (T0, T0, T1))
        a('v_and_b32 v5, 31, v2')
        a('v_add_u32 v5, %s, v5' % T0)
        a('v_mul_u32_u24 v5, %d, v5' % c.Tstride)
        a('v_lshrrev_b32 v6, 5, v2')
        a('v_lshl_add_u32 v20, v6, 7, v5')
        a('v_and_b32 v5, 15, v2')
        a('v_min_u32 v5, 13, v5')
        a('v_lshlrev_b32 v5, 7, v5')
        a('v_bfe_u32 v7, v2, 4, 1')
        a('s_lshl_b32 %s, %s, 1' % (T0, I))
        a('v_add_u32 v7, %s, v7' % T0)
        a('v_lshl_add_u32 v7, v6, 6, v7')
        a('v_mul_u32_u24 v7, %d, v7' % c.Wstride)
        a('s_and_b32 %s, %s, 3' % (T0, X))
        a('s_mul_i32 %s, %s, 1792' % (T0, T0))
        a('v_add3_u32 v21, v5, v7, %s' % T0)
    def k3_pf(g, skip):
        a('s_cmp_gt_u32 %s, 1' % sr(S_WAVE))
        a('s_cbranch_scc1 %s' % skip)
        a('s_cmp_eq_u32 %s, 1' % sr(S_WAVE))
        lab = L('kw%d_%s' % (g, skip[-6:].replace('_', 'x')))
        a('s_cbranch_scc1 %s' % lab)
        a('s_mov_b32 %s, %d' % (T0, g * 256))
        a('buffer_load_dword v250, v20, %s, %s offen' % (sr(SRD_T, 4), T0))
        a('s_branch %s' % skip)
        a.label(lab)
        a('s_mov_b32 %s, %d' % (T0, g * 128 * c.Wstride))
        a('buffer_load_dword v250, v21, %s, %s offen' % (sr(SRD_W, 4), T0))
    if c.k3pf:
        k3_setup()
        for g in c.k3pf:
            k3_pf(g, L('k0s%d' % g))
            a.label(L('k0s%d' % g))
    if c.grp0 or any(it[0] == 'grp' for _, items in c.pf_at for it in items):
        grp_setup()
        for g in c.grp0:
            grp_pf(g, L('g0s%d' % g))
            a.label(L('g0s%d' % g))

    def reads(st, s):
        r = []
        order = [('T', 0), ('W', 0), ('T', 1), ('T', 2), ('T', 3)] + [('W', cb) for cb in range(1, CB)]
        for kind, i in order:
            if kind == 'T':
                r.append('ds_read_b128 %s, %s offset:%d' % (vr(VT[st][i], 4), vr(aT[s]), i * 2048))
            else:
                r.append('ds_read_b64_tr_b16 %s, %s offset:%d' % (vr(VW[st][i], 2), vr(aW[wreg(i)]), woff(s, i, 0)))
                r.append('ds_read_b64_tr_b16 %s, %s offset:%d' % (vr(VW[st][i] + 2, 2), vr(aW[wreg(i)]), woff(s, i, 1)))
        return r
    def mf(d, x, y):
        return 'v_mfma_f32_16x16x32_bf16 %s, %s, %s, %s' % (vr(d, 4), vr(x, 4), vr(y, 4), vr(d, 4))
    def mfmas(st, j=None, i=None):
        m = []
        for cb in range(CB):
            for tb in range(4):
                m.append(mf(ACC[tb][cb], VW[st][cb], VT[st][tb]))
        if c.epi == 'gelu_inloop' and c.stats == 'mfma':
            for z in range(2):
                tb = 2 * j + z
                m.append(mf(SUMA[z], ONES, VT[st][tb]))
                m.append(mf(GRA[z], VT[st][tb], VT[st][tb]))
            m.append(mf(CSA, VW[st][i], ONES))
        return m
    DS = 176
    def dots(st, j, i):
        if not (c.epi == 'gelu_inloop' and c.stats == 'dot'):
            return []
        e = []
        for d in range(4):
            for z in range(2):
                tb = 2 * j + z
                ch = (d & 1) * 4
                e.append('v_dot2c_f32_bf16 %s, %s, %s' % (vr(DS + ch + 2 * z), vr(VT[st][tb] + d), vr(ONES)))
                e.append('v_dot2c_f32_bf16 %s, %s, %s' % (vr(DS + ch + 2 * z + 1), vr(VT[st][tb] + d), vr(VT[st][tb] + d)))
            e.append('v_dot2c_f32_bf16 %s, %s, %s' % (vr(DS + 8 + (d & 1)), vr(VW[st][i] + d), vr(ONES)))
        return e
    def interleave(ms, rs, es=()):
        rs = list(rs); es = list(es)
        n = len(ms)
        for k, m in enumerate(ms):
            a(m)
            if rs:
                a(rs.pop(0))
            q = -(-len(es) // (n - k))
            for _ in range(q):
                a(es.pop(0))
        for r_ in rs: a(r_)
    def setaddr(regs):
        for ar, br in regs:
            a('v_add_u32 %s, %s, %s' % (vr(ar), 's6' if (c.rings and ar in aW) else sr(S_SLOT), vr(br)))
    WA = list(zip(aW, bW))

    ool = []
    def mainloop(tag, j, i):
        a('s_mov_b32 %s, 0' % sr(S_SLOT))
        if c.rings:
            a('s_mov_b32 s6, 0')
        if c.early:
            a('s_cmp_eq_u32 %s, %s' % (sr(S_I), sr(S_KH)))
            a('s_cselect_b32 %s, %d, %d' % (sr(S_CNT), NS, NF))
        else:
            a('s_mov_b32 %s, %d' % (sr(S_CNT), NS))
        a('s_barrier')
        setaddr([(aT[0], bT[0]), (aT[1], bT[1])] + WA)
        for r_ in reads(0, 0): a(r_)
        a.label(L('loop' + tag))
        for n_, (it, items) in enumerate(c.pf_at):
            lab = L('pfat%d%s' % (n_, tag)); ret = lab + '_r'
            a('s_cmp_eq_u32 %s, %d' % (sr(S_CNT), NS - it))
            a('s_cbranch_scc1 %s' % lab)
            a.label(ret)
            ool.append((lab, items, ret))
        a('s_waitcnt lgkmcnt(0)')
        interleave(mfmas(0, j, i), reads(1, 1), dots(0, j, i))
        if c.rings:
            a('s_add_u32 %s, %s, 16384' % (sr(S_SLOT), sr(S_SLOT)))
            a('s_cmp_eq_u32 %s, %d' % (sr(S_SLOT), RT * 16384))
            a('s_cselect_b32 %s, 0, %s' % (sr(S_SLOT), sr(S_SLOT)))
            a('s_add_u32 s6, s6, %d' % WT)
            a('s_cmp_eq_u32 s6, %d' % (RW * WT))
            a('s_cselect_b32 s6, 0, s6')
        else:
            a('s_add_u32 %s, %s, %d' % (sr(S_SLOT), sr(S_SLOT), STAGE))
            a('s_cmp_eq_u32 %s, %d' % (sr(S_SLOT), S * STAGE))
            a('s_cselect_b32 %s, 0, %s' % (sr(S_SLOT), sr(S_SLOT)))
        setaddr([(aT[0], bT[0])] + WA)
        a('s_waitcnt lgkmcnt(0)')
        a('s_barrier')
        interleave(mfmas(1, j, i), reads(0, 0), dots(1, j, i))
        setaddr([(aT[1], bT[1])])
        a('s_sub_u32 %s, %s, 1' % (sr(S_CNT), sr(S_CNT)))
        a('s_cmp_lg_u32 %s, 0' % sr(S_CNT))
        a('s_cbranch_scc1 %s' % L('loop' + tag))

    if c.epi == 'gelu_inloop':
        for w in range(4):
            if w < 3:
                a('s_cmp_lg_u32 %s, %d' % (sr(S_WAVE), w))
                a('s_cbranch_scc1 %s' % L('ver%d' % (w + 1)))
            mainloop('_%d' % w, w & 1, w >> 1)
            a('s_branch %s' % L('after'))
            if w < 3:
                a.label(L('ver%d' % (w + 1)))
    else:
        mainloop('', 0, 0)
        a('s_branch %s' % L('after'))
    for lab, items, ret in ool:
        a.label(lab)
        for item in items:
            if item[0] == 'grp':
                grp_pf(item[1], ret)
                continue
            if item[0] == 'k3g':
                k3_pf(item[1], ret)
                continue
            if item[0] == 'bad':
                _, buf, nbytes, k0, wv = item
                a('s_cmp_lg_u32 %s, %d' % (sr(S_WAVE), wv))
                a('s_cbranch_scc1 %s' % ret)
                mk_srd(a, SRD_P, buf, nbytes)
                a('s_lshl_b32 %s, %s, 6' % (T0, I))
                a('s_add_u32 %s, %s, %d' % (T0, T0, k0))
                a('v_add_u32 v6, %s, v2' % T0)
                a('v_lshlrev_b32 v6, 11, v6')
                a('s_and_b32 %s, %s, 1' % (T0, X))
                a('s_lshl_b32 %s, %s, 10' % (T0, T0))
                a('s_add_u32 %s, %s, 384' % (T0, T0))
                a('buffer_load_dword v250, v6, %s, %s offen' % (sr(SRD_P, 4), T0))
                continue
            if item[0] == 'bad2':
                _, buf, nbytes, wv = item
                a('s_cmp_lg_u32 %s, %d' % (sr(S_WAVE), wv))
                a('s_cbranch_scc1 %s' % ret)
                mk_srd(a, SRD_P, buf, nbytes)
                a('s_and_b32 %s, %s, 1' % (T1, X))
                a('s_mul_i32 %s, %s, 1792' % (T1, T1))
                a('s_lshl_b32 %s, %s, 6' % (T0, I))
                a('s_add_u32 %s, %s, %s' % (T0, T0, T1))
                a('v_add_u32 v6, %s, v2' % T0)
                a('v_lshlrev_b32 v6, 11, v6')
                a('s_lshr_b32 %s, %s, 2' % (T0, X))
                a('s_lshl_b32 %s, %s, 10' % (T0, T0))
                a('s_add_u32 %s, %s, 384' % (T0, T0))
                a('buffer_load_dword v250, v6, %s, %s offen' % (sr(SRD_P, 4), T0))
                continue
            if item[0] == 'code':
                code_pf(item[1], item[2], True, ret)
                continue
            if item[0] == 'onlywave':
                a('s_cmp_lg_u32 %s, %d' % (sr(S_WAVE), item[1]))
                a('s_cbranch_scc1 %s' % ret)
                item = item[2]
            pf(item)
        a('s_branch %s' % ret)
    a.label(L('after'))
    a('s_waitcnt lgkmcnt(0)')
    a('s_nop 7')
    a('s_nop 7')
    a('v_and_b32 v3, 15, v2')
    a('v_lshrrev_b32 v4, 4, v2')
    if c.early:
        XL = 131072
        a('s_lshl_b32 %s, s2, 15' % T3)
        a('s_lshl_b32 %s, %s, 14' % (T0, sr(S_J)))
        a('s_add_u32 %s, %s, %s' % (T3, T3, T0))
        a('v_lshlrev_b32 v6, 4, v2')
        a('s_cmp_eq_u32 %s, %s' % (sr(S_I), sr(S_KH)))
        a('s_cbranch_scc1 %s' % L('keep'))
        a('v_add_u32 v7, %s, v6' % T3)
        for tb in range(4):
            for cb in range(4):
                a('s_mov_b32 %s, %d' % (T0, (tb * 4 + cb) * 1024))
                a('buffer_store_dwordx4 %s, v7, %s, %s offen sc1' % (vr(ACC[tb][cb], 4), sr(SRD_X, 4), T0))
        mk_srd(a, SRD_Y, ('ws', WS_FLAG), 512 * 128)
        a('s_lshl_b32 %s, s2, 1' % T0)
        a('s_add_u32 %s, %s, %s' % (T0, T0, sr(S_J)))
        a('s_lshl_b32 %s, %s, 7' % (T1, T0))
        a('s_xor_b32 %s, %s, 256' % (T2, T1))
        a('v_mov_b32 v8, %s' % T2)
        a('v_mov_b32 v9, 1')
        a('v_mov_b32 v12, %s' % T1)
        a('v_cmp_eq_u32 vcc, 0, v2')
        a('v_mov_b32 v10, 0x%x' % OOB)
        a('s_nop 0')
        a('v_cndmask_b32 v10, v10, v12, vcc')
        a('s_xor_b32 %s, %s, 0x8000' % (T3, T3))
        a('v_add_u32 v7, %s, v6' % T3)
        a('s_add_u32 %s, %s, %d' % (T0, T3, 0))
        a('s_lshl_b32 %s, %s, 14' % (T0, sr(S_J)))
        a('v_add_u32 v11, %s, v6' % T0)
        a('v_add_u32 v11, %d, v11' % XL)
        a('s_mov_b32 s4, 0')
        NB_REM = NS - NF
        WAITB = min(c.ackb, NB_REM)
        def try_fetch(tag):
            skip = L('tf%s' % tag)
            a('s_cmp_lg_u32 s4, 0')
            a('s_cbranch_scc1 %s' % skip)
            a('s_waitcnt vmcnt(0)')
            a('v_readfirstlane_b32 %s, v20' % T1)
            a('s_nop 3')
            a('s_cmp_lg_u32 %s, 0' % T1)
            a('s_cbranch_scc1 %s' % (skip + 'g'))
            a('buffer_load_dword v20, v8, %s, 0 offen sc1' % sr(SRD_Y, 4))
            a('s_branch %s' % skip)
            a.label(skip + 'g')
            for n in range(16):
                a('s_mov_b32 %s, %d' % (T0, n * 1024))
                a('buffer_load_dwordx4 %s, v7, %s, %s offen sc1' % (vr(32 + 4 * n, 4), sr(SRD_X, 4), T0))
            a('s_mov_b32 s4, 1')
            a.label(skip)
        for n in range(NB_REM):
            a('s_barrier')
            if n + 1 == WAITB:
                a('s_waitcnt vmcnt(0)')
                a('buffer_store_dword v9, v10, %s, 0 offen sc1' % sr(SRD_Y, 4))
                a('buffer_load_dword v20, v8, %s, 0 offen sc1' % sr(SRD_Y, 4))
            elif n + 1 in c.chk:
                try_fetch('%d' % n)
        a.label(L('fpoll'))
        try_fetch('z')
        a('s_cmp_eq_u32 s4, 0')
        a('s_cbranch_scc1 %s' % L('fpoll'))
        for n in range(16):
            a('s_waitcnt vmcnt(%d)' % (15 - n))
            a('ds_write_b128 v11, %s offset:%d' % (vr(32 + 4 * n, 4), n * 1024))
        a('s_waitcnt lgkmcnt(0)')
        a('s_barrier')
        a('s_branch %s' % L('store'))
        a.label(L('keep'))
        a('s_lshl_b32 %s, %s, 14' % (T0, sr(S_J)))
        a('v_add_u32 v11, %s, v6' % T0)
        a('v_add_u32 v11, %d, v11' % XL)
        a('s_barrier')
        for n in range(16):
            a('ds_read_b128 %s, v11 offset:%d' % (vr(32 + 4 * n, 4), n * 1024))
        for tb in range(4):
            a('s_waitcnt lgkmcnt(%d)' % (12 - 4 * tb))
            for cb in range(4):
                for h in range(2):
                    d = ACC[tb][cb] + 2 * h; s_ = 32 + (tb * 4 + cb) * 4 + 2 * h
                    a('v_pk_add_f32 %s, %s, %s' % (vr(d, 2), vr(d, 2), vr(s_, 2)))
        a('s_lshl_b32 %s, %s, 7' % (T1, sr(S_J)))
        a('v_mul_u32_u24 v5, %d, v3' % RS)
        a('v_lshl_add_u32 v5, v4, 3, v5')
        a('v_add_u32 v5, %s, v5' % T1)
    elif c.split:
        a('s_lshl_b32 %s, s2, 15' % T3)
        a('s_lshl_b32 %s, %s, 14' % (T0, sr(S_J)))
        a('s_add_u32 %s, %s, %s' % (T3, T3, T0))
        a('v_lshlrev_b32 v6, 4, v2')
        a('s_cmp_eq_u32 %s, %s' % (sr(S_I), sr(S_KH)))
        a('s_cbranch_scc1 %s' % L('recv'))
        a('v_add_u32 v6, %s, v6' % T3)
        for tb in range(4):
            for cb in range(4):
                a('s_mov_b32 %s, %d' % (T0, (tb * 4 + cb) * 1024))
                a('buffer_store_dwordx4 %s, v6, %s, %s offen sc1' % (vr(ACC[tb][cb], 4), sr(SRD_X, 4), T0))
        a('s_waitcnt vmcnt(0)')
        a('s_barrier')
        a('s_branch %s' % L('store'))
        a.label(L('recv'))
        a('s_barrier')
        a('s_xor_b32 %s, s2, 1' % T0)
        a('s_lshr_b32 %s, %s, 2' % (T1, T0))
        a('s_lshl_b32 %s, %s, 2' % (T1, T1))
        a('s_and_b32 %s, %s, 3' % (T2, T0))
        a('s_lshl_b32 %s, %s, 3' % (T2, T2))
        a('v_mov_b32 v7, %s' % T1)
        a.label(L('poll'))
        a('buffer_load_dword v20, v7, %s, 0 offen sc1' % sr(SRD_Y, 4))
        a('s_waitcnt vmcnt(0)')
        a('v_readfirstlane_b32 %s, v20' % T1)
        a('s_nop 3')
        a('s_lshr_b32 %s, %s, %s' % (T1, T1, T2))
        a('s_and_b32 %s, %s, 0xff' % (T1, T1))
        a('s_cmp_lg_u32 %s, 0' % T1)
        a('s_cbranch_scc1 %s' % L('got'))
        a('s_sleep 1')
        a('s_branch %s' % L('poll'))
        a.label(L('got'))
        a('s_xor_b32 %s, %s, 0x8000' % (T3, T3))
        a('v_add_u32 v6, %s, v6' % T3)
        for tb in range(4):
            for cb in range(4):
                a('s_mov_b32 %s, %d' % (T0, (tb * 4 + cb) * 1024))
                a('buffer_load_dwordx4 %s, v6, %s, %s offen sc1' % (vr(32 + (tb * 4 + cb) * 4, 4), sr(SRD_X, 4), T0))
        for tb in range(4):
            a('s_waitcnt vmcnt(%d)' % (12 - 4 * tb))
            for cb in range(4):
                for h in range(2):
                    d = ACC[tb][cb] + 2 * h; s_ = 32 + (tb * 4 + cb) * 4 + 2 * h
                    a('v_pk_add_f32 %s, %s, %s' % (vr(d, 2), vr(d, 2), vr(s_, 2)))
        a('s_lshl_b32 %s, %s, 7' % (T1, sr(S_J)))
        a('v_mul_u32_u24 v5, %d, v3' % RS)
        a('v_lshl_add_u32 v5, v4, 3, v5')
        a('v_add_u32 v5, %s, v5' % T1)
    else:
        a('s_mul_i32 %s, %s, %d' % (T0, sr(S_I), 64 * RS))
        a('s_mul_i32 %s, %s, %d' % (T1, sr(S_J), CB * 32))
        a('s_add_u32 %s, %s, %s' % (T0, T0, T1))
        a('v_mul_u32_u24 v5, %d, v3' % RS)
        a('v_lshl_add_u32 v5, v4, 3, v5')
        a('v_add_u32 v5, %s, v5' % T0)
    PC, VC = 32, 80
    if gelu:
        if c.epi == 'gelu_inloop':
          if c.stats == 'mfma':
              GR_OFF = 32768; SM_OFF = GR_OFF + 8192; CS_OFF = SM_OFF + 512
              a('s_lshl_b32 %s, %s, 2' % (T0, sr(S_I)))
              a('s_lshl_b32 %s, %s, 1' % (T1, sr(S_J)))
              a('s_add_u32 %s, %s, %s' % (T0, T0, T1))
              a('s_lshl_b32 %s, %s, 10' % (T1, T0))
              a('v_lshlrev_b32 v6, 8, v4')
              a('v_lshl_add_u32 v6, v3, 2, v6')
              a('v_add_u32 v6, %s, v6' % T1)
              for z in range(2):
                  for r in range(4):
                      a('ds_write_b32 v6, %s offset:%d' % (vr(GRA[z] + r), GR_OFF + z * 1024 + r * 64))
              a('s_lshl_b32 %s, %s, 6' % (T1, T0))
              a('v_lshlrev_b32 v6, 2, v3')
              a('v_add_u32 v6, %s, v6' % T1)
              for z in range(2):
                  a('ds_write_b32 v6, %s offset:%d' % (vr(SUMA[z]), SM_OFF + z * 64))
              a('s_lshl_b32 %s, %s, 1' % (T0, sr(S_J)))
              a('s_add_u32 %s, %s, %s' % (T0, T0, sr(S_I)))
              a('s_lshl_b32 %s, %s, 6' % (T0, T0))
              a('v_lshlrev_b32 v6, 4, v4')
              a('v_add_u32 v6, %s, v6' % T0)
              a('ds_write_b128 v6, %s offset:%d' % (vr(CSA, 4), CS_OFF))
              a('s_waitcnt lgkmcnt(0)')
              a('s_barrier')
              a('s_lshl_b32 %s, %s, 8' % (T0, sr(S_I)))
              a('v_lshlrev_b32 v6, 2, v3')
              a('v_add_u32 v6, %s, v6' % T0)
              a('s_lshl_b32 %s, %s, 12' % (T0, sr(S_I)))
              a('v_mul_u32_u24 v7, 68, v3')
              a('v_add_u32 v7, %s, v7' % T0)
              for tb in range(4):
                  a('ds_read_b32 %s, v6 offset:%d' % (vr(48 + 2 * tb), SM_OFF + tb * 64))
                  a('ds_read_b32 %s, v7 offset:%d' % (vr(49 + 2 * tb), GR_OFF + tb * 1024))
          else:
            SP_OFF = 32768; CSP_OFF = SP_OFF + 4096; CS_OFF = CSP_OFF + 1024
            for r in range(4):
                a('v_add_f32 %s, %s, %s' % (vr(DS + r), vr(DS + r), vr(DS + 4 + r)))
            a('v_add_f32 %s, %s, %s' % (vr(DS + 8), vr(DS + 8), vr(DS + 9)))
            a('s_lshl_b32 %s, %s, 6' % (T0, sr(S_I)))
            a('s_lshl_b32 %s, %s, 5' % (T1, sr(S_J)))
            a('s_add_u32 %s, %s, %s' % (T0, T0, T1))
            a('v_add_u32 v6, %s, v3' % T0)
            a('v_lshlrev_b32 v6, 3, v6')
            a('v_lshl_add_u32 v6, v4, 10, v6')
            a('ds_write_b64 v6, %s offset:%d' % (vr(DS, 2), SP_OFF))
            a('ds_write_b64 v6, %s offset:%d' % (vr(DS + 2, 2), SP_OFF + 128))
            a('s_lshl_b32 %s, %s, 1' % (T0, sr(S_J)))
            a('s_add_u32 %s, %s, %s' % (T0, T0, sr(S_I)))
            a('s_lshl_b32 %s, %s, 4' % (T0, T0))
            a('v_add_u32 v6, %s, v3' % T0)
            a('v_lshlrev_b32 v6, 2, v6')
            a('v_lshl_add_u32 v6, v4, 8, v6')
            a('ds_write_b32 v6, %s offset:%d' % (vr(DS + 8), CSP_OFF))
            a('s_waitcnt lgkmcnt(0)')
            a('s_barrier')
            a('s_lshl_b32 %s, %s, 6' % (T0, sr(S_I)))
            a('v_add_u32 v6, %s, v3' % T0)
            a('v_lshlrev_b32 v6, 3, v6')
            for tb in range(4):
                for g in range(4):
                    a('ds_read_b64 %s, v6 offset:%d' % (vr(96 + (tb * 4 + g) * 2, 2), SP_OFF + tb * 128 + g * 1024))
            a('s_lshl_b32 %s, %s, 7' % (T0, sr(S_J)))
            a('v_lshlrev_b32 v7, 4, v4')
            a('v_add_u32 v7, %s, v7' % T0)
            for cb in range(2):
                for g in range(4):
                    a('ds_read_b128 %s, v7 offset:%d' % (vr(200 + (cb * 4 + g) * 4, 4), CSP_OFF + cb * 64 + g * 256))
            a('s_waitcnt lgkmcnt(0)')
            for tb in range(4):
                b = 96 + tb * 8
                for h in range(2):
                    a('v_add_f32 %s, %s, %s' % (vr(b + h), vr(b + h), vr(b + 2 + h)))
                    a('v_add_f32 %s, %s, %s' % (vr(b + 4 + h), vr(b + 4 + h), vr(b + 6 + h)))
                    a('v_add_f32 %s, %s, %s' % (vr(48 + 2 * tb + h), vr(b + h), vr(b + 4 + h)))
            for cb in range(2):
                b = 200 + cb * 16
                for r in range(4):
                    a('v_add_f32 %s, %s, %s' % (vr(b + r), vr(b + r), vr(b + 4 + r)))
                    a('v_add_f32 %s, %s, %s' % (vr(b + 8 + r), vr(b + 8 + r), vr(b + 12 + r)))
                    a('v_add_f32 %s, %s, %s' % (vr(VC + 4 * cb + r), vr(b + r), vr(b + 8 + r)))
        else:
            SP_OFF = RING; CS_OFF = SP_OFF + 2048
            a('s_lshl_b32 %s, %s, 6' % (T0, sr(S_I)))
            a('v_add_u32 v6, %s, v3' % T0)
            a('v_lshlrev_b32 v6, 3, v6')
            a('v_add_u32 v6, 0x%x, v6' % SP_OFF)
            for tb in range(4):
                a('ds_read_b64 %s, v6 offset:%d' % (vr(48 + 2 * tb, 2), tb * 128))
                a('ds_read_b64 %s, v6 offset:%d' % (vr(56 + 2 * tb, 2), tb * 128 + 1024))
        if not (c.epi == 'gelu_inloop' and c.stats == 'dot'):
            a('s_mul_i32 %s, %s, %d' % (T0, sr(S_J), CB * 64))
            a('s_add_u32 %s, %s, 0x%x' % (T0, T0, CS_OFF))
            a('v_lshlrev_b32 v10, 4, v4')
            a('v_add_u32 v10, %s, v10' % T0)
            for cb in range(CB):
                a('ds_read_b128 %s, v10 offset:%d' % (vr(VC + 4 * cb, 4), cb * 64))
            a('s_waitcnt lgkmcnt(0)')
        chains = []
        for tb in range(4):
            ch = []
            e = ch.append
            sm, sq = 48 + 2 * tb, 49 + 2 * tb
            if c.epi == 'gelu_pre':
                e('v_add_f32 %s, %s, %s' % (vr(sm), vr(sm), vr(56 + 2 * tb)))
                e('v_add_f32 %s, %s, %s' % (vr(sq), vr(sq), vr(57 + 2 * tb)))
            NM, A0c, A1c, SI = PC + 4 * tb, PC + 4 * tb + 1, PC + 4 * tb + 2, PC + 4 * tb + 3
            e('v_mul_f32 %s, 0x%x, %s' % (vr(sm), f2u(1.0 / 1024), vr(sm)))
            e('v_mul_f32 %s, 0x%x, %s' % (vr(sq), f2u(1.0 / 1024), vr(sq)))
            e('v_fma_f32 %s, -%s, %s, %s' % (vr(sq), vr(sm), vr(sm), vr(sq)))
            e('v_max_f32 %s, 0, %s' % (vr(sq), vr(sq)))
            e('v_cvt_pk_bf16_f32 %s, %s, %s' % (vr(sm), vr(sm), vr(sq)))
            e('v_lshlrev_b32 %s, 16, %s' % (vr(NM), vr(sm)))
            e('v_and_b32 %s, %s, %s' % (vr(sq), sr(S_MASK), vr(sm)))
            e('v_xor_b32 %s, 0x80000000, %s' % (vr(NM), vr(NM)))
            e('v_add_f32 %s, 0x%x, %s' % (vr(sq), f2u(1e-5), vr(sq)))
            e('v_cvt_pk_bf16_f32 %s, %s, %s' % (vr(sq), vr(sq), vr(sq)))
            e('v_and_b32 %s, %s, %s' % (vr(sq), sr(S_MASK), vr(sq)))
            e('v_sqrt_f32 %s, %s' % (vr(sq), vr(sq)))
            e('v_cvt_pk_bf16_f32 %s, %s, %s' % (vr(sq), vr(sq), vr(sq)))
            e('v_and_b32 %s, %s, %s' % (vr(SI), sr(S_MASK), vr(sq)))
            e('v_rcp_f32 %s, %s' % (vr(sq), vr(SI)))
            e('v_mul_f32 %s, %s, %s' % (vr(A0c), sr(S_C0), vr(sq)))
            e('v_mul_f32 %s, %s, %s' % (vr(sm), vr(sq), vr(sq)))
            e('v_mul_f32 %s, %s, %s' % (vr(sm), vr(sm), vr(sq)))
            e('v_mul_f32 %s, %s, %s' % (vr(A1c), sr(S_C1), vr(sm)))
            chains.append(ch)
        for k in range(len(chains[0])):
            for ch in chains:
                a(ch[k])
    def finish_tiles(tiles):
        prs = []
        tmp = 16
        for (tb, cb) in tiles:
            for h in range(2):
                prs.append((ACC[tb][cb] + 2 * h, VC + 4 * cb + 2 * h, tb, tmp)); tmp += 2
        assert tmp <= 32
        if gelu:
            for (y, cs, tb, t) in prs:
                a('v_pk_fma_f32 %s, %s, %s, %s op_sel_hi:[1,0,1]' % (vr(y, 2), vr(cs, 2), vr(PC + 4 * tb, 2), vr(y, 2)))
            for (y, cs, tb, t) in prs:
                a('v_pk_mul_f32 %s, %s, %s' % (vr(t, 2), vr(y, 2), vr(y, 2)))
            for (y, cs, tb, t) in prs:
                a('v_pk_fma_f32 %s, %s, %s, %s op_sel:[0,0,1] op_sel_hi:[1,0,1]' % (vr(t, 2), vr(t, 2), vr(PC + 4 * tb + 2, 2), vr(PC + 4 * tb, 2)))
            for (y, cs, tb, t) in prs:
                a('v_pk_mul_f32 %s, %s, %s' % (vr(t, 2), vr(t, 2), vr(y, 2)))
            for (y, cs, tb, t) in prs:
                a('v_exp_f32 %s, %s' % (vr(t), vr(t)))
                a('v_exp_f32 %s, %s' % (vr(t + 1), vr(t + 1)))
            for (y, cs, tb, t) in prs:
                a('v_pk_fma_f32 %s, %s, %s, %s op_sel:[0,1,1] op_sel_hi:[1,1,1]' % (vr(t, 2), vr(t, 2), vr(PC + 4 * tb + 2, 2), vr(PC + 4 * tb + 2, 2)))
            for (y, cs, tb, t) in prs:
                a('v_rcp_f32 %s, %s' % (vr(t), vr(t)))
                a('v_rcp_f32 %s, %s' % (vr(t + 1), vr(t + 1)))
            for (y, cs, tb, t) in prs:
                a('v_pk_mul_f32 %s, %s, %s' % (vr(y, 2), vr(y, 2), vr(t, 2)))
        for (tb, cb) in tiles:
            A0 = ACC[tb][cb]
            a('v_cvt_pk_bf16_f32 %s, %s, %s' % (vr(A0), vr(A0), vr(A0 + 1)))
            a('v_cvt_pk_bf16_f32 %s, %s, %s' % (vr(A0 + 1), vr(A0 + 2), vr(A0 + 3)))
        for (tb, cb) in tiles:
            a('ds_write_b64 v5, %s offset:%d' % (vr(ACC[tb][cb], 2), tb * 16 * RS + cb * 32))
    if BN != 224:
        for tb in range(4):
            finish_tiles([(tb, cb) for cb in range(CB)])
        a('s_waitcnt lgkmcnt(0)')
        a('s_branch %s' % L('store'))
    else:
        for tb in range(4):
            tl = [(tb, cb) for cb in range(CB)]
            finish_tiles(tl[0:4]); finish_tiles(tl[4:7])
            a('s_waitcnt lgkmcnt(0)')
            a('s_barrier')
        a('s_endpgm')

    IDX_P = len(a.L)
    a.label(L('prod'))
    if c.pprio:
        a('s_setprio %d' % c.pprio)
    a('s_sub_u32 %s, %s, 4' % (sr(S_ROLE), sr(S_WAVE)))
    a('v_lshrrev_b32 v3, 3, v2')
    a('v_and_b32 v4, 7, v2')
    a('v_lshrrev_b32 v5, 4, v2')
    a('s_lshl_b32 %s, %s, 5' % (T0, sr(S_ROLE)))
    a('s_add_u32 %s, %s, %s' % (T0, T0, sr(S_ROW)))
    a('s_mov_b32 %s, %d' % (T1, c.Tstride))
    a('v_add_u32 v6, %s, v3' % T0)
    a('v_mul_lo_u32 v6, v6, %s' % T1)
    if c.split and not c.early:
        a('s_mul_i32 %s, %s, %d' % (T0, sr(S_KH), KLEN * 2))
        a('v_add_u32 v6, %s, v6' % T0)
    if c.early:
        a('s_mul_i32 s72, %s, %d' % (sr(S_KH), KLEN * 2))
        a('s_sub_u32 s73, %d, s72' % (KLEN * 2))
        a('s_mul_i32 s74, %s, %d' % (sr(S_KH), KLEN * c.Wstride))
        a('s_sub_u32 s75, %d, s74' % (KLEN * c.Wstride))
        a('s_lshl_b32 %s, %s, 6' % (T0, sr(S_KH)))
        a('s_lshl_b32 %s, %s, 4' % (T2, sr(S_ROLE)))
        a('s_add_u32 %s, %s, %s' % (T0, T0, T2))
        a('s_lshl_b32 s5, %s, 7' % T0)
        a('s_add_u32 %s, %s, %s' % (T0, T0, sr(S_ROW)))
        a('v_add_u32 v16, %s, v3' % T0)
        a('v_mul_lo_u32 v16, v16, %s' % T1)
        a('v_xor_b32 v7, v4, v5')
        a('v_xor_b32 v20, 4, v7')
        a('v_lshl_add_u32 v17, v20, 4, v16')
        a('v_add_u32 v17, %d, v17' % (8 * c.Tstride))
        a('v_lshl_add_u32 v16, v7, 4, v16')
    a('v_xor_b32 v7, v4, v5')
    a('v_lshl_add_u32 v8, v7, 4, v6')
    a('v_xor_b32 v7, 4, v7')
    a('v_lshl_add_u32 v9, v7, 4, v6')
    a('v_add_u32 v9, %d, v9' % (8 * c.Tstride))
    a('v_add_u32 v10, %d, v8' % (16 * c.Tstride))
    a('v_add_u32 v11, %d, v9' % (16 * c.Tstride))
    a('s_lshl_b32 %s, %s, 1' % (T2, sr(S_COL)))
    if c.split and not c.early:
        a('s_mul_i32 %s, %s, %d' % (T0, sr(S_KH), KLEN * c.Wstride))
        a('s_add_u32 %s, %s, %s' % (T2, T2, T0))
    a('s_mov_b32 %s, %d' % (T1, c.Wstride))
    if BN == 64:
        a('s_lshl_b32 %s, %s, 4' % (T0, sr(S_ROLE)))
        a('v_add_u32 v6, %s, v3' % T0)
        a('v_mul_lo_u32 v6, v6, %s' % T1)
        a('v_add_u32 v6, %s, v6' % T2)
        a('v_and_b32 v7, 1, v5')
        a('v_lshlrev_b32 v7, 1, v7')
        a('v_xor_b32 v7, v4, v7')
        a('v_lshl_add_u32 v12, v7, 4, v6')
        a('v_xor_b32 v7, 4, v7')
        a('v_lshl_add_u32 v13, v7, 4, v6')
        a('v_add_u32 v13, %d, v13' % (8 * c.Wstride))
    elif BN == 128:
        a('s_lshl_b32 %s, %s, 4' % (T0, sr(S_ROLE)))
        a('v_add_u32 v6, %s, v5' % T0)
        a('v_mul_lo_u32 v6, v6, %s' % T1)
        a('v_add_u32 v6, %s, v6' % T2)
        a('v_and_b32 v7, 15, v2')
        a('v_lshlrev_b32 v20, 1, v5')
        a('v_xor_b32 v7, v7, v20')
        a('v_lshl_add_u32 v12, v7, 4, v6')
        a('v_add_u32 v13, %d, v12' % (4 * c.Wstride))
        a('v_xor_b32 v7, 8, v7')
        a('v_lshl_add_u32 v14, v7, 4, v6')
        a('v_add_u32 v14, %d, v14' % (8 * c.Wstride))
        a('v_add_u32 v15, %d, v14' % (4 * c.Wstride))
    else:
        if c.tfirst:
            a('s_lshl_b32 %s, %s, 12' % (sr(S_PT), sr(S_ROLE)))
            a('s_mov_b32 %s, 0' % sr(S_OFT))
            for q in range(4):
                a('s_add_u32 m0, %s, 0x%x' % (sr(S_PT), q * 1024))
                a('s_nop 0')
                a('buffer_load_dwordx4 %s, %s, %s offen lds' % (vr(8 + q), sr(SRD_T, 4), sr(S_OFT)))
            a('s_mul_i32 %s, %s, %d' % (sr(S_PW), sr(S_ROLE), NWQ * 1024))
            a('s_add_u32 %s, %s, %d' % (sr(S_PW), sr(S_PW), WBASE))
            a('s_mov_b32 %s, 0' % sr(S_OFW))
        for q in range(NWQ):
            a('s_mul_i32 %s, %s, %d' % (T0, sr(S_ROLE), NWQ * 64))
            a('s_add_u32 %s, %s, %d' % (T0, T0, q * 64))
            a('v_add_u32 v6, %s, v2' % T0)
            a('v_mul_u32_u24 v7, 2341, v6')
            a('v_lshrrev_b32 v7, 16, v7')
            a('v_mul_u32_u24 v20, 28, v7')
            a('v_sub_u32 v6, v6, v20')
            a('v_bfe_u32 v20, v7, 3, 1')
            a('v_lshlrev_b32 v20, 1, v20')
            a('v_xor_b32 v6, v6, v20')
            a('v_mul_lo_u32 v7, v7, %s' % T1)
            a('v_lshl_add_u32 v6, v6, 4, v7')
            a('v_add_u32 %s, %s, v6' % (vr(12 + q), T2))
            if c.tfirst:
                a('s_add_u32 m0, %s, 0x%x' % (sr(S_PW), q * 1024))
                a('s_nop 0')
                a('buffer_load_dwordx4 %s, %s, %s offen lds' % (vr(12 + q), sr(SRD_W, 4), sr(S_OFW)))
    if c.ofs:
        for q in range(1, 4):
            a('v_subrev_u32 %s, %d, %s' % (vr(8 + q), q * 1024, vr(8 + q)))
        for q in range(NWQ):
            if q & 3:
                a('v_subrev_u32 %s, %d, %s' % (vr(12 + q), (q & 3) * 1024, vr(12 + q)))
        if c.early:
            a('v_subrev_u32 v17, 1024, v17')
    a('s_lshl_b32 %s, %s, 12' % (sr(S_PT), sr(S_ROLE)))
    a('s_mul_i32 %s, %s, %d' % (sr(S_PW), sr(S_ROLE), NWQ * 1024))
    a('s_add_u32 %s, %s, %d' % (sr(S_PW), sr(S_PW), WBASE))
    shift = [0]
    log = []
    def other(n):
        log.extend([('x',)] * n)
    if c.krot:
        (sh_c, m_c, k_c), (sh_r, m_r, k_r) = c.krot
        a('s_lshr_b32 %s, %s, %d' % (T0, I, sh_c)); a('s_and_b32 %s, %s, %d' % (T0, T0, m_c)); a('s_mul_i32 %s, %s, %d' % (T0, T0, k_c))
        a('s_lshr_b32 %s, %s, %d' % (T1, I, sh_r)); a('s_and_b32 %s, %s, %d' % (T1, T1, m_r)); a('s_mul_i32 %s, %s, %d' % (T1, T1, k_r))
        a('s_add_u32 %s, %s, %s' % (T0, T0, T1))
        a('s_and_b32 %s, %s, %d' % (T0, T0, NS - 1))
        a('s_lshl_b32 s4, %s, 7' % T0)
        a('s_mul_i32 s5, %s, %d' % (T0, 64 * c.Wstride))
    def issue(st):
        slot = st % S
        if c.krot:
            a('s_mov_b32 %s, s4' % sr(S_OFT))
            a('s_mov_b32 %s, s5' % sr(S_OFW))
            a('s_add_u32 s4, s4, 128')
            a('s_add_u32 s5, s5, %d' % (64 * c.Wstride))
            a('s_cmp_eq_u32 s4, %d' % (c.K * 2))
            a('s_cselect_b32 s4, 0, s4')
            a('s_cselect_b32 s5, 0, s5')
            regs = [8, 9, 10, 11]
            if c.shift:
                a('s_lshr_b32 %s, %s, 10' % (T0, sr(S_OFT)))
                a('s_add_u32 %s, %s, 1' % (T0, T0))
                a('s_mul_i32 %s, %s, %d' % (T0, T0, c.Tstride))
                a('s_sub_u32 %s, 0, %s' % (T1, T0))
                a('s_bitcmp1_b32 %s, 9' % sr(S_OFT))
                a('s_cselect_b32 %s, %s, %s' % (T0, T0, T1))
                for q in range(4):
                    a('v_add_u32 %s, %s, %s' % (vr(20 + q), T0, vr(8 + q)))
                regs = [20, 21, 22, 23]
            for q in range(4):
                a('s_add_u32 m0, %s, 0x%x' % (sr(S_PT), slot * STAGE + q * 1024))
                a('s_nop 0')
                a('buffer_load_dwordx4 %s, %s, %s offen lds' % (vr(regs[q]), sr(SRD_T, 4), sr(S_OFT)))
            for q in range(NWQ):
                a('s_add_u32 m0, %s, 0x%x' % (sr(S_PW), slot * STAGE + q * 1024))
                a('s_nop 0')
                a('buffer_load_dwordx4 %s, %s, %s offen lds' % (vr(12 + q), sr(SRD_W, 4), sr(S_OFW)))
            log.extend([('st', st)] * NDMA)
            if st == NS - 1 and not c.xlate:
                after_last_issue()
            return
        if c.shift:
            d = [-1, 1, -2, 2][st // 4]
            if d != shift[0]:
                for q in range(4):
                    a('v_add_u32 %s, 0x%x, %s' % (vr(8 + q), ((d - shift[0]) * c.Tstride) & 0xffffffff, vr(8 + q)))
                shift[0] = d
        full = True
        if c.early:
            full = st < NF
            if st < NHALF:
                a('s_add_u32 %s, s72, 0x%x' % (sr(S_OFT), st * 128))
                a('s_add_u32 %s, s74, 0x%x' % (sr(S_OFW), st * 64 * c.Wstride))
            else:
                s2_ = NF + (st - NHALF)
                a('s_add_u32 %s, s73, 0x%x' % (sr(S_OFT), s2_ * 128))
                a('s_add_u32 %s, s75, 0x%x' % (sr(S_OFW), s2_ * 64 * c.Wstride))
        else:
            a('s_mov_b32 %s, 0x%x' % (sr(S_OFT), st * 128))
            a('s_mov_b32 %s, 0x%x' % (sr(S_OFW), st * 64 * c.Wstride))
        def group(base_s, base_imm, regs, srd, soff):
            for g0 in range(0, len(regs), 4):
                a('s_add_u32 m0, %s, 0x%x' % (base_s, base_imm + g0 * 1024))
                a('s_nop 0')
                for q, r_ in enumerate(regs[g0:g0 + 4]):
                    a('buffer_load_dwordx4 %s, %s, %s offen%s lds' % (vr(r_), sr(srd, 4), soff, (' offset:%d' % (q * 1024)) if q else ''))
        if c.ofs:
            if full:
                group(sr(S_PT), slot * STAGE, [8, 9, 10, 11], SRD_T, sr(S_OFT))
            else:
                group('s5', slot * STAGE, [16, 17], SRD_T, sr(S_OFT))
            group(sr(S_PW), slot * STAGE, [12 + q for q in range(NWQ)], SRD_W, sr(S_OFW))
        else:
            if full and not (c.tfirst and st == 0):
                for q in range(4):
                    a('s_add_u32 m0, %s, 0x%x' % (sr(S_PT), slot * STAGE + q * 1024))
                    a('s_nop 0')
                    a('buffer_load_dwordx4 %s, %s, %s offen lds' % (vr(8 + q), sr(SRD_T, 4), sr(S_OFT)))
            elif not full:
                for q in range(2):
                    a('s_add_u32 m0, s5, 0x%x' % (slot * STAGE + q * 1024))
                    a('s_nop 0')
                    a('buffer_load_dwordx4 %s, %s, %s offen lds' % (vr(16 + q), sr(SRD_T, 4), sr(S_OFT)))
            for q in range(NWQ if not (c.tfirst and st == 0) else 0):
                a('s_add_u32 m0, %s, 0x%x' % (sr(S_PW), slot * STAGE + q * 1024))
                a('s_nop 0')
                a('buffer_load_dwordx4 %s, %s, %s offen lds' % (vr(12 + q), sr(SRD_W, 4), sr(S_OFW)))
        log.extend([('st', st)] * ((4 if full else 2) + NWQ))
        if st == NS - 1 and not c.xlate:
            after_last_issue()
    def pre_stats_loads():
        a('v_subrev_u32 v28, 256, v0')
        a('v_and_b32 v5, 127, v28')
        a('v_lshrrev_b32 v6, 7, v28')
        a('v_add_u32 v7, %s, v5' % sr(S_ROW))
        a('v_lshlrev_b32 v7, 3, v7')
        a('v_lshl_add_u32 v7, v6, 17, v7')
        for m in range(8):
            a('s_mov_b32 %s, 0x%x' % (T0, m * S_ * 8))
            a('buffer_load_dwordx2 %s, v7, %s, %s offen' % (vr(32 + 2 * m, 2), sr(SRD_X, 4), T0))
        a('v_add_u32 v22, %s, v28' % sr(S_COL))
        a('v_lshlrev_b32 v22, 2, v22')
        a('v_cmp_gt_u32 vcc, 224, v28')
        a('v_mov_b32 v23, 0x%x' % OOB)
        a('s_nop 0')
        a('v_cndmask_b32 v22, v23, v22, vcc')
        for m in range(16):
            a('s_mov_b32 %s, 0x%x' % (T0, m * F_ * 4))
            a('buffer_load_dword %s, v22, %s, %s offen' % (vr(48 + m), sr(SRD_Y, 4), T0))
        other(24)
    def pre_stats_finish():
        SP_OFF = RING
        CS_OFF = SP_OFF + 2048
        for m in range(1, 8):
            a('v_add_f32 v32, v32, %s' % vr(32 + 2 * m))
            a('v_add_f32 v33, v33, %s' % vr(33 + 2 * m))
        a('v_and_b32 v5, 127, v28')
        a('v_lshrrev_b32 v6, 7, v28')
        a('v_lshlrev_b32 v5, 3, v5')
        a('v_lshl_add_u32 v5, v6, 10, v5')
        a('v_add_u32 v5, 0x%x, v5' % SP_OFF)
        a('ds_write_b64 v5, v[32:33]')
        for m in range(1, 16):
            a('v_add_f32 v48, v48, %s' % vr(48 + m))
        a('v_lshlrev_b32 v5, 2, v28')
        a('v_add_u32 v5, 0x%x, v5' % CS_OFF)
        a('ds_write_b32 v5, v48')
        a('s_waitcnt lgkmcnt(0)')
    def after_last_issue():
        if BN != 224:
            other(resid_loads())
        if c.epi == 'resid_stats':
            mk_srd(a, SRD_P, 'w3', D_ * F_ * 2)
            a('s_and_b32 %s, s2, 15' % T0)
            a('s_lshl_b32 %s, %s, 6' % (T0, T0))
            a('s_lshl_b32 %s, %s, 4' % (T1, sr(S_ROLE)))
            a('s_add_u32 %s, %s, %s' % (T0, T0, T1))
            a('v_lshrrev_b32 v3, 5, v2')
            a('v_add_u32 v3, %s, v3' % T0)
            a('v_mul_u32_u24 v3, 7168, v3')
            a('v_and_b32 v4, 31, v2')
            a('v_lshl_add_u32 v3, v4, 4, v3')
            a('s_lshr_b32 %s, s2, 4' % T1)
            a('s_mul_i32 %s, %s, 448' % (T1, T1))
            a('v_add_u32 v3, %s, v3' % T1)
            a('v_cmp_gt_u32 vcc, 28, v4')
            a('v_mov_b32 v5, 0x%x' % OOB)
            a('s_nop 0')
            a('v_cndmask_b32 v3, v5, v3, vcc')
            for m in range(8):
                a('s_mov_b32 %s, 0x%x' % (T0, m * 2 * 7168))
                a('buffer_load_dwordx4 %s, v3, %s, %s offen' % (vr(64 + 4 * m, 4), sr(SRD_P, 4), T0))
            other(8)
    if c.prof:
        a('s_memrealtime s[98:99]')
    if c.rings:
        def issueT(st):
            a('s_mov_b32 %s, 0x%x' % (sr(S_OFT), st * 128))
            for q in range(4):
                a('s_add_u32 m0, %s, 0x%x' % (sr(S_PT), (st % RT) * 16384 + q * 1024))
                a('s_nop 0')
                a('buffer_load_dwordx4 %s, %s, %s offen lds' % (vr(8 + q), sr(SRD_T, 4), sr(S_OFT)))
            log.extend([('st', st)] * 4)
        def issueW(st):
            a('s_mov_b32 %s, 0x%x' % (sr(S_OFW), st * 64 * c.Wstride))
            for q in range(NWQ):
                a('s_add_u32 m0, %s, 0x%x' % (sr(S_PW), (st % RW) * WT + q * 1024))
                a('s_nop 0')
                a('buffer_load_dwordx4 %s, %s, %s offen lds' % (vr(12 + q), sr(SRD_W, 4), sr(S_OFW)))
            log.extend([('st', st)] * NWQ)
        nT = nW = 0
        issueT(0); issueW(0); nT = nW = 1
        if RT > 1: issueT(1); nT = 2
        common_srds()
        if c.prof:
            a('s_memrealtime s[100:101]')
        pre_idx = None
        for t in range(NS):
            lastpos = max(i for i, e in enumerate(log) if e == ('st', t))
            n_after = len(log) - 1 - lastpos
            assert n_after <= 63, n_after
            a('s_waitcnt vmcnt(%d)' % n_after)
            a('s_barrier')
            if c.prof and c.trace and t < 64:
                a('s_memrealtime s[6:7]')
                a('s_waitcnt lgkmcnt(0)')
                a('v_writelane_b32 v254, s6, %d' % t)
            if c.prof and t == 0:
                a('s_memrealtime s[78:79]')
                a('s_memtime s[92:93]')
            if c.prof and t == NS // 2:
                a('s_memrealtime s[88:89]')
            while nT < NS and nT <= max(RT - 1, t - 1 + RT):
                issueT(nT); nT += 1
            k = 0
            while nW < NS and nW <= max(RW - 1, t - 1 + RW) and k < c.rate:
                issueW(nW); nW += 1; k += 1
            if c.epi == 'gelu_pre' and t == 0:
                pre_stats_loads(); pre_idx = len(log) - 1
                if c.zflags:
                    mk_srd(a, SRD_P, ('ws', WS_FLAG), 512 * 128)
                    a('s_lshl_b32 %s, s2, 8' % T0)
                    a('v_lshlrev_b32 v6, 7, v2')
                    a('v_add_u32 v6, %s, v6' % T0)
                    a('v_cmp_gt_u32 vcc, 2, v2')
                    a('v_mov_b32 v7, 0x%x' % OOB)
                    a('v_mov_b32 v20, 0')
                    a('v_cndmask_b32 v6, v7, v6, vcc')
                    a('buffer_store_dword v20, v6, %s, 0 offen sc1' % sr(SRD_P, 4))
                    other(1)
            if c.epi == 'gelu_pre' and t > 1 and pre_idx is not None and pre_idx >= 0 and lastpos > pre_idx:
                pre_stats_finish(); pre_idx = -1
        assert nT == NS and nW == NS
        assert pre_idx in (None, -1)
    else:
        nxt_issue = 0
        for _ in range(min(c.first, S)):
            issue(nxt_issue); nxt_issue += 1
        common_srds()
        if c.prof:
            a('s_memrealtime s[100:101]')
        pre_idx = None
        for t in range(NS):
            lastpos = max(i for i, e in enumerate(log) if e == ('st', t))
            n_after = len(log) - 1 - lastpos
            assert n_after <= 63, n_after
            if c.wprof:
                a('s_memtime s[6:7]')
                a('s_waitcnt lgkmcnt(0)')
                a('s_mov_b32 s3, s6')
            a('s_waitcnt vmcnt(%d)' % n_after)
            if c.wprof:
                a('s_memtime s[6:7]')
                a('s_waitcnt lgkmcnt(0)')
                a('s_sub_u32 s3, s6, s3')
                a('v_writelane_b32 v251, s3, %d' % t)
                a('s_mov_b32 s3, s6')
            a('s_barrier')
            if c.wprof:
                a('s_memtime s[6:7]')
                a('s_waitcnt lgkmcnt(0)')
                a('s_sub_u32 s3, s6, s3')
                a('v_writelane_b32 v255, s3, %d' % t)
            if c.prof and c.trace and t < 64:
                a('s_memrealtime s[6:7]')
                a('s_waitcnt lgkmcnt(0)')
                a('v_writelane_b32 v254, s6, %d' % t)
            if c.prof and t == 0:
                a('s_memrealtime s[78:79]')
                a('s_memtime s[92:93]')
            if c.prof and t == NS // 2:
                a('s_memrealtime s[88:89]')
            k = 0
            while nxt_issue < NS and nxt_issue <= max(S - 1, t - 1 + S) and k < c.rate:
                issue(nxt_issue); nxt_issue += 1; k += 1
            if c.xlate and t == NS - c.xlate:
                assert nxt_issue == NS
                after_last_issue()
            if c.epi == 'gelu_pre' and t == 0:
                pre_stats_loads(); pre_idx = len(log) - 1
                if c.zflags:
                    mk_srd(a, SRD_P, ('ws', WS_FLAG), 512 * 128)
                    a('s_lshl_b32 %s, s2, 8' % T0)
                    a('v_lshlrev_b32 v6, 7, v2')
                    a('v_add_u32 v6, %s, v6' % T0)
                    a('v_cmp_gt_u32 vcc, 2, v2')
                    a('v_mov_b32 v7, 0x%x' % OOB)
                    a('v_mov_b32 v20, 0')
                    a('v_cndmask_b32 v6, v7, v6, vcc')
                    a('buffer_store_dword v20, v6, %s, 0 offen sc1' % sr(SRD_P, 4))
                    other(1)
            if c.epi == 'gelu_pre' and t > 1 and pre_idx is not None and pre_idx >= 0 and lastpos > pre_idx:
                pre_stats_finish(); pre_idx = -1
        assert nxt_issue == NS
    a('s_barrier')
    if c.prof:
        a('s_memrealtime s[80:81]')
        a('s_memtime s[94:95]')
    for item in c.epf:
        pf(item, wreg=S_ROLE)
    if c.epi == 'gelu_inloop':
        a('s_barrier')
    if c.early:
        a('s_barrier')
    elif c.split:
        a('s_barrier')
        a('s_cmp_lg_u32 %s, 4' % sr(S_WAVE))
        a('s_cbranch_scc1 %s' % L('store'))
        a('s_lshr_b32 %s, s2, 2' % T1)
        a('s_lshl_b32 %s, %s, 2' % (T1, T1))
        a('s_and_b32 %s, s2, 3' % T2)
        a('s_lshl_b32 %s, %s, 3' % (T2, T2))
        a('s_lshl_b32 %s, 1, %s' % (T2, T2))
        a('v_mov_b32 v7, %s' % T1)
        a('v_mov_b32 v20, %s' % T2)
        a('v_cmp_eq_u32 vcc, 0, v2')
        a('v_mov_b32 v21, 0x%x' % OOB)
        a('s_nop 0')
        a('v_cndmask_b32 v7, v21, v7, vcc')
        a('buffer_atomic_or v20, v7, %s, 0 offen sc1' % sr(SRD_Y, 4))
    if c.epi == 'resid_stats':
        a('s_waitcnt vmcnt(0)')
        for r in range(8):
            a('v_mov_b32 %s, 0' % vr(24 + r))
        for m in range(8):
            for d in range(4):
                a('v_lshlrev_b32 v20, 16, %s' % vr(64 + 4 * m + d))
                a('v_and_b32 v21, %s, %s' % (sr(S_MASK), vr(64 + 4 * m + d)))
                a('v_add_f32 %s, %s, v20' % (vr(24 + 2 * d), vr(24 + 2 * d)))
                a('v_add_f32 %s, %s, v21' % (vr(25 + 2 * d), vr(25 + 2 * d)))
        a('v_lshrrev_b32 v3, 5, v2')
        a('s_lshl_b32 %s, %s, 1' % (T0, sr(S_ROLE)))
        a('v_add_u32 v3, %s, v3' % T0)
        a('v_mul_u32_u24 v3, 1024, v3')
        a('v_and_b32 v4, 31, v2')
        a('v_lshl_add_u32 v3, v4, 5, v3')
        a('ds_write_b128 v3, v[24:27] offset:32768')
        a('ds_write_b128 v3, v[28:31] offset:32784')
        a('s_waitcnt lgkmcnt(0)')
    if BN == 224:
        for q in range(4):
            a('s_mul_i32 %s, %s, 224' % (T0, sr(S_ROLE)))
            a('s_add_u32 %s, %s, %d' % (T0, T0, q * 64))
            a('v_add_u32 v6, %s, v2' % T0)
            a('v_mul_u32_u24 v7, 2341, v6')
            a('v_lshrrev_b32 v7, 16, v7')
            a('v_mul_u32_u24 v20, 28, v7')
            a('v_sub_u32 v6, v6, v20')
            a('v_and_b32 v20, 15, v7')
            a('v_lshrrev_b32 v7, 4, v7')
            a('v_lshl_add_u32 v7, v7, 6, v20')
            a('v_mul_u32_u24 v20, %d, v7' % RS)
            a('v_lshl_add_u32 %s, v6, 4, v20' % vr(24 + q))
            a('v_add_u32 v7, %s, v7' % sr(S_ROW))
            a('s_mov_b32 %s, %d' % (T1, c.Ostride))
            a('v_mul_lo_u32 v7, v7, %s' % T1)
            a('v_lshl_add_u32 v7, v6, 4, v7')
            a('s_lshl_b32 %s, %s, 1' % (T1, sr(S_COL)))
            a('v_add_u32 %s, %s, v7' % (vr(28 + q), T1))
            if q == 3:
                a('v_cmp_gt_u32 vcc, 32, v2')
                a('v_mov_b32 v20, 0x%x' % OOB)
                a('v_mov_b32 v21, 0')
                a('v_cndmask_b32 v31, v20, v31, vcc')
                a('v_cndmask_b32 v27, v21, v27, vcc')
        for tb in range(4):
            a('s_barrier')
            for q in range(4):
                a('ds_read_b128 %s, %s offset:%d' % (vr(32 + 16 * (tb & 1) + 4 * q, 4), vr(24 + q), tb * 16 * RS))
            a('s_mov_b32 %s, %d' % (T0, tb * 16 * c.Ostride))
            for q in range(4):
                a('s_waitcnt lgkmcnt(%d)' % (3 - q))
                a('buffer_store_dwordx4 %s, %s, %s, %s offen%s' % (vr(32 + 16 * (tb & 1) + 4 * q, 4), vr(28 + q), sr(SRD_O, 4), T0, ST))
        a('s_branch %s' % L('fin'))

    a.label(L('store'))
    if BN != 224:
        a('s_barrier')
        a('v_and_b32 v2, 63, v0')
        for q in range(2):
            rb_idx(q, 3, 4, 5)
            a('v_mul_u32_u24 v6, %d, v3' % RS)
            a('v_lshl_add_u32 v6, v4, 4, v6')
            a('ds_read_b128 %s, v6' % vr(32 + 4 * q, 4))
        if c.R is None:
            for q in range(2):
                a('s_waitcnt lgkmcnt(%d)' % (1 - q))
                a('buffer_store_dwordx4 %s, %s, %s, 0 offen%s' % (vr(32 + 4 * q, 4), vr(V_RBG + q), sr(SRD_O, 4), ST))
        else:
            a('s_waitcnt vmcnt(0) lgkmcnt(0)')
            for q in range(2):
                for d in range(4):
                    h = 32 + 4 * q + d; x = V_RES + 4 * q + d
                    a('v_lshlrev_b32 v8, 16, %s' % vr(h))
                    a('v_lshlrev_b32 v9, 16, %s' % vr(x))
                    a('v_and_b32 v10, %s, %s' % (sr(S_MASK), vr(h)))
                    a('v_and_b32 v11, %s, %s' % (sr(S_MASK), vr(x)))
                    a('v_add_f32 v8, v8, v9')
                    a('v_add_f32 v10, v10, v11')
                    a('v_cvt_pk_bf16_f32 %s, v8, v10' % vr(h))
                a('buffer_store_dwordx4 %s, %s, %s, 0 offen%s' % (vr(32 + 4 * q, 4), vr(V_RBG + q), sr(SRD_O, 4), ST))
            if c.epi == 'resid_stats':
                a('v_mov_b32 v21, 0x3f803f80')
                for q in range(2):
                    sv = 12 + 2 * q
                    a('v_mov_b32 %s, 0' % vr(sv))
                    a('v_mov_b32 %s, 0' % vr(sv + 1))
                    for d in range(4):
                        h = 32 + 4 * q + d
                        a('v_dot2c_f32_bf16 %s, %s, v21' % (vr(sv), vr(h)))
                        a('v_dot2c_f32_bf16 %s, %s, %s' % (vr(sv + 1), vr(h), vr(h)))
                a('s_nop 3')
                for dpp in ('quad_perm:[1,0,3,2]', 'quad_perm:[2,3,0,1]', 'row_half_mirror'):
                    for r in range(12, 16):
                        a('v_add_f32_dpp %s, %s, %s %s row_mask:0xf bank_mask:0xf' % (vr(r), vr(r), vr(r), dpp))
                    a('s_nop 0')
                for q in range(2):
                    rb_idx(q, 3, 4, 5)
                    a('v_add_u32 v3, %s, v3' % sr(S_ROW))
                    a('v_lshlrev_b32 v3, 3, v3')
                    a('s_lshl_b32 %s, %s, 14' % (T1, sr(S_CBK)))
                    a('v_add_u32 v3, %s, v3' % T1)
                    a('v_cmp_eq_u32 vcc, 0, v4')
                    a('v_mov_b32 v5, 0x%x' % OOB)
                    a('s_nop 0')
                    a('v_cndmask_b32 v3, v5, v3, vcc')
                    a('buffer_store_dwordx2 %s, v3, %s, 0 offen%s' % (vr(12 + 2 * q, 2), sr(SRD_X, 4), ST))
                a('s_cmp_lt_u32 %s, 4' % sr(S_WAVE))
                a('s_cbranch_scc1 %s' % L('fin'))
                a('v_subrev_u32 v3, 256, v0')
                a('v_lshlrev_b32 v4, 2, v3')
                for m in range(8):
                    a('ds_read_b32 %s, v4 offset:%d' % (vr(40 + m), 32768 + m * 1024))
                a('s_waitcnt lgkmcnt(0)')
                for m in range(1, 8):
                    a('v_add_f32 v40, v40, %s' % vr(40 + m))
                a('s_and_b32 %s, s2, 15' % T0)
                a('s_mul_i32 %s, %s, %d' % (T0, T0, F_ * 4))
                a('s_lshr_b32 %s, s2, 4' % T1)
                a('s_mul_i32 %s, %s, %d' % (T1, T1, 224 * 4))
                a('s_add_u32 %s, %s, %s' % (T0, T0, T1))
                a('v_add_u32 v4, %s, v4' % T0)
                a('v_cmp_gt_u32 vcc, 224, v3')
                a('v_mov_b32 v5, 0x%x' % OOB)
                a('s_nop 0')
                a('v_cndmask_b32 v4, v5, v4, vcc')
                a('buffer_store_dword v40, v4, %s, 0 offen%s' % (sr(SRD_Y, 4), ST))
    a.label(L('fin'))
    if c.prof:
        a('s_cmp_lg_u32 %s, 4' % sr(S_WAVE))
        a('s_cbranch_scc1 %s' % L('done'))
        a('s_waitcnt vmcnt(0)')
        a('s_memrealtime s[82:83]')
        a('s_memtime s[86:87]')
        a('s_getreg_b32 s90, hwreg(HW_REG_XCC_ID)')
        a('s_waitcnt lgkmcnt(0)')
        mk_srd(a, SRD_X, ('ws', WS_PROF + c.idx * 65536), 65536)
        for r in range(26):
            a('v_mov_b32 %s, s%d' % (vr(32 + r), 76 + r))
        a('s_lshl_b32 s3, s2, 8')
        a('v_mov_b32 v3, s3')
        a('v_cmp_eq_u32 vcc, 0, v2')
        a('v_mov_b32 v5, 0x%x' % OOB)
        a('s_nop 0')
        a('v_cndmask_b32 v3, v5, v3, vcc')
        if c.wprof:
            mk_srd(a, SRD_Y, ('ws', WS_PROF + (12 + c.idx) * 65536), 65536)
            a('v_and_b32 v4, 31, v2')
            a('v_lshlrev_b32 v4, 2, v4')
            a('v_add_u32 v4, s3, v4')
            a('v_cmp_gt_u32 vcc, 32, v2')
            a('v_add_u32 v6, 128, v4')
            a('v_cndmask_b32 v6, v5, v4, vcc')
            a('buffer_store_dword v251, v6, %s, 0 offen' % sr(SRD_Y, 4))
            a('v_add_u32 v6, 128, v6')
            a('buffer_store_dword v255, v6, %s, 0 offen' % sr(SRD_Y, 4))
        if c.trace:
            mk_srd(a, SRD_Y, ('ws', WS_PROF + (8 + c.idx) * 65536), 65536)
            a('v_lshlrev_b32 v4, 2, v2')
            a('v_add_u32 v4, s3, v4')
            a('buffer_store_dword v254, v4, %s, 0 offen' % sr(SRD_Y, 4))
        for r in range(7):
            a('buffer_store_dwordx4 %s, v3, %s, 0 offen offset:%d' % (vr(32 + 4 * r, 4), sr(SRD_X, 4), 16 * r))
        if c.dbgout:
            a('s_cmp_lg_u32 s2, 0')
            a('s_cbranch_scc1 %s' % L('done'))
            a('s_waitcnt vmcnt(0)')
            mk_srd(a, SRD_X, ('ws', WS_PROF), 4 * 65536)
            mk_srd(a, SRD_Y, 'dbg', 256)
            a('v_lshrrev_b32 v3, 2, v2')
            a('v_lshlrev_b32 v3, 16, v3')
            a('v_and_b32 v4, 3, v2')
            a('v_lshl_add_u32 v3, v4, 3, v3')
            a('v_cmp_gt_u32 vcc, 16, v2')
            a('v_mov_b32 v5, 0x%x' % OOB)
            a('s_nop 0')
            a('v_cndmask_b32 v3, v5, v3, vcc')
            a('buffer_load_dword v6, v3, %s, 0 offen sc1' % sr(SRD_X, 4))
            a('v_lshlrev_b32 v4, 2, v2')
            a('v_cndmask_b32 v4, v5, v4, vcc')
            a('s_waitcnt vmcnt(0)')
            a('v_readfirstlane_b32 %s, v6' % T0)
            a('s_nop 3')
            a('v_subrev_u32 v6, %s, v6' % T0)
            a('buffer_store_dword v6, v4, %s, 0 offen' % sr(SRD_Y, 4))
    a.label(L('done'))
    a('s_endpgm')
    if c.pfirst:
        cons = a.L[IDX_C:IDX_P]; prod = a.L[IDX_P:]
        a.L[IDX_C:] = prod + cons
    a.label(name + '_end')
    return RING + (4096 if c.epi == 'gelu_pre' else 0) + (32768 if c.early else 0)

def descriptor(name):
    return '''.amdhsa_kernel %s
  .amdhsa_next_free_vgpr 256
  .amdhsa_next_free_sgpr 102
  .amdhsa_accum_offset 256
  .amdhsa_group_segment_fixed_size 0
  .amdhsa_kernarg_size 64
  .amdhsa_user_sgpr_count 2
  .amdhsa_user_sgpr_kernarg_segment_ptr 1
  .amdhsa_system_sgpr_workgroup_id_x 1
.end_amdhsa_kernel
''' % name

def mk(name, **kw):
    c = Cfg()
    c.name = name
    c.prof = False; c.trace = False; c.shift = False; c.R = None; c.stflag = ' sc1'
    c.rot = 0; c.tfirst = False; c.pfirst = False; c.rings = None; c.xlate = 0; c.krot = None; c.pprio = 0; c.ofs = False; c.wprof = False; c.epf = []; c.k3pf = []; c.dbgout = False; c.early = 0; c.ackb = 5; c.chk = []; c.zflags = False; c.pf_at = []; c.grp0 = []; c.code0 = []; c.stats = 'mfma'; c.first = 2; c.rate = 2; c.split = False
    for k, v in kw.items():
        setattr(c, k, v)
    return c

def configs(opts, split4):
    base = 'standalone__mixer_s_mlp__prompt'
    k4 = dict(BN=128, S=4, map='split', split=True) if split4 else dict(BN=64, S=6, map='4x8')
    return [
        mk('k1_kernel', BN=64, K=1024, S=6, T='x', Tbytes=NB, Tstride=2048, W='w1', Wbytes=D_ * D_ * 2, Wstride=2048,
           O=('ws', WS_H), Obytes=S_ * HS, Ostride=HS, epi='gelu_inloop', map='4x8', **opts),
        mk('k2_kernel', BN=64, K=1024, S=6, T=('ws', WS_H), Tbytes=S_ * HS, Tstride=HS, W='w2', Wbytes=D_ * D_ * 2, Wstride=2048,
           O=('ws', WS_X1), Obytes=S_ * HS, Ostride=HS, epi='resid_stats', map='4x8', R='x', Rstride=2048, shift=True, **opts),
        mk('k3_kernel', BN=224, K=1024, S=3, T=('ws', WS_X1), Tbytes=S_ * HS, Tstride=HS, W='w3', Wbytes=D_ * F_ * 2, Wstride=7168,
           O=('ws', WS_G), Obytes=S_ * GS, Ostride=GS, epi='gelu_pre', map='8x4', **opts),
        mk(base + '_kernel', K=3584, T=('ws', WS_G), Tbytes=S_ * GS, Tstride=GS, W='w4', Wbytes=F_ * D_ * 2, Wstride=2048,
           O='out', Obytes=NB, Ostride=2048, epi='resid', R=('ws', WS_X1), Rstride=HS, **k4, **opts),
    ]

own_cols = lambda buf: (buf, D_ * D_ * 2, 2048, 3, 7, (0, 0, 0), 32, 32, (0, 1, 1024))
EPF = {
    'w3l2': ('w3', D_ * F_ * 2, 7168, 4, 13, (0, 0, 0), 32, 32, (0, 3, 1792)),
    'w4l2': ('w4', F_ * D_ * 2, 2048, 3, 7, (0, 1, 1792), 56, 64, (2, 1, 1024)),
    'w4m': ('w4', F_ * D_ * 2, 2048, 4, 15, (0, 7, 448), 14, 16, (0, 0, 0)),
    'w3m': ('w3', D_ * F_ * 2, 7168, 6, 55, (0, 7, 128), 4, 4, (0, 0, 0)),
    'w4l2a': ('w4', F_ * D_ * 2, 2048, 3, 7, (0, 1, 1792), 32, 32, (2, 1, 1024)),
}
ITEMS = {
    'w2': own_cols('w2'),
    'w3': ('w3', D_ * F_ * 2, 7168, 6, 55, (0, 7, 128), 4, 4, (0, 0, 0)),
    'w4': ('w4', F_ * D_ * 2, 2048, 4, 15, (0, 7, 448), 14, 16, (0, 0, 0)),
}

def main():
    out = sys.argv[1]
    opts = {}
    for o in sys.argv[2:]:
        k, v = o.split('=', 1)
        opts[k] = eval(v)
    only = opts.pop('only', None)
    split4 = opts.pop('split4', True)
    pfat = opts.pop('pfat', {0: [(10, ['w2']), (13, ['w3'])], 2: [(2, ['w4:0']), (5, ['w4:1']), (8, ['w4:2']), (11, ['w4:3'])]})
    per = opts.pop('per', {})
    codepf = opts.pop('codepf', True)
    cfgs = configs(opts, split4)
    for ki, lst in pfat.items():
        def conv(n):
            if n[0] == 'g': return ('grp', int(n[1:]))
            if n[0] == 'k': return ('k3g', int(n[1:]))
            if n[0] == 'B': return ('bad2', 'w4', F_ * D_ * 2, int(n[1]))
            if n[0] == 'b': return ('bad', 'w4', F_ * D_ * 2, int(n[1]) * 2048, int(n[2]))
            if n[0] == 'c': return ('code', cfgs[int(n[1])].name, 2)
            return ('onlywave', int(n[3]), ITEMS[n[:2]]) if len(n) > 2 else ITEMS[n]
        cfgs[ki].pf_at = [(it, [conv(n) for n in names]) for it, names in lst]
    if cfgs[3].__dict__.get('early') or any(d.get('early') for k, d in per.items() if k == 3):
        cfgs[2].zflags = True
    if codepf:
        cfgs[0].code0 = [(cfgs[0].name, 2, False)]
    for ki, d in per.items():
        for k, v in d.items():
            if k == 'epf': v = [EPF[n] for n in v]
            setattr(cfgs[ki], k, v)
    if only is not None:
        cfgs = [cfgs[i] for i in only]
    a = Asm()
    ldss = []
    for i, c in enumerate(cfgs):
        c.idx = i
        ldss.append(gen_kernel(a, c))
    hdr = open('standalone__mixer_s_mlp__prompt.s.ref').read().split('; Override')[0]
    s = hdr
    for c, lds in zip(cfgs, ldss):
        s += '; @launch kernel=%s grid=(256,1,1) block=(512,1,1) lds=%d\n' % (c.name, lds)
    s += '.amdgcn_target "amdgcn-amd-amdhsa--gfx950"\n.text\n'
    s += a.text()
    s += '.section .rodata,"a"\n.p2align 6\n'
    for c in cfgs:
        s += descriptor(c.name) + '.p2align 6\n'
    open(out, 'w').write(s)

if __name__ == '__main__':
    main()
```

```python
import sys, struct

S_, D_, F_ = 2048, 1024, 3584
NB = S_ * D_ * 2
HS, GS = 2176, 7296
WS_H, WS_X1, WS_G = 0, 5 << 20, 10 << 20
WS_PART2 = 26 << 20
WS_CS3 = (26 << 20) + (256 << 10)
WS_PROF = 28 << 20
WS_FLAG = 27 << 20
WS_XCH = 32 << 20
C0 = -2.0 * 0.7978845608028654 * 1.4426950408889634
C1 = C0 * 0.044715
OOB = 0x7ffffff0

def f2u(f):
    return struct.unpack('<I', struct.pack('<f', f))[0]

class Asm:
    def __init__(self):
        self.L = []
    def __call__(self, s):
        self.L.append('    ' + s)
    def label(self, s):
        self.L.append(s + ':')
    def text(self):
        return '\n'.join(self.L) + '\n'

def vr(b, n=1):
    return 'v%d' % b if n == 1 else 'v[%d:%d]' % (b, b + n - 1)
def sr(b, n=1):
    return 's%d' % b if n == 1 else 's[%d:%d]' % (b, b + n - 1)

SRD_T, SRD_W, SRD_R, SRD_O, SRD_X, SRD_Y, SRD_P = 8, 12, 16, 20, 24, 28, 72
S_WAVE, S_ROW, S_COL, S_ROLE, S_I, S_J = 32, 33, 34, 35, 36, 37
S_OFT, S_OFW, S_CNT, S_SLOT, S_PT, S_PW = 38, 39, 40, 41, 42, 43
S_T0, S_T1, S_T2, S_T3 = 44, 45, 46, 47
S_RB, S_CBK = 48, 49
S_C0, S_C1, S_MASK = 50, 51, 52
S_XCD, S_IDX, S_KH = 53, 54, 55
P = {'x': 56, 'w1': 58, 'w2': 60, 'w3': 62, 'w4': 64, 'out': 66, 'dbg': 68, 'ws': 70}

class Cfg:
    pass

def ptr(nm):
    if isinstance(nm, tuple):
        return P['ws'], P['ws'] + 1, nm[1]
    return P[nm], P[nm] + 1, 0

def mk_srd(a, dst, src, nbytes):
    lo, hi, add = ptr(src)
    if add:
        a('s_add_u32 %s, %s, 0x%x' % (sr(dst), sr(lo), add))
        a('s_addc_u32 %s, %s, 0' % (sr(dst + 1), sr(hi)))
    else:
        a('s_mov_b32 %s, %s' % (sr(dst), sr(lo)))
        a('s_mov_b32 %s, %s' % (sr(dst + 1), sr(hi)))
    a('s_mov_b32 %s, 0x%x' % (sr(dst + 2), nbytes))
    a('s_mov_b32 %s, 0x20000' % sr(dst + 3))

def gen_kernel(a, c):
    name = c.name
    BN, CB, S = c.BN, c.BN // 32, c.S
    KLEN = c.K // 2 if c.split else c.K
    NS = KLEN // 64
    if c.early:
        NHALF = NS; NF = c.early; NS = 2 * NHALF - NF
    WROW = BN * 2
    STAGE = 16384 + 64 * WROW
    WT = 64 * WROW
    if c.rings:
        RT, RW = c.rings
        WBASE = RT * 16384
        RING = WBASE + RW * WT
    else:
        WBASE = 16384
        RING = S * STAGE
    NWQ = (64 * WROW // 1024) // 4
    NDMA = 4 + NWQ
    RS = BN * 2 + 16
    L = lambda s: '%s_%s' % (name, s)
    gelu = c.epi in ('gelu_inloop', 'gelu_pre')
    ST = c.stflag
    X, I = sr(S_XCD), sr(S_IDX)
    T0, T1, T2, T3 = sr(S_T0), sr(S_T1), sr(S_T2), sr(S_T3)

    a.L.append('.globl %s' % name)
    a.L.append('.p2align 8')
    a.L.append('.type %s,@function' % name)
    a.label(name)
    a('s_cmp_ge_u32 s2, 256')
    a('s_cbranch_scc1 %s' % L('done'))
    a('s_load_dwordx16 s[56:71], s[0:1], 0')
    if c.prof:
        a('s_memrealtime s[76:77]')
        a('s_memtime s[84:85]')
    a('s_and_b32 %s, s2, 7' % X)
    a('s_lshr_b32 %s, s2, 3' % I)
    def field(dst, src, shr, msk, shl):
        a('s_lshr_b32 %s, %s, %d' % (dst, src, shr))
        a('s_and_b32 %s, %s, %d' % (dst, dst, msk))
        if shl: a('s_lshl_b32 %s, %s, %d' % (dst, dst, shl))
    if c.map == '4x8':
        field(T1, X, 1, 3, 2); field(T2, I, 3, 3, 0); a('s_add_u32 %s, %s, %s' % (sr(S_RB), T1, T2))
        if c.rot:
            a('s_add_u32 %s, %s, %d' % (T3, I, c.rot))
            field(T1, X, 0, 1, 3); field(T2, T3, 0, 7, 0); a('s_add_u32 %s, %s, %s' % (sr(S_CBK), T1, T2))
        else:
            field(T1, X, 0, 1, 3); field(T2, I, 0, 7, 0); a('s_add_u32 %s, %s, %s' % (sr(S_CBK), T1, T2))
    elif c.map == '8x4':
        field(T1, X, 2, 1, 3); field(T2, I, 2, 7, 0); a('s_add_u32 %s, %s, %s' % (sr(S_RB), T1, T2))
        field(T1, X, 0, 3, 2); field(T2, I, 0, 3, 0); a('s_add_u32 %s, %s, %s' % (sr(S_CBK), T1, T2))
    elif c.map == 'split':
        field(sr(S_KH), X, 0, 1, 0)
        field(T1, X, 1, 1, 3); field(T2, I, 2, 7, 0); a('s_add_u32 %s, %s, %s' % (sr(S_RB), T1, T2))
        field(T1, X, 2, 1, 2); field(T2, I, 0, 3, 0); a('s_add_u32 %s, %s, %s' % (sr(S_CBK), T1, T2))
    a('s_lshl_b32 %s, %s, 7' % (sr(S_ROW), sr(S_RB)))
    a('s_mul_i32 %s, %s, %d' % (sr(S_COL), sr(S_CBK), BN))
    a('v_lshrrev_b32 v1, 6, v0')
    a('v_and_b32 v2, 63, v0')
    a('s_nop 0')
    a('v_readfirstlane_b32 %s, v1' % sr(S_WAVE))
    a('s_mov_b32 %s, 0x%x' % (sr(S_C0), f2u(C0)))
    a('s_mov_b32 %s, 0x%x' % (sr(S_C1), f2u(C1)))
    a('s_mov_b32 %s, 0xffff0000' % sr(S_MASK))
    a('s_waitcnt lgkmcnt(0)')
    if c.prof:
        a('s_memrealtime s[96:97]')
    mk_srd(a, SRD_T, c.T, c.Tbytes)
    mk_srd(a, SRD_W, c.W, c.Wbytes)
    if c.pfirst:
        a('s_cmp_lt_u32 %s, 4' % sr(S_WAVE))
        a('s_cbranch_scc1 %s' % L('cons'))
    else:
        a('s_cmp_ge_u32 %s, 4' % sr(S_WAVE))
        a('s_cbranch_scc1 %s' % L('prod'))
    IDX_C = len(a.L)
    a.label(L('cons'))

    def common_srds():
        mk_srd(a, SRD_O, c.O, c.Obytes)
        if c.R is not None:
            mk_srd(a, SRD_R, c.R, S_ * c.Rstride)
        if c.epi in ('resid_stats', 'gelu_pre'):
            mk_srd(a, SRD_X, ('ws', WS_PART2), 16 * S_ * 8)
            mk_srd(a, SRD_Y, ('ws', WS_CS3), 16 * F_ * 4)
        if c.side and c.epi != 'resid_stats':
            mk_srd(a, SRD_Y, ('ws', WS_CS3), 16 * F_ * 4)
        if c.split:
            mk_srd(a, SRD_X, ('ws', WS_XCH), 256 * 32768)
            mk_srd(a, SRD_Y, 'dbg', 256)

    V_RES, V_RBG, V_RBR = 240, 248, 252
    RB_SH = 3 if BN == 64 else 4
    def rb_idx(q, vrow, vch, vtmp):
        a('s_lshl_b32 %s, %s, 7' % (T0, sr(S_WAVE)))
        a('s_add_u32 %s, %s, %d' % (T0, T0, q * 64))
        a('v_add_u32 %s, %s, v2' % (vr(vtmp), T0))
        a('v_lshrrev_b32 %s, %d, %s' % (vr(vrow), RB_SH, vr(vtmp)))
        a('v_and_b32 %s, %d, %s' % (vr(vch), (1 << RB_SH) - 1, vr(vtmp)))
    def resid_loads():
        n = 0
        for q in range(2):
            rb_idx(q, 3, 4, 5)
            a('v_add_u32 v3, %s, v3' % sr(S_ROW))
            if c.split:
                a('s_lshl_b32 %s, %s, 6' % (T1, sr(S_KH)))
                a('v_add_u32 v3, %s, v3' % T1)
            a('v_lshlrev_b32 v4, 4, v4')
            a('s_lshl_b32 %s, %s, 1' % (T1, sr(S_COL)))
            a('v_add_u32 v4, %s, v4' % T1)
            a('v_mul_u32_u24 v5, %d, v3' % c.Ostride)
            a('v_add_u32 %s, v5, v4' % vr(V_RBG + q))
            if c.R is not None:
                a('v_mul_u32_u24 v5, %d, v3' % c.Rstride)
                a('v_add_u32 %s, v5, v4' % vr(V_RBR + q))
                a('buffer_load_dwordx4 %s, %s, %s, 0 offen' % (vr(V_RES + 4 * q, 4), vr(V_RBR + q), sr(SRD_R, 4)))
                n += 1
        return n

    def pf(item, onlywave=None, wreg=None):
        buf, nbytes, stride, sh, maxl, row_xcd, row_idx, rows_cu, col_xcd = item
        mk_srd(a, SRD_P, buf, nbytes)
        rpi = 64 >> sh
        per_wave = rows_cu // 4
        n = max(1, per_wave // rpi)
        def term(dst, spec):
            shr, msk, mul = spec
            a('s_lshr_b32 %s, %s, %d' % (dst, X, shr))
            a('s_and_b32 %s, %s, %d' % (dst, dst, msk))
            a('s_mul_i32 %s, %s, %d' % (dst, dst, mul))
        term(T0, row_xcd)
        a('s_mul_i32 %s, %s, %d' % (T1, I, row_idx))
        a('s_add_u32 %s, %s, %s' % (T0, T0, T1))
        a('s_mul_i32 %s, %s, %d' % (T1, sr(S_WAVE if wreg is None else wreg), per_wave))
        a('s_add_u32 %s, %s, %s' % (T0, T0, T1))
        term(T1, col_xcd)
        a('v_lshrrev_b32 v6, %d, v2' % sh)
        a('v_add_u32 v6, %s, v6' % T0)
        a('s_mov_b32 %s, %d' % (T2, stride))
        a('v_mul_lo_u32 v6, v6, %s' % T2)
        a('v_and_b32 v7, %d, v2' % ((1 << sh) - 1))
        if maxl < (1 << sh) - 1:
            a('v_min_u32 v7, %d, v7' % maxl)
        a('v_lshl_add_u32 v6, v7, 7, v6')
        a('v_add_u32 v6, %s, v6' % T1)
        for q in range(n):
            a('s_mov_b32 %s, %d' % (T2, q * rpi * stride))
            a('buffer_load_dword v250, v6, %s, %s offen' % (sr(SRD_P, 4), T2))

    cp_n = [0]
    def code_pf(target, nchunks, forward, skip=None):
        cp_n[0] += 1
        here = L('cpf%d' % cp_n[0])
        done = skip or (here + '_d')
        a('s_cmp_lg_u32 %s, 3' % sr(S_WAVE))
        a('s_cbranch_scc1 %s' % done)
        a('s_getpc_b64 s[4:5]')
        a.label(here)
        if forward:
            a('s_add_u32 s4, s4, %s-%s' % (target, here))
            a('s_addc_u32 s5, s5, 0')
        else:
            a('s_sub_u32 s4, s4, %s-%s' % (here, target))
            a('s_subb_u32 s5, s5, 0')
        a('s_and_b32 %s, %s, %d' % (T0, I, nchunks - 1))
        a('s_lshl_b32 %s, %s, 13' % (T0, T0))
        a('v_lshlrev_b32 v6, 7, v2')
        a('v_add_u32 v6, %s, v6' % T0)
        a('v_min_u32 v6, %s_end-%s-4, v6' % (target, target))
        a('global_load_dword v250, v6, s[4:5]')
        if skip is None:
            a.label(done)

    if c.kdpf:
        a('s_cmp_lg_u32 %s, 2' % sr(S_WAVE))
        a('s_cbranch_scc1 %s' % L('kdd'))
        a('s_getpc_b64 s[4:5]')
        a('s_add_u32 s4, s4, kd_start@rel32@lo+4')
        a('s_addc_u32 s5, s5, kd_start@rel32@hi+12')
        a('v_lshlrev_b32 v6, 6, v2')
        a('v_min_u32 v6, 192, v6')
        a('global_load_dword v250, v6, s[4:5]')
        a.label(L('kdd'))
    for (target, nch, fwd) in c.code0:
        code_pf(target, nch, fwd)
    a('s_lshr_b32 %s, %s, 1' % (sr(S_I), sr(S_WAVE)))
    a('s_and_b32 %s, %s, 1' % (sr(S_J), sr(S_WAVE)))
    VT = [[None] * 4, [None] * 4]
    VW = [[None] * CB, [None] * CB]
    nxt = 32
    for st in range(2):
        for tb in range(4):
            VT[st][tb] = nxt; nxt += 4
        for cb in range(CB):
            VW[st][cb] = nxt; nxt += 4
    assert nxt <= 128
    ACC = [[None] * CB for _ in range(4)]
    nxt = 128
    for tb in range(4):
        for cb in range(CB):
            ACC[tb][cb] = nxt; nxt += 4
    assert nxt <= 240
    NWA = 4 if BN == 128 else 2
    bT = [8, 9]; aT = [10, 11]
    bW = [12, 13, 14, 15][:NWA]; aW = [16, 17, 18, 19][:NWA]
    a('v_and_b32 v3, 15, v2')
    a('v_lshrrev_b32 v4, 4, v2')
    a('s_lshl_b32 %s, %s, 13' % (T0, sr(S_I)))
    a('v_lshlrev_b32 v5, 7, v3')
    a('v_lshrrev_b32 v6, 1, v3')
    a('v_xor_b32 v6, v6, v4')
    a('v_lshlrev_b32 v6, 4, v6')
    a('v_add3_u32 %s, v5, v6, %s' % (vr(bT[0]), T0))
    a('v_xor_b32 %s, 64, %s' % (vr(bT[1]), vr(bT[0])))
    a('v_lshrrev_b32 v5, 2, v3')
    a('v_lshl_add_u32 v6, v4, 3, v5')
    a('v_and_b32 v7, 3, v2')
    if BN == 64:
        a('v_lshlrev_b32 v6, 7, v6')
        a('v_lshl_add_u32 v6, v7, 3, v6')
        a('v_lshrrev_b32 v5, 1, v5')
        a('v_and_b32 v7, 1, v4')
        a('v_lshl_or_b32 v5, v7, 1, v5')
        a('s_lshl_b32 %s, %s, 1' % (T0, sr(S_J)))
        a('v_xor_b32 v5, %s, v5' % T0)
        a('v_lshl_add_u32 v6, v5, 5, v6')
        a('v_add_u32 %s, %d, v6' % (vr(bW[0]), WBASE))
        a('v_xor_b32 %s, 32, %s' % (vr(bW[1]), vr(bW[0])))
        woff = lambda s, cb, h: s * 4096 + h * 512
        wreg = lambda cb: cb
    elif BN == 128:
        a('v_lshlrev_b32 v6, 8, v6')
        a('v_lshl_add_u32 v6, v7, 3, v6')
        a('v_and_b32 v7, 1, v4')
        a('v_lshl_or_b32 v5, v7, 2, v5')
        a('s_lshl_b32 %s, %s, 2' % (T0, sr(S_J)))
        a('v_xor_b32 v5, %s, v5' % T0)
        a('v_lshl_add_u32 v6, v5, 5, v6')
        a('v_add_u32 %s, %d, v6' % (vr(bW[0]), WBASE))
        for cb in range(1, 4):
            a('v_xor_b32 %s, %d, %s' % (vr(bW[cb]), 32 * cb, vr(bW[0])))
        woff = lambda s, cb, h: s * 8192 + h * 1024
        wreg = lambda cb: cb
    else:
        a('v_mul_u32_u24 v6, 448, v6')
        a('v_lshl_add_u32 v6, v7, 3, v6')
        a('s_mul_i32 %s, %s, %d' % (T0, sr(S_J), 7 * 32))
        a('s_add_u32 %s, %s, %d' % (T0, T0, WBASE))
        a('v_add_u32 v6, %s, v6' % T0)
        a('v_and_b32 v7, 1, v4')
        a('v_lshlrev_b32 v7, 5, v7')
        a('v_add_u32 v5, v6, v7')
        a('v_sub_u32 v6, v6, v7')
        a('s_cmp_eq_u32 %s, 0' % sr(S_J))
        a('s_cselect_b64 vcc, -1, 0')
        a('v_cndmask_b32 %s, v6, v5, vcc' % vr(bW[0]))
        a('v_cndmask_b32 %s, v5, v6, vcc' % vr(bW[1]))
        woff = lambda s, cb, h: cb * 32 + s * 32 * 448 + h * 4 * 448
        wreg = lambda cb: cb & 1
    for tb in range(4):
        for cb in range(CB):
            for r in range(4):
                a('v_mov_b32 %s, 0' % vr(ACC[tb][cb] + r))
    SUMA, GRA, CSA, ONES = [176, 180], [184, 188], 192, 196
    if c.epi == 'gelu_inloop':
        for r in range(176, 196):
            a('v_mov_b32 %s, 0' % vr(r))
        for r in range(4):
            a('v_mov_b32 %s, 0x3f803f80' % vr(ONES + r))
    common_srds()
    if BN != 224:
        resid_loads()

    def grp_setup():
        a('s_lshr_b32 %s, %s, 1' % (T0, X))
        a('s_lshl_b32 %s, %s, 9' % (T0, T0))
        a('s_lshl_b32 %s, %s, 4' % (T1, I))
        a('s_add_u32 %s, %s, %s' % (T0, T0, T1))
        a('v_and_b32 v5, 15, v2')
        a('v_add_u32 v5, %s, v5' % T0)
        a('v_lshlrev_b32 v5, 11, v5')
        a('v_lshrrev_b32 v6, 4, v2')
        a('v_lshl_add_u32 v20, v6, 7, v5')
        a('v_and_b32 v5, 7, v2')
        a('v_lshlrev_b32 v5, 7, v5')
        a('v_bfe_u32 v7, v2, 3, 1')
        a('s_lshl_b32 %s, %s, 1' % (T0, I))
        a('v_add_u32 v7, %s, v7' % T0)
        a('v_lshl_add_u32 v7, v6, 6, v7')
        a('v_lshlrev_b32 v7, 11, v7')
        a('s_and_b32 %s, %s, 1' % (T0, X))
        a('s_lshl_b32 %s, %s, 10' % (T0, T0))
        a('v_add3_u32 v21, v5, v7, %s' % T0)
    def grp_pf(g, skip):
        a('s_cmp_gt_u32 %s, 1' % sr(S_WAVE))
        a('s_cbranch_scc1 %s' % skip)
        a('s_cmp_eq_u32 %s, 1' % sr(S_WAVE))
        lab = L('gw%d_%s' % (g, skip[-6:].replace('_', 'x')))
        a('s_cbranch_scc1 %s' % lab)
        a('s_mov_b32 %s, %d' % (T0, g * 512))
        a('buffer_load_dword v250, v20, %s, %s offen' % (sr(SRD_T, 4), T0))
        a('s_branch %s' % skip)
        a.label(lab)
        a('s_mov_b32 %s, %d' % (T0, g * 4 * 64 * 2048))
        a('buffer_load_dword v250, v21, %s, %s offen' % (sr(SRD_W, 4), T0))
    def k3_setup():
        a('s_lshr_b32 %s, %s, 2' % (T0, X))
        a('s_lshl_b32 %s, %s, 10' % (T0, T0))
        a('s_lshl_b32 %s, %s, 5' % (T1, I))
        a('s_add_u32 %s, %s, %s' % (T0, T0, T1))
        a('v_and_b32 v5, 31, v2')
        a('v_add_u32 v5, %s, v5' % T0)
        a('v_mul_u32_u24 v5, %d, v5' % c.Tstride)
        a('v_lshrrev_b32 v6, 5, v2')
        a('v_lshl_add_u32 v20, v6, 7, v5')
        a('v_and_b32 v5, 15, v2')
        a('v_min_u32 v5, 13, v5')
        a('v_lshlrev_b32 v5, 7, v5')
        a('v_bfe_u32 v7, v2, 4, 1')
        a('s_lshl_b32 %s, %s, 1' % (T0, I))
        a('v_add_u32 v7, %s, v7' % T0)
        a('v_lshl_add_u32 v7, v6, 6, v7')
        a('v_mul_u32_u24 v7, %d, v7' % c.Wstride)
        a('s_and_b32 %s, %s, 3' % (T0, X))
        a('s_mul_i32 %s, %s, 1792' % (T0, T0))
        a('v_add3_u32 v21, v5, v7, %s' % T0)
    def k3_pf(g, skip):
        a('s_cmp_gt_u32 %s, 1' % sr(S_WAVE))
        a('s_cbranch_scc1 %s' % skip)
        a('s_cmp_eq_u32 %s, 1' % sr(S_WAVE))
        lab = L('kw%d_%s' % (g, skip[-6:].replace('_', 'x')))
        a('s_cbranch_scc1 %s' % lab)
        a('s_mov_b32 %s, %d' % (T0, g * 256))
        a('buffer_load_dword v250, v20, %s, %s offen' % (sr(SRD_T, 4), T0))
        a('s_branch %s' % skip)
        a.label(lab)
        a('s_mov_b32 %s, %d' % (T0, g * 128 * c.Wstride))
        a('buffer_load_dword v250, v21, %s, %s offen' % (sr(SRD_W, 4), T0))
    if c.k3pf:
        k3_setup()
        for g in c.k3pf:
            k3_pf(g, L('k0s%d' % g))
            a.label(L('k0s%d' % g))
    if c.grp0 or any(it[0] == 'grp' for _, items in c.pf_at for it in items):
        grp_setup()
        for g in c.grp0:
            grp_pf(g, L('g0s%d' % g))
            a.label(L('g0s%d' % g))

    def reads(st, s):
        r = []
        order = [('T', 0), ('W', 0), ('T', 1), ('T', 2), ('T', 3)] + [('W', cb) for cb in range(1, CB)]
        for kind, i in order:
            if kind == 'T':
                r.append('ds_read_b128 %s, %s offset:%d' % (vr(VT[st][i], 4), vr(aT[s]), i * 2048))
            else:
                r.append('ds_read_b64_tr_b16 %s, %s offset:%d' % (vr(VW[st][i], 2), vr(aW[wreg(i)]), woff(s, i, 0)))
                r.append('ds_read_b64_tr_b16 %s, %s offset:%d' % (vr(VW[st][i] + 2, 2), vr(aW[wreg(i)]), woff(s, i, 1)))
        return r
    def mf(d, x, y):
        return 'v_mfma_f32_16x16x32_bf16 %s, %s, %s, %s' % (vr(d, 4), vr(x, 4), vr(y, 4), vr(d, 4))
    def mfmas(st, j=None, i=None):
        m = []
        for cb in range(CB):
            for tb in range(4):
                m.append(mf(ACC[tb][cb], VW[st][cb], VT[st][tb]))
        if c.epi == 'gelu_inloop' and c.stats == 'mfma':
            for z in range(2):
                tb = 2 * j + z
                m.append(mf(SUMA[z], ONES, VT[st][tb]))
                m.append(mf(GRA[z], VT[st][tb], VT[st][tb]))
            m.append(mf(CSA, VW[st][i], ONES))
        return m
    DS = 176
    def dots(st, j, i):
        if not (c.epi == 'gelu_inloop' and c.stats == 'dot'):
            return []
        e = []
        for d in range(4):
            for z in range(2):
                tb = 2 * j + z
                ch = (d & 1) * 4
                e.append('v_dot2c_f32_bf16 %s, %s, %s' % (vr(DS + ch + 2 * z), vr(VT[st][tb] + d), vr(ONES)))
                e.append('v_dot2c_f32_bf16 %s, %s, %s' % (vr(DS + ch + 2 * z + 1), vr(VT[st][tb] + d), vr(VT[st][tb] + d)))
            e.append('v_dot2c_f32_bf16 %s, %s, %s' % (vr(DS + 8 + (d & 1)), vr(VW[st][i] + d), vr(ONES)))
        return e
    def interleave(ms, rs, es=()):
        rs = list(rs); es = list(es)
        n = len(ms)
        for k, m in enumerate(ms):
            a(m)
            if rs:
                a(rs.pop(0))
            q = -(-len(es) // (n - k))
            for _ in range(q):
                a(es.pop(0))
        for r_ in rs: a(r_)
    def setaddr(regs):
        for ar, br in regs:
            a('v_add_u32 %s, %s, %s' % (vr(ar), 's6' if (c.rings and ar in aW) else sr(S_SLOT), vr(br)))
    WA = list(zip(aW, bW))

    ool = []
    def mainloop(tag, j, i):
        a('s_mov_b32 %s, 0' % sr(S_SLOT))
        if c.rings:
            a('s_mov_b32 s6, 0')
        if c.early:
            a('s_cmp_eq_u32 %s, %s' % (sr(S_I), sr(S_KH)))
            a('s_cselect_b32 %s, %d, %d' % (sr(S_CNT), NS, NF))
        else:
            a('s_mov_b32 %s, %d' % (sr(S_CNT), NS))
        a('s_barrier')
        setaddr([(aT[0], bT[0]), (aT[1], bT[1])] + WA)
        for r_ in reads(0, 0): a(r_)
        a.label(L('loop' + tag))
        for n_, (it, items) in enumerate(c.pf_at):
            lab = L('pfat%d%s' % (n_, tag)); ret = lab + '_r'
            a('s_cmp_eq_u32 %s, %d' % (sr(S_CNT), NS - it))
            a('s_cbranch_scc1 %s' % lab)
            a.label(ret)
            ool.append((lab, items, ret))
        a('s_waitcnt lgkmcnt(0)')
        interleave(mfmas(0, j, i), reads(1, 1), dots(0, j, i))
        if c.rings:
            a('s_add_u32 %s, %s, 16384' % (sr(S_SLOT), sr(S_SLOT)))
            a('s_cmp_eq_u32 %s, %d' % (sr(S_SLOT), RT * 16384))
            a('s_cselect_b32 %s, 0, %s' % (sr(S_SLOT), sr(S_SLOT)))
            a('s_add_u32 s6, s6, %d' % WT)
            a('s_cmp_eq_u32 s6, %d' % (RW * WT))
            a('s_cselect_b32 s6, 0, s6')
        else:
            a('s_add_u32 %s, %s, %d' % (sr(S_SLOT), sr(S_SLOT), STAGE))
            a('s_cmp_eq_u32 %s, %d' % (sr(S_SLOT), S * STAGE))
            a('s_cselect_b32 %s, 0, %s' % (sr(S_SLOT), sr(S_SLOT)))
        setaddr([(aT[0], bT[0])] + WA)
        a('s_waitcnt lgkmcnt(0)')
        a('s_barrier')
        interleave(mfmas(1, j, i), reads(0, 0), dots(1, j, i))
        setaddr([(aT[1], bT[1])])
        a('s_sub_u32 %s, %s, 1' % (sr(S_CNT), sr(S_CNT)))
        a('s_cmp_lg_u32 %s, 0' % sr(S_CNT))
        a('s_cbranch_scc1 %s' % L('loop' + tag))

    if c.epi == 'gelu_inloop':
        for w in range(4):
            if w < 3:
                a('s_cmp_lg_u32 %s, %d' % (sr(S_WAVE), w))
                a('s_cbranch_scc1 %s' % L('ver%d' % (w + 1)))
            mainloop('_%d' % w, w & 1, w >> 1)
            a('s_branch %s' % L('after'))
            if w < 3:
                a.label(L('ver%d' % (w + 1)))
    else:
        mainloop('', 0, 0)
        a('s_branch %s' % L('after'))
    for lab, items, ret in ool:
        a.label(lab)
        for item in items:
            if item[0] == 'grp':
                grp_pf(item[1], ret)
                continue
            if item[0] == 'k3g':
                k3_pf(item[1], ret)
                continue
            if item[0] == 'bad':
                _, buf, nbytes, k0, wv = item
                a('s_cmp_lg_u32 %s, %d' % (sr(S_WAVE), wv))
                a('s_cbranch_scc1 %s' % ret)
                mk_srd(a, SRD_P, buf, nbytes)
                a('s_lshl_b32 %s, %s, 6' % (T0, I))
                a('s_add_u32 %s, %s, %d' % (T0, T0, k0))
                a('v_add_u32 v6, %s, v2' % T0)
                a('v_lshlrev_b32 v6, 11, v6')
                a('s_and_b32 %s, %s, 1' % (T0, X))
                a('s_lshl_b32 %s, %s, 10' % (T0, T0))
                a('s_add_u32 %s, %s, 384' % (T0, T0))
                a('buffer_load_dword v250, v6, %s, %s offen' % (sr(SRD_P, 4), T0))
                continue
            if item[0] == 'bad2':
                _, buf, nbytes, wv = item
                a('s_cmp_lg_u32 %s, %d' % (sr(S_WAVE), wv))
                a('s_cbranch_scc1 %s' % ret)
                mk_srd(a, SRD_P, buf, nbytes)
                a('s_and_b32 %s, %s, 1' % (T1, X))
                a('s_mul_i32 %s, %s, 1792' % (T1, T1))
                a('s_lshl_b32 %s, %s, 6' % (T0, I))
                a('s_add_u32 %s, %s, %s' % (T0, T0, T1))
                a('v_add_u32 v6, %s, v2' % T0)
                a('v_lshlrev_b32 v6, 11, v6')
                a('s_lshr_b32 %s, %s, 2' % (T0, X))
                a('s_lshl_b32 %s, %s, 10' % (T0, T0))
                a('s_add_u32 %s, %s, 384' % (T0, T0))
                a('buffer_load_dword v250, v6, %s, %s offen' % (sr(SRD_P, 4), T0))
                continue
            if item[0] == 'code':
                code_pf(item[1], item[2], True, ret)
                continue
            if item[0] == 'onlywave':
                a('s_cmp_lg_u32 %s, %d' % (sr(S_WAVE), item[1]))
                a('s_cbranch_scc1 %s' % ret)
                item = item[2]
            pf(item)
        a('s_branch %s' % ret)
    a.label(L('after'))
    a('s_waitcnt lgkmcnt(0)')
    a('s_nop 7')
    a('s_nop 7')
    a('v_and_b32 v3, 15, v2')
    a('v_lshrrev_b32 v4, 4, v2')
    if c.early:
        XL = 131072
        a('s_lshl_b32 %s, s2, 15' % T3)
        a('s_lshl_b32 %s, %s, 14' % (T0, sr(S_J)))
        a('s_add_u32 %s, %s, %s' % (T3, T3, T0))
        a('v_lshlrev_b32 v6, 4, v2')
        a('s_cmp_eq_u32 %s, %s' % (sr(S_I), sr(S_KH)))
        a('s_cbranch_scc1 %s' % L('keep'))
        a('v_add_u32 v7, %s, v6' % T3)
        for tb in range(4):
            for cb in range(4):
                a('s_mov_b32 %s, %d' % (T0, (tb * 4 + cb) * 1024))
                a('buffer_store_dwordx4 %s, v7, %s, %s offen sc1' % (vr(ACC[tb][cb], 4), sr(SRD_X, 4), T0))
        mk_srd(a, SRD_Y, ('ws', WS_FLAG), 512 * 128)
        a('s_lshl_b32 %s, s2, 1' % T0)
        a('s_add_u32 %s, %s, %s' % (T0, T0, sr(S_J)))
        a('s_lshl_b32 %s, %s, 7' % (T1, T0))
        a('s_xor_b32 %s, %s, 256' % (T2, T1))
        a('v_mov_b32 v8, %s' % T2)
        a('v_mov_b32 v9, 1')
        a('v_mov_b32 v12, %s' % T1)
        a('v_cmp_eq_u32 vcc, 0, v2')
        a('v_mov_b32 v10, 0x%x' % OOB)
        a('s_nop 0')
        a('v_cndmask_b32 v10, v10, v12, vcc')
        a('s_xor_b32 %s, %s, 0x8000' % (T3, T3))
        a('v_add_u32 v7, %s, v6' % T3)
        a('s_add_u32 %s, %s, %d' % (T0, T3, 0))
        a('s_lshl_b32 %s, %s, 14' % (T0, sr(S_J)))
        a('v_add_u32 v11, %s, v6' % T0)
        a('v_add_u32 v11, %d, v11' % XL)
        a('s_mov_b32 s4, 0')
        NB_REM = NS - NF
        WAITB = min(c.ackb, NB_REM)
        def try_fetch(tag):
            skip = L('tf%s' % tag)
            a('s_cmp_lg_u32 s4, 0')
            a('s_cbranch_scc1 %s' % skip)
            a('s_waitcnt vmcnt(0)')
            a('v_readfirstlane_b32 %s, v20' % T1)
            a('s_nop 3')
            a('s_cmp_lg_u32 %s, 0' % T1)
            a('s_cbranch_scc1 %s' % (skip + 'g'))
            a('buffer_load_dword v20, v8, %s, 0 offen sc1' % sr(SRD_Y, 4))
            a('s_branch %s' % skip)
            a.label(skip + 'g')
            for n in range(16):
                a('s_mov_b32 %s, %d' % (T0, n * 1024))
                a('buffer_load_dwordx4 %s, v7, %s, %s offen sc1' % (vr(32 + 4 * n, 4), sr(SRD_X, 4), T0))
            a('s_mov_b32 s4, 1')
            a.label(skip)
        for n in range(NB_REM):
            a('s_barrier')
            if n + 1 == WAITB:
                a('s_waitcnt vmcnt(0)')
                a('buffer_store_dword v9, v10, %s, 0 offen sc1' % sr(SRD_Y, 4))
                a('buffer_load_dword v20, v8, %s, 0 offen sc1' % sr(SRD_Y, 4))
            elif n + 1 in c.chk:
                try_fetch('%d' % n)
        a.label(L('fpoll'))
        try_fetch('z')
        a('s_cmp_eq_u32 s4, 0')
        a('s_cbranch_scc1 %s' % L('fpoll'))
        for n in range(16):
            a('s_waitcnt vmcnt(%d)' % (15 - n))
            a('ds_write_b128 v11, %s offset:%d' % (vr(32 + 4 * n, 4), n * 1024))
        a('s_waitcnt lgkmcnt(0)')
        a('s_barrier')
        a('s_branch %s' % L('store'))
        a.label(L('keep'))
        a('s_lshl_b32 %s, %s, 14' % (T0, sr(S_J)))
        a('v_add_u32 v11, %s, v6' % T0)
        a('v_add_u32 v11, %d, v11' % XL)
        a('s_barrier')
        for n in range(16):
            a('ds_read_b128 %s, v11 offset:%d' % (vr(32 + 4 * n, 4), n * 1024))
        for tb in range(4):
            a('s_waitcnt lgkmcnt(%d)' % (12 - 4 * tb))
            for cb in range(4):
                for h in range(2):
                    d = ACC[tb][cb] + 2 * h; s_ = 32 + (tb * 4 + cb) * 4 + 2 * h
                    a('v_pk_add_f32 %s, %s, %s' % (vr(d, 2), vr(d, 2), vr(s_, 2)))
        a('s_lshl_b32 %s, %s, 7' % (T1, sr(S_J)))
        a('v_mul_u32_u24 v5, %d, v3' % RS)
        a('v_lshl_add_u32 v5, v4, 3, v5')
        a('v_add_u32 v5, %s, v5' % T1)
    elif c.split:
        a('s_lshl_b32 %s, s2, 15' % T3)
        a('s_lshl_b32 %s, %s, 14' % (T0, sr(S_J)))
        a('s_add_u32 %s, %s, %s' % (T3, T3, T0))
        a('v_lshlrev_b32 v6, 4, v2')
        a('s_cmp_eq_u32 %s, %s' % (sr(S_I), sr(S_KH)))
        a('s_cbranch_scc1 %s' % L('recv'))
        a('v_add_u32 v6, %s, v6' % T3)
        for tb in range(4):
            for cb in range(4):
                a('s_mov_b32 %s, %d' % (T0, (tb * 4 + cb) * 1024))
                a('buffer_store_dwordx4 %s, v6, %s, %s offen sc1' % (vr(ACC[tb][cb], 4), sr(SRD_X, 4), T0))
        a('s_waitcnt vmcnt(0)')
        a('s_barrier')
        a('s_branch %s' % L('store'))
        a.label(L('recv'))
        a('s_barrier')
        a('s_xor_b32 %s, s2, 1' % T0)
        a('s_lshr_b32 %s, %s, 2' % (T1, T0))
        a('s_lshl_b32 %s, %s, 2' % (T1, T1))
        a('s_and_b32 %s, %s, 3' % (T2, T0))
        a('s_lshl_b32 %s, %s, 3' % (T2, T2))
        a('v_mov_b32 v7, %s' % T1)
        a.label(L('poll'))
        a('buffer_load_dword v20, v7, %s, 0 offen sc1' % sr(SRD_Y, 4))
        a('s_waitcnt vmcnt(0)')
        a('v_readfirstlane_b32 %s, v20' % T1)
        a('s_nop 3')
        a('s_lshr_b32 %s, %s, %s' % (T1, T1, T2))
        a('s_and_b32 %s, %s, 0xff' % (T1, T1))
        a('s_cmp_lg_u32 %s, 0' % T1)
        a('s_cbranch_scc1 %s' % L('got'))
        a('s_sleep 1')
        a('s_branch %s' % L('poll'))
        a.label(L('got'))
        a('s_xor_b32 %s, %s, 0x8000' % (T3, T3))
        a('v_add_u32 v6, %s, v6' % T3)
        for tb in range(4):
            for cb in range(4):
                a('s_mov_b32 %s, %d' % (T0, (tb * 4 + cb) * 1024))
                a('buffer_load_dwordx4 %s, v6, %s, %s offen sc1' % (vr(32 + (tb * 4 + cb) * 4, 4), sr(SRD_X, 4), T0))
        for tb in range(4):
            a('s_waitcnt vmcnt(%d)' % (12 - 4 * tb))
            for cb in range(4):
                for h in range(2):
                    d = ACC[tb][cb] + 2 * h; s_ = 32 + (tb * 4 + cb) * 4 + 2 * h
                    a('v_pk_add_f32 %s, %s, %s' % (vr(d, 2), vr(d, 2), vr(s_, 2)))
        a('s_lshl_b32 %s, %s, 7' % (T1, sr(S_J)))
        a('v_mul_u32_u24 v5, %d, v3' % RS)
        a('v_lshl_add_u32 v5, v4, 3, v5')
        a('v_add_u32 v5, %s, v5' % T1)
    else:
        a('s_mul_i32 %s, %s, %d' % (T0, sr(S_I), 64 * RS))
        a('s_mul_i32 %s, %s, %d' % (T1, sr(S_J), CB * 32))
        a('s_add_u32 %s, %s, %s' % (T0, T0, T1))
        a('v_mul_u32_u24 v5, %d, v3' % RS)
        a('v_lshl_add_u32 v5, v4, 3, v5')
        a('v_add_u32 v5, %s, v5' % T0)
    PC, VC = 32, 80
    if gelu:
        if c.epi == 'gelu_inloop':
          if c.stats == 'mfma':
              GR_OFF = 32768; SM_OFF = GR_OFF + 8192; CS_OFF = SM_OFF + 512
              a('s_lshl_b32 %s, %s, 2' % (T0, sr(S_I)))
              a('s_lshl_b32 %s, %s, 1' % (T1, sr(S_J)))
              a('s_add_u32 %s, %s, %s' % (T0, T0, T1))
              a('s_lshl_b32 %s, %s, 10' % (T1, T0))
              a('v_lshlrev_b32 v6, 8, v4')
              a('v_lshl_add_u32 v6, v3, 2, v6')
              a('v_add_u32 v6, %s, v6' % T1)
              for z in range(2):
                  for r in range(4):
                      a('ds_write_b32 v6, %s offset:%d' % (vr(GRA[z] + r), GR_OFF + z * 1024 + r * 64))
              a('s_lshl_b32 %s, %s, 6' % (T1, T0))
              a('v_lshlrev_b32 v6, 2, v3')
              a('v_add_u32 v6, %s, v6' % T1)
              for z in range(2):
                  a('ds_write_b32 v6, %s offset:%d' % (vr(SUMA[z]), SM_OFF + z * 64))
              a('s_lshl_b32 %s, %s, 1' % (T0, sr(S_J)))
              a('s_add_u32 %s, %s, %s' % (T0, T0, sr(S_I)))
              a('s_lshl_b32 %s, %s, 6' % (T0, T0))
              a('v_lshlrev_b32 v6, 4, v4')
              a('v_add_u32 v6, %s, v6' % T0)
              a('ds_write_b128 v6, %s offset:%d' % (vr(CSA, 4), CS_OFF))
              a('s_waitcnt lgkmcnt(0)')
              a('s_barrier')
              a('s_lshl_b32 %s, %s, 8' % (T0, sr(S_I)))
              a('v_lshlrev_b32 v6, 2, v3')
              a('v_add_u32 v6, %s, v6' % T0)
              a('s_lshl_b32 %s, %s, 12' % (T0, sr(S_I)))
              a('v_mul_u32_u24 v7, 68, v3')
              a('v_add_u32 v7, %s, v7' % T0)
              for tb in range(4):
                  a('ds_read_b32 %s, v6 offset:%d' % (vr(48 + 2 * tb), SM_OFF + tb * 64))
                  a('ds_read_b32 %s, v7 offset:%d' % (vr(49 + 2 * tb), GR_OFF + tb * 1024))
          else:
            SP_OFF = 32768; CSP_OFF = SP_OFF + 4096; CS_OFF = CSP_OFF + 1024
            for r in range(4):
                a('v_add_f32 %s, %s, %s' % (vr(DS + r), vr(DS + r), vr(DS + 4 + r)))
            a('v_add_f32 %s, %s, %s' % (vr(DS + 8), vr(DS + 8), vr(DS + 9)))
            a('s_lshl_b32 %s, %s, 6' % (T0, sr(S_I)))
            a('s_lshl_b32 %s, %s, 5' % (T1, sr(S_J)))
            a('s_add_u32 %s, %s, %s' % (T0, T0, T1))
            a('v_add_u32 v6, %s, v3' % T0)
            a('v_lshlrev_b32 v6, 3, v6')
            a('v_lshl_add_u32 v6, v4, 10, v6')
            a('ds_write_b64 v6, %s offset:%d' % (vr(DS, 2), SP_OFF))
            a('ds_write_b64 v6, %s offset:%d' % (vr(DS + 2, 2), SP_OFF + 128))
            a('s_lshl_b32 %s, %s, 1' % (T0, sr(S_J)))
            a('s_add_u32 %s, %s, %s' % (T0, T0, sr(S_I)))
            a('s_lshl_b32 %s, %s, 4' % (T0, T0))
            a('v_add_u32 v6, %s, v3' % T0)
            a('v_lshlrev_b32 v6, 2, v6')
            a('v_lshl_add_u32 v6, v4, 8, v6')
            a('ds_write_b32 v6, %s offset:%d' % (vr(DS + 8), CSP_OFF))
            a('s_waitcnt lgkmcnt(0)')
            a('s_barrier')
            a('s_lshl_b32 %s, %s, 6' % (T0, sr(S_I)))
            a('v_add_u32 v6, %s, v3' % T0)
            a('v_lshlrev_b32 v6, 3, v6')
            for tb in range(4):
                for g in range(4):
                    a('ds_read_b64 %s, v6 offset:%d' % (vr(96 + (tb * 4 + g) * 2, 2), SP_OFF + tb * 128 + g * 1024))
            a('s_lshl_b32 %s, %s, 7' % (T0, sr(S_J)))
            a('v_lshlrev_b32 v7, 4, v4')
            a('v_add_u32 v7, %s, v7' % T0)
            for cb in range(2):
                for g in range(4):
                    a('ds_read_b128 %s, v7 offset:%d' % (vr(200 + (cb * 4 + g) * 4, 4), CSP_OFF + cb * 64 + g * 256))
            a('s_waitcnt lgkmcnt(0)')
            for tb in range(4):
                b = 96 + tb * 8
                for h in range(2):
                    a('v_add_f32 %s, %s, %s' % (vr(b + h), vr(b + h), vr(b + 2 + h)))
                    a('v_add_f32 %s, %s, %s' % (vr(b + 4 + h), vr(b + 4 + h), vr(b + 6 + h)))
                    a('v_add_f32 %s, %s, %s' % (vr(48 + 2 * tb + h), vr(b + h), vr(b + 4 + h)))
            for cb in range(2):
                b = 200 + cb * 16
                for r in range(4):
                    a('v_add_f32 %s, %s, %s' % (vr(b + r), vr(b + r), vr(b + 4 + r)))
                    a('v_add_f32 %s, %s, %s' % (vr(b + 8 + r), vr(b + 8 + r), vr(b + 12 + r)))
                    a('v_add_f32 %s, %s, %s' % (vr(VC + 4 * cb + r), vr(b + r), vr(b + 8 + r)))
        else:
            SP_OFF = RING; CS_OFF = SP_OFF + 2048
            a('s_lshl_b32 %s, %s, 6' % (T0, sr(S_I)))
            a('v_add_u32 v6, %s, v3' % T0)
            a('v_lshlrev_b32 v6, 3, v6')
            a('v_add_u32 v6, 0x%x, v6' % SP_OFF)
            for tb in range(4):
                a('ds_read_b64 %s, v6 offset:%d' % (vr(48 + 2 * tb, 2), tb * 128))
                a('ds_read_b64 %s, v6 offset:%d' % (vr(56 + 2 * tb, 2), tb * 128 + 1024))
        if not (c.epi == 'gelu_inloop' and c.stats == 'dot'):
            a('s_mul_i32 %s, %s, %d' % (T0, sr(S_J), CB * 64))
            a('s_add_u32 %s, %s, 0x%x' % (T0, T0, CS_OFF))
            a('v_lshlrev_b32 v10, 4, v4')
            a('v_add_u32 v10, %s, v10' % T0)
            for cb in range(CB):
                a('ds_read_b128 %s, v10 offset:%d' % (vr(VC + 4 * cb, 4), cb * 64))
            a('s_waitcnt lgkmcnt(0)')
        chains = []
        for tb in range(4):
            ch = []
            e = ch.append
            sm, sq = 48 + 2 * tb, 49 + 2 * tb
            if c.epi == 'gelu_pre':
                e('v_add_f32 %s, %s, %s' % (vr(sm), vr(sm), vr(56 + 2 * tb)))
                e('v_add_f32 %s, %s, %s' % (vr(sq), vr(sq), vr(57 + 2 * tb)))
            NM, A0c, A1c, SI = PC + 4 * tb, PC + 4 * tb + 1, PC + 4 * tb + 2, PC + 4 * tb + 3
            e('v_mul_f32 %s, 0x%x, %s' % (vr(sm), f2u(1.0 / 1024), vr(sm)))
            e('v_mul_f32 %s, 0x%x, %s' % (vr(sq), f2u(1.0 / 1024), vr(sq)))
            e('v_fma_f32 %s, -%s, %s, %s' % (vr(sq), vr(sm), vr(sm), vr(sq)))
            e('v_max_f32 %s, 0, %s' % (vr(sq), vr(sq)))
            e('v_cvt_pk_bf16_f32 %s, %s, %s' % (vr(sm), vr(sm), vr(sq)))
            e('v_lshlrev_b32 %s, 16, %s' % (vr(NM), vr(sm)))
            e('v_and_b32 %s, %s, %s' % (vr(sq), sr(S_MASK), vr(sm)))
            e('v_xor_b32 %s, 0x80000000, %s' % (vr(NM), vr(NM)))
            e('v_add_f32 %s, 0x%x, %s' % (vr(sq), f2u(1e-5), vr(sq)))
            e('v_cvt_pk_bf16_f32 %s, %s, %s' % (vr(sq), vr(sq), vr(sq)))
            e('v_and_b32 %s, %s, %s' % (vr(sq), sr(S_MASK), vr(sq)))
            e('v_sqrt_f32 %s, %s' % (vr(sq), vr(sq)))
            e('v_cvt_pk_bf16_f32 %s, %s, %s' % (vr(sq), vr(sq), vr(sq)))
            e('v_and_b32 %s, %s, %s' % (vr(SI), sr(S_MASK), vr(sq)))
            e('v_rcp_f32 %s, %s' % (vr(sq), vr(SI)))
            e('v_mul_f32 %s, %s, %s' % (vr(A0c), sr(S_C0), vr(sq)))
            e('v_mul_f32 %s, %s, %s' % (vr(sm), vr(sq), vr(sq)))
            e('v_mul_f32 %s, %s, %s' % (vr(sm), vr(sm), vr(sq)))
            e('v_mul_f32 %s, %s, %s' % (vr(A1c), sr(S_C1), vr(sm)))
            chains.append(ch)
        for k in range(len(chains[0])):
            for ch in chains:
                a(ch[k])
    def finish_tiles(tiles):
        prs = []
        tmp = 16
        for (tb, cb) in tiles:
            for h in range(2):
                prs.append((ACC[tb][cb] + 2 * h, VC + 4 * cb + 2 * h, tb, tmp)); tmp += 2
        assert tmp <= 32
        if gelu:
            for (y, cs, tb, t) in prs:
                a('v_pk_fma_f32 %s, %s, %s, %s op_sel_hi:[1,0,1]' % (vr(y, 2), vr(cs, 2), vr(PC + 4 * tb, 2), vr(y, 2)))
            for (y, cs, tb, t) in prs:
                a('v_pk_mul_f32 %s, %s, %s' % (vr(t, 2), vr(y, 2), vr(y, 2)))
            for (y, cs, tb, t) in prs:
                a('v_pk_fma_f32 %s, %s, %s, %s op_sel:[0,0,1] op_sel_hi:[1,0,1]' % (vr(t, 2), vr(t, 2), vr(PC + 4 * tb + 2, 2), vr(PC + 4 * tb, 2)))
            for (y, cs, tb, t) in prs:
                a('v_pk_mul_f32 %s, %s, %s' % (vr(t, 2), vr(t, 2), vr(y, 2)))
            for (y, cs, tb, t) in prs:
                a('v_exp_f32 %s, %s' % (vr(t), vr(t)))
                a('v_exp_f32 %s, %s' % (vr(t + 1), vr(t + 1)))
            for (y, cs, tb, t) in prs:
                a('v_pk_fma_f32 %s, %s, %s, %s op_sel:[0,1,1] op_sel_hi:[1,1,1]' % (vr(t, 2), vr(t, 2), vr(PC + 4 * tb + 2, 2), vr(PC + 4 * tb + 2, 2)))
            for (y, cs, tb, t) in prs:
                a('v_rcp_f32 %s, %s' % (vr(t), vr(t)))
                a('v_rcp_f32 %s, %s' % (vr(t + 1), vr(t + 1)))
            for (y, cs, tb, t) in prs:
                a('v_pk_mul_f32 %s, %s, %s' % (vr(y, 2), vr(y, 2), vr(t, 2)))
        for (tb, cb) in tiles:
            A0 = ACC[tb][cb]
            a('v_cvt_pk_bf16_f32 %s, %s, %s' % (vr(A0), vr(A0), vr(A0 + 1)))
            a('v_cvt_pk_bf16_f32 %s, %s, %s' % (vr(A0 + 1), vr(A0 + 2), vr(A0 + 3)))
        for (tb, cb) in tiles:
            a('ds_write_b64 v5, %s offset:%d' % (vr(ACC[tb][cb], 2), tb * 16 * RS + cb * 32))
    if BN != 224:
        for tb in range(4):
            finish_tiles([(tb, cb) for cb in range(CB)])
        a('s_waitcnt lgkmcnt(0)')
        a('s_branch %s' % L('store'))
    else:
        for tb in range(4):
            tl = [(tb, cb) for cb in range(CB)]
            finish_tiles(tl[0:4]); finish_tiles(tl[4:7])
            a('s_waitcnt lgkmcnt(0)')
            a('s_barrier')
        a('s_endpgm')

    IDX_P = len(a.L)
    a.label(L('prod'))
    if c.pprio:
        a('s_setprio %d' % c.pprio)
    a('s_sub_u32 %s, %s, 4' % (sr(S_ROLE), sr(S_WAVE)))
    a('v_lshrrev_b32 v3, 3, v2')
    a('v_and_b32 v4, 7, v2')
    a('v_lshrrev_b32 v5, 4, v2')
    a('s_lshl_b32 %s, %s, 5' % (T0, sr(S_ROLE)))
    a('s_add_u32 %s, %s, %s' % (T0, T0, sr(S_ROW)))
    a('s_mov_b32 %s, %d' % (T1, c.Tstride))
    a('v_add_u32 v6, %s, v3' % T0)
    a('v_mul_lo_u32 v6, v6, %s' % T1)
    if c.split and not c.early:
        a('s_mul_i32 %s, %s, %d' % (T0, sr(S_KH), KLEN * 2))
        a('v_add_u32 v6, %s, v6' % T0)
    if c.early:
        a('s_mul_i32 s72, %s, %d' % (sr(S_KH), KLEN * 2))
        a('s_sub_u32 s73, %d, s72' % (KLEN * 2))
        a('s_mul_i32 s74, %s, %d' % (sr(S_KH), KLEN * c.Wstride))
        a('s_sub_u32 s75, %d, s74' % (KLEN * c.Wstride))
        a('s_lshl_b32 %s, %s, 6' % (T0, sr(S_KH)))
        a('s_lshl_b32 %s, %s, 4' % (T2, sr(S_ROLE)))
        a('s_add_u32 %s, %s, %s' % (T0, T0, T2))
        a('s_lshl_b32 s5, %s, 7' % T0)
        a('s_add_u32 %s, %s, %s' % (T0, T0, sr(S_ROW)))
        a('v_add_u32 v16, %s, v3' % T0)
        a('v_mul_lo_u32 v16, v16, %s' % T1)
        a('v_xor_b32 v7, v4, v5')
        a('v_xor_b32 v20, 4, v7')
        a('v_lshl_add_u32 v17, v20, 4, v16')
        a('v_add_u32 v17, %d, v17' % (8 * c.Tstride))
        a('v_lshl_add_u32 v16, v7, 4, v16')
    a('v_xor_b32 v7, v4, v5')
    a('v_lshl_add_u32 v8, v7, 4, v6')
    a('v_xor_b32 v7, 4, v7')
    a('v_lshl_add_u32 v9, v7, 4, v6')
    a('v_add_u32 v9, %d, v9' % (8 * c.Tstride))
    a('v_add_u32 v10, %d, v8' % (16 * c.Tstride))
    a('v_add_u32 v11, %d, v9' % (16 * c.Tstride))
    a('s_lshl_b32 %s, %s, 1' % (T2, sr(S_COL)))
    if c.split and not c.early:
        a('s_mul_i32 %s, %s, %d' % (T0, sr(S_KH), KLEN * c.Wstride))
        a('s_add_u32 %s, %s, %s' % (T2, T2, T0))
    a('s_mov_b32 %s, %d' % (T1, c.Wstride))
    if BN == 64:
        a('s_lshl_b32 %s, %s, 4' % (T0, sr(S_ROLE)))
        a('v_add_u32 v6, %s, v3' % T0)
        a('v_mul_lo_u32 v6, v6, %s' % T1)
        a('v_add_u32 v6, %s, v6' % T2)
        a('v_and_b32 v7, 1, v5')
        a('v_lshlrev_b32 v7, 1, v7')
        a('v_xor_b32 v7, v4, v7')
        a('v_lshl_add_u32 v12, v7, 4, v6')
        a('v_xor_b32 v7, 4, v7')
        a('v_lshl_add_u32 v13, v7, 4, v6')
        a('v_add_u32 v13, %d, v13' % (8 * c.Wstride))
    elif BN == 128:
        a('s_lshl_b32 %s, %s, 4' % (T0, sr(S_ROLE)))
        a('v_add_u32 v6, %s, v5' % T0)
        a('v_mul_lo_u32 v6, v6, %s' % T1)
        a('v_add_u32 v6, %s, v6' % T2)
        a('v_and_b32 v7, 15, v2')
        a('v_lshlrev_b32 v20, 1, v5')
        a('v_xor_b32 v7, v7, v20')
        a('v_lshl_add_u32 v12, v7, 4, v6')
        a('v_add_u32 v13, %d, v12' % (4 * c.Wstride))
        a('v_xor_b32 v7, 8, v7')
        a('v_lshl_add_u32 v14, v7, 4, v6')
        a('v_add_u32 v14, %d, v14' % (8 * c.Wstride))
        a('v_add_u32 v15, %d, v14' % (4 * c.Wstride))
    else:
        if c.tfirst:
            a('s_lshl_b32 %s, %s, 12' % (sr(S_PT), sr(S_ROLE)))
            a('s_mov_b32 %s, 0' % sr(S_OFT))
            for q in range(4):
                a('s_add_u32 m0, %s, 0x%x' % (sr(S_PT), q * 1024))
                a('s_nop 0')
                a('buffer_load_dwordx4 %s, %s, %s offen lds' % (vr(8 + q), sr(SRD_T, 4), sr(S_OFT)))
            a('s_mul_i32 %s, %s, %d' % (sr(S_PW), sr(S_ROLE), NWQ * 1024))
            a('s_add_u32 %s, %s, %d' % (sr(S_PW), sr(S_PW), WBASE))
            a('s_mov_b32 %s, 0' % sr(S_OFW))
        for q in range(NWQ):
            a('s_mul_i32 %s, %s, %d' % (T0, sr(S_ROLE), NWQ * 64))
            a('s_add_u32 %s, %s, %d' % (T0, T0, q * 64))
            a('v_add_u32 v6, %s, v2' % T0)
            a('v_mul_u32_u24 v7, 2341, v6')
            a('v_lshrrev_b32 v7, 16, v7')
            a('v_mul_u32_u24 v20, 28, v7')
            a('v_sub_u32 v6, v6, v20')
            a('v_bfe_u32 v20, v7, 3, 1')
            a('v_lshlrev_b32 v20, 1, v20')
            a('v_xor_b32 v6, v6, v20')
            a('v_mul_lo_u32 v7, v7, %s' % T1)
            a('v_lshl_add_u32 v6, v6, 4, v7')
            a('v_add_u32 %s, %s, v6' % (vr(12 + q), T2))
            if c.tfirst:
                a('s_add_u32 m0, %s, 0x%x' % (sr(S_PW), q * 1024))
                a('s_nop 0')
                a('buffer_load_dwordx4 %s, %s, %s offen lds' % (vr(12 + q), sr(SRD_W, 4), sr(S_OFW)))
    if c.ofs:
        for q in range(1, 4):
            a('v_subrev_u32 %s, %d, %s' % (vr(8 + q), q * 1024, vr(8 + q)))
        for q in range(NWQ):
            if q & 3:
                a('v_subrev_u32 %s, %d, %s' % (vr(12 + q), (q & 3) * 1024, vr(12 + q)))
        if c.early:
            a('v_subrev_u32 v17, 1024, v17')
    a('s_lshl_b32 %s, %s, 12' % (sr(S_PT), sr(S_ROLE)))
    a('s_mul_i32 %s, %s, %d' % (sr(S_PW), sr(S_ROLE), NWQ * 1024))
    a('s_add_u32 %s, %s, %d' % (sr(S_PW), sr(S_PW), WBASE))
    shift = [0]
    log = []
    def other(n):
        log.extend([('x',)] * n)
    if c.krot:
        (sh_c, m_c, k_c), (sh_r, m_r, k_r) = c.krot
        a('s_lshr_b32 %s, %s, %d' % (T0, I, sh_c)); a('s_and_b32 %s, %s, %d' % (T0, T0, m_c)); a('s_mul_i32 %s, %s, %d' % (T0, T0, k_c))
        a('s_lshr_b32 %s, %s, %d' % (T1, I, sh_r)); a('s_and_b32 %s, %s, %d' % (T1, T1, m_r)); a('s_mul_i32 %s, %s, %d' % (T1, T1, k_r))
        a('s_add_u32 %s, %s, %s' % (T0, T0, T1))
        a('s_and_b32 %s, %s, %d' % (T0, T0, NS - 1))
        a('s_lshl_b32 s4, %s, 7' % T0)
        a('s_mul_i32 s5, %s, %d' % (T0, 64 * c.Wstride))
    def issue(st):
        slot = st % S
        if c.krot:
            a('s_mov_b32 %s, s4' % sr(S_OFT))
            a('s_mov_b32 %s, s5' % sr(S_OFW))
            a('s_add_u32 s4, s4, 128')
            a('s_add_u32 s5, s5, %d' % (64 * c.Wstride))
            a('s_cmp_eq_u32 s4, %d' % (c.K * 2))
            a('s_cselect_b32 s4, 0, s4')
            a('s_cselect_b32 s5, 0, s5')
            regs = [8, 9, 10, 11]
            if c.shift:
                a('s_lshr_b32 %s, %s, 10' % (T0, sr(S_OFT)))
                a('s_add_u32 %s, %s, 1' % (T0, T0))
                a('s_mul_i32 %s, %s, %d' % (T0, T0, c.Tstride))
                a('s_sub_u32 %s, 0, %s' % (T1, T0))
                a('s_bitcmp1_b32 %s, 9' % sr(S_OFT))
                a('s_cselect_b32 %s, %s, %s' % (T0, T0, T1))
                for q in range(4):
                    a('v_add_u32 %s, %s, %s' % (vr(20 + q), T0, vr(8 + q)))
                regs = [20, 21, 22, 23]
            for q in range(4):
                a('s_add_u32 m0, %s, 0x%x' % (sr(S_PT), slot * STAGE + q * 1024))
                a('s_nop 0')
                a('buffer_load_dwordx4 %s, %s, %s offen lds' % (vr(regs[q]), sr(SRD_T, 4), sr(S_OFT)))
            for q in range(NWQ):
                a('s_add_u32 m0, %s, 0x%x' % (sr(S_PW), slot * STAGE + q * 1024))
                a('s_nop 0')
                a('buffer_load_dwordx4 %s, %s, %s offen lds' % (vr(12 + q), sr(SRD_W, 4), sr(S_OFW)))
            log.extend([('st', st)] * NDMA)
            if st == NS - 1 and not c.xlate:
                after_last_issue()
            return
        if c.shift:
            d = [-1, 1, -2, 2][st // 4]
            if d != shift[0]:
                for q in range(4):
                    a('v_add_u32 %s, 0x%x, %s' % (vr(8 + q), ((d - shift[0]) * c.Tstride) & 0xffffffff, vr(8 + q)))
                shift[0] = d
        full = True
        if c.early:
            full = st < NF
            if st < NHALF:
                a('s_add_u32 %s, s72, 0x%x' % (sr(S_OFT), st * 128))
                a('s_add_u32 %s, s74, 0x%x' % (sr(S_OFW), st * 64 * c.Wstride))
            else:
                s2_ = NF + (st - NHALF)
                a('s_add_u32 %s, s73, 0x%x' % (sr(S_OFT), s2_ * 128))
                a('s_add_u32 %s, s75, 0x%x' % (sr(S_OFW), s2_ * 64 * c.Wstride))
        else:
            a('s_mov_b32 %s, 0x%x' % (sr(S_OFT), st * 128))
            a('s_mov_b32 %s, 0x%x' % (sr(S_OFW), st * 64 * c.Wstride))
        def group(base_s, base_imm, regs, srd, soff):
            for g0 in range(0, len(regs), 4):
                a('s_add_u32 m0, %s, 0x%x' % (base_s, base_imm + g0 * 1024))
                a('s_nop 0')
                for q, r_ in enumerate(regs[g0:g0 + 4]):
                    a('buffer_load_dwordx4 %s, %s, %s offen%s lds' % (vr(r_), sr(srd, 4), soff, (' offset:%d' % (q * 1024)) if q else ''))
        if c.ofs:
            if full:
                group(sr(S_PT), slot * STAGE, [8, 9, 10, 11], SRD_T, sr(S_OFT))
            else:
                group('s5', slot * STAGE, [16, 17], SRD_T, sr(S_OFT))
            group(sr(S_PW), slot * STAGE, [12 + q for q in range(NWQ)], SRD_W, sr(S_OFW))
        else:
            if full and not (c.tfirst and st == 0):
                for q in range(4):
                    a('s_add_u32 m0, %s, 0x%x' % (sr(S_PT), slot * STAGE + q * 1024))
                    a('s_nop 0')
                    a('buffer_load_dwordx4 %s, %s, %s offen lds' % (vr(8 + q), sr(SRD_T, 4), sr(S_OFT)))
            elif not full:
                for q in range(2):
                    a('s_add_u32 m0, s5, 0x%x' % (slot * STAGE + q * 1024))
                    a('s_nop 0')
                    a('buffer_load_dwordx4 %s, %s, %s offen lds' % (vr(16 + q), sr(SRD_T, 4), sr(S_OFT)))
            for q in range(NWQ if not (c.tfirst and st == 0) else 0):
                a('s_add_u32 m0, %s, 0x%x' % (sr(S_PW), slot * STAGE + q * 1024))
                a('s_nop 0')
                a('buffer_load_dwordx4 %s, %s, %s offen lds' % (vr(12 + q), sr(SRD_W, 4), sr(S_OFW)))
        log.extend([('st', st)] * ((4 if full else 2) + NWQ))
        if st == NS - 1 and not c.xlate:
            after_last_issue()
    def pre_stats_loads():
        a('v_subrev_u32 v28, 256, v0')
        a('v_and_b32 v5, 127, v28')
        a('v_lshrrev_b32 v6, 7, v28')
        a('v_add_u32 v7, %s, v5' % sr(S_ROW))
        a('v_lshlrev_b32 v7, 3, v7')
        a('v_lshl_add_u32 v7, v6, 17, v7')
        for m in range(8):
            a('s_mov_b32 %s, 0x%x' % (T0, m * S_ * 8))
            a('buffer_load_dwordx2 %s, v7, %s, %s offen' % (vr(32 + 2 * m, 2), sr(SRD_X, 4), T0))
        a('v_add_u32 v22, %s, v28' % sr(S_COL))
        a('v_lshlrev_b32 v22, 2, v22')
        a('v_cmp_gt_u32 vcc, 224, v28')
        a('v_mov_b32 v23, 0x%x' % OOB)
        a('s_nop 0')
        a('v_cndmask_b32 v22, v23, v22, vcc')
        for m in range(16):
            a('s_mov_b32 %s, 0x%x' % (T0, m * F_ * 4))
            a('buffer_load_dword %s, v22, %s, %s offen' % (vr(48 + m), sr(SRD_Y, 4), T0))
        other(24)
    def pre_stats_finish():
        SP_OFF = RING
        CS_OFF = SP_OFF + 2048
        for m in range(1, 8):
            a('v_add_f32 v32, v32, %s' % vr(32 + 2 * m))
            a('v_add_f32 v33, v33, %s' % vr(33 + 2 * m))
        a('v_and_b32 v5, 127, v28')
        a('v_lshrrev_b32 v6, 7, v28')
        a('v_lshlrev_b32 v5, 3, v5')
        a('v_lshl_add_u32 v5, v6, 10, v5')
        a('v_add_u32 v5, 0x%x, v5' % SP_OFF)
        a('ds_write_b64 v5, v[32:33]')
        for m in range(1, 16):
            a('v_add_f32 v48, v48, %s' % vr(48 + m))
        a('v_lshlrev_b32 v5, 2, v28')
        a('v_add_u32 v5, 0x%x, v5' % CS_OFF)
        a('ds_write_b32 v5, v48')
        a('s_waitcnt lgkmcnt(0)')
    def after_last_issue():
        if BN != 224:
            other(resid_loads())
        if c.side:
            mk_srd(a, SRD_P, 'w3', D_ * F_ * 2)
            a('s_and_b32 %s, s2, 15' % T0)
            a('s_lshl_b32 %s, %s, 6' % (T0, T0))
            a('s_lshl_b32 %s, %s, 4' % (T1, sr(S_ROLE)))
            a('s_add_u32 %s, %s, %s' % (T0, T0, T1))
            a('v_lshrrev_b32 v3, 5, v2')
            a('v_add_u32 v3, %s, v3' % T0)
            a('v_mul_u32_u24 v3, 7168, v3')
            a('v_and_b32 v4, 31, v2')
            a('v_lshl_add_u32 v3, v4, 4, v3')
            a('s_lshr_b32 %s, s2, 4' % T1)
            a('s_mul_i32 %s, %s, 448' % (T1, T1))
            a('v_add_u32 v3, %s, v3' % T1)
            a('v_cmp_gt_u32 vcc, 28, v4')
            a('v_mov_b32 v5, 0x%x' % OOB)
            a('s_nop 0')
            a('v_cndmask_b32 v3, v5, v3, vcc')
            for m in range(8):
                a('s_mov_b32 %s, 0x%x' % (T0, m * 2 * 7168))
                a('buffer_load_dwordx4 %s, v3, %s, %s offen' % (vr(64 + 4 * m, 4), sr(SRD_P, 4), T0))
            other(8)
    if c.prof:
        a('s_memrealtime s[98:99]')
    if c.rings:
        def issueT(st):
            a('s_mov_b32 %s, 0x%x' % (sr(S_OFT), st * 128))
            for q in range(4):
                a('s_add_u32 m0, %s, 0x%x' % (sr(S_PT), (st % RT) * 16384 + q * 1024))
                a('s_nop 0')
                a('buffer_load_dwordx4 %s, %s, %s offen lds' % (vr(8 + q), sr(SRD_T, 4), sr(S_OFT)))
            log.extend([('st', st)] * 4)
        def issueW(st):
            a('s_mov_b32 %s, 0x%x' % (sr(S_OFW), st * 64 * c.Wstride))
            for q in range(NWQ):
                a('s_add_u32 m0, %s, 0x%x' % (sr(S_PW), (st % RW) * WT + q * 1024))
                a('s_nop 0')
                a('buffer_load_dwordx4 %s, %s, %s offen lds' % (vr(12 + q), sr(SRD_W, 4), sr(S_OFW)))
            log.extend([('st', st)] * NWQ)
        nT = nW = 0
        issueT(0); issueW(0); nT = nW = 1
        if RT > 1: issueT(1); nT = 2
        common_srds()
        if c.prof:
            a('s_memrealtime s[100:101]')
        pre_idx = None
        for t in range(NS):
            lastpos = max(i for i, e in enumerate(log) if e == ('st', t))
            n_after = len(log) - 1 - lastpos
            assert n_after <= 63, n_after
            a('s_waitcnt vmcnt(%d)' % n_after)
            a('s_barrier')
            if c.prof and c.trace and t < 64:
                a('s_memrealtime s[6:7]')
                a('s_waitcnt lgkmcnt(0)')
                a('v_writelane_b32 v254, s6, %d' % t)
            if c.prof and t == 0:
                a('s_memrealtime s[78:79]')
                a('s_memtime s[92:93]')
            if c.prof and t == NS // 2:
                a('s_memrealtime s[88:89]')
            while nT < NS and nT <= max(RT - 1, t - 1 + RT):
                issueT(nT); nT += 1
            k = 0
            while nW < NS and nW <= max(RW - 1, t - 1 + RW) and k < c.rate:
                issueW(nW); nW += 1; k += 1
            if c.epi == 'gelu_pre' and t == 0:
                pre_stats_loads(); pre_idx = len(log) - 1
                if c.zflags:
                    mk_srd(a, SRD_P, ('ws', WS_FLAG), 512 * 128)
                    a('s_lshl_b32 %s, s2, 8' % T0)
                    a('v_lshlrev_b32 v6, 7, v2')
                    a('v_add_u32 v6, %s, v6' % T0)
                    a('v_cmp_gt_u32 vcc, 2, v2')
                    a('v_mov_b32 v7, 0x%x' % OOB)
                    a('v_mov_b32 v20, 0')
                    a('v_cndmask_b32 v6, v7, v6, vcc')
                    a('buffer_store_dword v20, v6, %s, 0 offen sc1' % sr(SRD_P, 4))
                    other(1)
            if c.epi == 'gelu_pre' and t > 1 and pre_idx is not None and pre_idx >= 0 and lastpos > pre_idx:
                pre_stats_finish(); pre_idx = -1
        assert nT == NS and nW == NS
        assert pre_idx in (None, -1)
    else:
        nxt_issue = 0
        for _ in range(min(c.first, S)):
            issue(nxt_issue); nxt_issue += 1
        common_srds()
        if c.prof:
            a('s_memrealtime s[100:101]')
        pre_idx = None
        for t in range(NS):
            lastpos = max(i for i, e in enumerate(log) if e == ('st', t))
            n_after = len(log) - 1 - lastpos
            assert n_after <= 63, n_after
            if c.wprof:
                a('s_memtime s[6:7]')
                a('s_waitcnt lgkmcnt(0)')
                a('s_mov_b32 s3, s6')
            a('s_waitcnt vmcnt(%d)' % n_after)
            if c.wprof:
                a('s_memtime s[6:7]')
                a('s_waitcnt lgkmcnt(0)')
                a('s_sub_u32 s3, s6, s3')
                a('v_writelane_b32 v251, s3, %d' % t)
                a('s_mov_b32 s3, s6')
            a('s_barrier')
            if c.wprof:
                a('s_memtime s[6:7]')
                a('s_waitcnt lgkmcnt(0)')
                a('s_sub_u32 s3, s6, s3')
                a('v_writelane_b32 v255, s3, %d' % t)
            if c.prof and c.trace and t < 64:
                a('s_memrealtime s[6:7]')
                a('s_waitcnt lgkmcnt(0)')
                a('v_writelane_b32 v254, s6, %d' % t)
            if c.prof and t == 0:
                a('s_memrealtime s[78:79]')
                a('s_memtime s[92:93]')
            if c.prof and t == NS // 2:
                a('s_memrealtime s[88:89]')
            k = 0
            while nxt_issue < NS and nxt_issue <= max(S - 1, t - 1 + S) and k < c.rate:
                issue(nxt_issue); nxt_issue += 1; k += 1
            if c.xlate and t == NS - c.xlate:
                assert nxt_issue == NS
                after_last_issue()
            if c.epi == 'gelu_pre' and t == 0:
                pre_stats_loads(); pre_idx = len(log) - 1
                if c.zflags:
                    mk_srd(a, SRD_P, ('ws', WS_FLAG), 512 * 128)
                    a('s_lshl_b32 %s, s2, 8' % T0)
                    a('v_lshlrev_b32 v6, 7, v2')
                    a('v_add_u32 v6, %s, v6' % T0)
                    a('v_cmp_gt_u32 vcc, 2, v2')
                    a('v_mov_b32 v7, 0x%x' % OOB)
                    a('v_mov_b32 v20, 0')
                    a('v_cndmask_b32 v6, v7, v6, vcc')
                    a('buffer_store_dword v20, v6, %s, 0 offen sc1' % sr(SRD_P, 4))
                    other(1)
            if c.epi == 'gelu_pre' and t > 1 and pre_idx is not None and pre_idx >= 0 and lastpos > pre_idx:
                pre_stats_finish(); pre_idx = -1
        assert nxt_issue == NS
    a('s_barrier')
    if c.prof:
        a('s_memrealtime s[80:81]')
        a('s_memtime s[94:95]')
    for item in c.epf:
        pf(item, wreg=S_ROLE)
    if c.epi == 'gelu_inloop':
        a('s_barrier')
    if c.early:
        a('s_barrier')
    elif c.split:
        a('s_barrier')
        a('s_cmp_lg_u32 %s, 4' % sr(S_WAVE))
        a('s_cbranch_scc1 %s' % L('store'))
        a('s_lshr_b32 %s, s2, 2' % T1)
        a('s_lshl_b32 %s, %s, 2' % (T1, T1))
        a('s_and_b32 %s, s2, 3' % T2)
        a('s_lshl_b32 %s, %s, 3' % (T2, T2))
        a('s_lshl_b32 %s, 1, %s' % (T2, T2))
        a('v_mov_b32 v7, %s' % T1)
        a('v_mov_b32 v20, %s' % T2)
        a('v_cmp_eq_u32 vcc, 0, v2')
        a('v_mov_b32 v21, 0x%x' % OOB)
        a('s_nop 0')
        a('v_cndmask_b32 v7, v21, v7, vcc')
        a('buffer_atomic_or v20, v7, %s, 0 offen sc1' % sr(SRD_Y, 4))
    SIDE_OFF = 49152
    def side_acc():
        a('s_waitcnt vmcnt(0)')
        for r in range(8):
            a('v_mov_b32 %s, 0' % vr(112 + r))
        for m in range(8):
            for d in range(4):
                a('v_lshlrev_b32 v22, 16, %s' % vr(64 + 4 * m + d))
                a('v_and_b32 v23, %s, %s' % (sr(S_MASK), vr(64 + 4 * m + d)))
                a('v_add_f32 %s, %s, v22' % (vr(112 + 2 * d), vr(112 + 2 * d)))
                a('v_add_f32 %s, %s, v23' % (vr(113 + 2 * d), vr(113 + 2 * d)))
        a('v_lshrrev_b32 v3, 5, v2')
        a('s_lshl_b32 %s, %s, 1' % (T0, sr(S_ROLE)))
        a('v_add_u32 v3, %s, v3' % T0)
        a('v_mul_u32_u24 v3, 1024, v3')
        a('v_and_b32 v4, 31, v2')
        a('v_lshl_add_u32 v3, v4, 5, v3')
        a('ds_write_b128 v3, v[112:115] offset:%d' % SIDE_OFF)
        a('ds_write_b128 v3, v[116:119] offset:%d' % (SIDE_OFF + 16))
        a('s_waitcnt lgkmcnt(0)')
    def side_acc_late():
        n0 = len(a.L)
        side_acc()
        assert 'vmcnt(0)' in a.L[n0]
        del a.L[n0]
        a('s_barrier')
    if c.side and not c.sidelate:
        side_acc()
    if BN == 224:
        for q in range(4):
            a('s_mul_i32 %s, %s, 224' % (T0, sr(S_ROLE)))
            a('s_add_u32 %s, %s, %d' % (T0, T0, q * 64))
            a('v_add_u32 v6, %s, v2' % T0)
            a('v_mul_u32_u24 v7, 2341, v6')
            a('v_lshrrev_b32 v7, 16, v7')
            a('v_mul_u32_u24 v20, 28, v7')
            a('v_sub_u32 v6, v6, v20')
            a('v_and_b32 v20, 15, v7')
            a('v_lshrrev_b32 v7, 4, v7')
            a('v_lshl_add_u32 v7, v7, 6, v20')
            a('v_mul_u32_u24 v20, %d, v7' % RS)
            a('v_lshl_add_u32 %s, v6, 4, v20' % vr(24 + q))
            a('v_add_u32 v7, %s, v7' % sr(S_ROW))
            a('s_mov_b32 %s, %d' % (T1, c.Ostride))
            a('v_mul_lo_u32 v7, v7, %s' % T1)
            a('v_lshl_add_u32 v7, v6, 4, v7')
            a('s_lshl_b32 %s, %s, 1' % (T1, sr(S_COL)))
            a('v_add_u32 %s, %s, v7' % (vr(28 + q), T1))
            if q == 3:
                a('v_cmp_gt_u32 vcc, 32, v2')
                a('v_mov_b32 v20, 0x%x' % OOB)
                a('v_mov_b32 v21, 0')
                a('v_cndmask_b32 v31, v20, v31, vcc')
                a('v_cndmask_b32 v27, v21, v27, vcc')
        for tb in range(4):
            a('s_barrier')
            for q in range(4):
                a('ds_read_b128 %s, %s offset:%d' % (vr(32 + 16 * (tb & 1) + 4 * q, 4), vr(24 + q), tb * 16 * RS))
            a('s_mov_b32 %s, %d' % (T0, tb * 16 * c.Ostride))
            for q in range(4):
                a('s_waitcnt lgkmcnt(%d)' % (3 - q))
                a('buffer_store_dwordx4 %s, %s, %s, %s offen%s' % (vr(32 + 16 * (tb & 1) + 4 * q, 4), vr(28 + q), sr(SRD_O, 4), T0, ST))
        a('s_branch %s' % L('fin'))

    def side_fin():
        a('s_cmp_lt_u32 %s, 4' % sr(S_WAVE))
        a('s_cbranch_scc1 %s' % L('fin'))
        if c.sidelate:
            side_acc_late()
        a('v_subrev_u32 v3, 256, v0')
        a('v_lshlrev_b32 v4, 2, v3')
        for m in range(8):
            a('ds_read_b32 %s, v4 offset:%d' % (vr(40 + m), SIDE_OFF + m * 1024))
        a('s_waitcnt lgkmcnt(0)')
        for m in range(1, 8):
            a('v_add_f32 v40, v40, %s' % vr(40 + m))
        a('s_and_b32 %s, s2, 15' % T0)
        a('s_mul_i32 %s, %s, %d' % (T0, T0, F_ * 4))
        a('s_lshr_b32 %s, s2, 4' % T1)
        a('s_mul_i32 %s, %s, %d' % (T1, T1, 224 * 4))
        a('s_add_u32 %s, %s, %s' % (T0, T0, T1))
        a('v_add_u32 v4, %s, v4' % T0)
        a('v_cmp_gt_u32 vcc, 224, v3')
        a('v_mov_b32 v5, 0x%x' % OOB)
        a('s_nop 0')
        a('v_cndmask_b32 v4, v5, v4, vcc')
        a('buffer_store_dword v40, v4, %s, 0 offen%s' % (sr(SRD_Y, 4), ST))
    a.label(L('store'))
    if BN != 224:
        a('s_barrier')
        a('v_and_b32 v2, 63, v0')
        for q in range(2):
            rb_idx(q, 3, 4, 5)
            a('v_mul_u32_u24 v6, %d, v3' % RS)
            a('v_lshl_add_u32 v6, v4, 4, v6')
            a('ds_read_b128 %s, v6' % vr(32 + 4 * q, 4))
        if c.R is None:
            for q in range(2):
                a('s_waitcnt lgkmcnt(%d)' % (1 - q))
                a('buffer_store_dwordx4 %s, %s, %s, 0 offen%s' % (vr(32 + 4 * q, 4), vr(V_RBG + q), sr(SRD_O, 4), ST))
        else:
            a('s_waitcnt vmcnt(0) lgkmcnt(0)')
            for q in range(2):
                for d in range(4):
                    h = 32 + 4 * q + d; x = V_RES + 4 * q + d
                    a('v_lshlrev_b32 v8, 16, %s' % vr(h))
                    a('v_lshlrev_b32 v9, 16, %s' % vr(x))
                    a('v_and_b32 v10, %s, %s' % (sr(S_MASK), vr(h)))
                    a('v_and_b32 v11, %s, %s' % (sr(S_MASK), vr(x)))
                    a('v_add_f32 v8, v8, v9')
                    a('v_add_f32 v10, v10, v11')
                    a('v_cvt_pk_bf16_f32 %s, v8, v10' % vr(h))
                a('buffer_store_dwordx4 %s, %s, %s, 0 offen%s' % (vr(32 + 4 * q, 4), vr(V_RBG + q), sr(SRD_O, 4), ST))
            if c.epi == 'resid_stats':
                a('v_mov_b32 v21, 0x3f803f80')
                for q in range(2):
                    sv = 12 + 2 * q
                    a('v_mov_b32 %s, 0' % vr(sv))
                    a('v_mov_b32 %s, 0' % vr(sv + 1))
                    for d in range(4):
                        h = 32 + 4 * q + d
                        a('v_dot2c_f32_bf16 %s, %s, v21' % (vr(sv), vr(h)))
                        a('v_dot2c_f32_bf16 %s, %s, %s' % (vr(sv + 1), vr(h), vr(h)))
                a('s_nop 3')
                for dpp in ('quad_perm:[1,0,3,2]', 'quad_perm:[2,3,0,1]', 'row_half_mirror'):
                    for r in range(12, 16):
                        a('v_add_f32_dpp %s, %s, %s %s row_mask:0xf bank_mask:0xf' % (vr(r), vr(r), vr(r), dpp))
                    a('s_nop 0')
                for q in range(2):
                    rb_idx(q, 3, 4, 5)
                    a('v_add_u32 v3, %s, v3' % sr(S_ROW))
                    a('v_lshlrev_b32 v3, 3, v3')
                    a('s_lshl_b32 %s, %s, 14' % (T1, sr(S_CBK)))
                    a('v_add_u32 v3, %s, v3' % T1)
                    a('v_cmp_eq_u32 vcc, 0, v4')
                    a('v_mov_b32 v5, 0x%x' % OOB)
                    a('s_nop 0')
                    a('v_cndmask_b32 v3, v5, v3, vcc')
                    a('buffer_store_dwordx2 %s, v3, %s, 0 offen%s' % (vr(12 + 2 * q, 2), sr(SRD_X, 4), ST))
        if c.side:
            side_fin()
    a.label(L('fin'))
    if c.prof:
        a('s_cmp_lg_u32 %s, 4' % sr(S_WAVE))
        a('s_cbranch_scc1 %s' % L('done'))
        a('s_waitcnt vmcnt(0)')
        a('s_memrealtime s[82:83]')
        a('s_memtime s[86:87]')
        a('s_getreg_b32 s90, hwreg(HW_REG_XCC_ID)')
        a('s_waitcnt lgkmcnt(0)')
        mk_srd(a, SRD_X, ('ws', WS_PROF + c.idx * 65536), 65536)
        for r in range(26):
            a('v_mov_b32 %s, s%d' % (vr(32 + r), 76 + r))
        a('s_lshl_b32 s3, s2, 8')
        a('v_mov_b32 v3, s3')
        a('v_cmp_eq_u32 vcc, 0, v2')
        a('v_mov_b32 v5, 0x%x' % OOB)
        a('s_nop 0')
        a('v_cndmask_b32 v3, v5, v3, vcc')
        if c.wprof:
            mk_srd(a, SRD_Y, ('ws', WS_PROF + (12 + c.idx) * 65536), 65536)
            a('v_and_b32 v4, 31, v2')
            a('v_lshlrev_b32 v4, 2, v4')
            a('v_add_u32 v4, s3, v4')
            a('v_cmp_gt_u32 vcc, 32, v2')
            a('v_add_u32 v6, 128, v4')
            a('v_cndmask_b32 v6, v5, v4, vcc')
            a('buffer_store_dword v251, v6, %s, 0 offen' % sr(SRD_Y, 4))
            a('v_add_u32 v6, 128, v6')
            a('buffer_store_dword v255, v6, %s, 0 offen' % sr(SRD_Y, 4))
        if c.trace:
            mk_srd(a, SRD_Y, ('ws', WS_PROF + (8 + c.idx) * 65536), 65536)
            a('v_lshlrev_b32 v4, 2, v2')
            a('v_add_u32 v4, s3, v4')
            a('buffer_store_dword v254, v4, %s, 0 offen' % sr(SRD_Y, 4))
        for r in range(7):
            a('buffer_store_dwordx4 %s, v3, %s, 0 offen offset:%d' % (vr(32 + 4 * r, 4), sr(SRD_X, 4), 16 * r))
        if c.dbgout:
            a('s_cmp_lg_u32 s2, 0')
            a('s_cbranch_scc1 %s' % L('done'))
            a('s_waitcnt vmcnt(0)')
            mk_srd(a, SRD_X, ('ws', WS_PROF), 4 * 65536)
            mk_srd(a, SRD_Y, 'dbg', 256)
            a('v_lshrrev_b32 v3, 2, v2')
            a('v_lshlrev_b32 v3, 16, v3')
            a('v_and_b32 v4, 3, v2')
            a('v_lshl_add_u32 v3, v4, 3, v3')
            a('v_cmp_gt_u32 vcc, 16, v2')
            a('v_mov_b32 v5, 0x%x' % OOB)
            a('s_nop 0')
            a('v_cndmask_b32 v3, v5, v3, vcc')
            a('buffer_load_dword v6, v3, %s, 0 offen sc1' % sr(SRD_X, 4))
            a('v_lshlrev_b32 v4, 2, v2')
            a('v_cndmask_b32 v4, v5, v4, vcc')
            a('s_waitcnt vmcnt(0)')
            a('v_readfirstlane_b32 %s, v6' % T0)
            a('s_nop 3')
            a('v_subrev_u32 v6, %s, v6' % T0)
            a('buffer_store_dword v6, v4, %s, 0 offen' % sr(SRD_Y, 4))
    a.label(L('done'))
    a('s_endpgm')
    if c.pfirst:
        cons = a.L[IDX_C:IDX_P]; prod = a.L[IDX_P:]
        a.L[IDX_C:] = prod + cons
    a.label(name + '_end')
    return RING + (4096 if c.epi == 'gelu_pre' else 0) + (32768 if c.early else 0)

def descriptor(name):
    return '''.amdhsa_kernel %s
  .amdhsa_next_free_vgpr 256
  .amdhsa_next_free_sgpr 102
  .amdhsa_accum_offset 256
  .amdhsa_group_segment_fixed_size 0
  .amdhsa_kernarg_size 64
  .amdhsa_user_sgpr_count 2
  .amdhsa_user_sgpr_kernarg_segment_ptr 1
  .amdhsa_system_sgpr_workgroup_id_x 1
.end_amdhsa_kernel
''' % name

def mk(name, **kw):
    c = Cfg()
    c.name = name
    c.prof = False; c.trace = False; c.shift = False; c.R = None; c.stflag = ' sc1'
    c.rot = 0; c.kdpf = None; c.side = False; c.sidelate = False; c.tfirst = False; c.pfirst = False; c.rings = None; c.xlate = 0; c.krot = None; c.pprio = 0; c.ofs = False; c.wprof = False; c.epf = []; c.k3pf = []; c.dbgout = False; c.early = 0; c.ackb = 5; c.chk = []; c.zflags = False; c.pf_at = []; c.grp0 = []; c.code0 = []; c.stats = 'mfma'; c.first = 2; c.rate = 2; c.split = False
    for k, v in kw.items():
        setattr(c, k, v)
    return c

def configs(opts, split4):
    base = 'standalone__mixer_s_mlp__prompt'
    k4 = dict(BN=128, S=4, map='split', split=True) if split4 else dict(BN=64, S=6, map='4x8')
    return [
        mk('k1_kernel', BN=64, K=1024, S=6, T='x', Tbytes=NB, Tstride=2048, W='w1', Wbytes=D_ * D_ * 2, Wstride=2048,
           O=('ws', WS_H), Obytes=S_ * HS, Ostride=HS, epi='gelu_inloop', map='4x8', **opts),
        mk('k2_kernel', BN=64, K=1024, S=6, T=('ws', WS_H), Tbytes=S_ * HS, Tstride=HS, W='w2', Wbytes=D_ * D_ * 2, Wstride=2048,
           O=('ws', WS_X1), Obytes=S_ * HS, Ostride=HS, epi='resid_stats', map='4x8', R='x', Rstride=2048, shift=True, side=True, **opts),
        mk('k3_kernel', BN=224, K=1024, S=3, T=('ws', WS_X1), Tbytes=S_ * HS, Tstride=HS, W='w3', Wbytes=D_ * F_ * 2, Wstride=7168,
           O=('ws', WS_G), Obytes=S_ * GS, Ostride=GS, epi='gelu_pre', map='8x4', **opts),
        mk(base + '_kernel', K=3584, T=('ws', WS_G), Tbytes=S_ * GS, Tstride=GS, W='w4', Wbytes=F_ * D_ * 2, Wstride=2048,
           O='out', Obytes=NB, Ostride=2048, epi='resid', R=('ws', WS_X1), Rstride=HS, **k4, **opts),
    ]

own_cols = lambda buf: (buf, D_ * D_ * 2, 2048, 3, 7, (0, 0, 0), 32, 32, (0, 1, 1024))
EPF = {
    'w3l2': ('w3', D_ * F_ * 2, 7168, 4, 13, (0, 0, 0), 32, 32, (0, 3, 1792)),
    'w4l2': ('w4', F_ * D_ * 2, 2048, 3, 7, (0, 1, 1792), 56, 64, (2, 1, 1024)),
    'w4m': ('w4', F_ * D_ * 2, 2048, 4, 15, (0, 7, 448), 14, 16, (0, 0, 0)),
    'w3m': ('w3', D_ * F_ * 2, 7168, 6, 55, (0, 7, 128), 4, 4, (0, 0, 0)),
    'w4l2a': ('w4', F_ * D_ * 2, 2048, 3, 7, (0, 1, 1792), 32, 32, (2, 1, 1024)),
}
ITEMS = {
    'w2': own_cols('w2'),
    'w3': ('w3', D_ * F_ * 2, 7168, 6, 55, (0, 7, 128), 4, 4, (0, 0, 0)),
    'w4': ('w4', F_ * D_ * 2, 2048, 4, 15, (0, 7, 448), 14, 16, (0, 0, 0)),
}

def main():
    out = sys.argv[1]
    opts = {}
    for o in sys.argv[2:]:
        k, v = o.split('=', 1)
        opts[k] = eval(v)
    only = opts.pop('only', None)
    split4 = opts.pop('split4', True)
    pfat = opts.pop('pfat', {0: [(10, ['w2']), (13, ['w3'])], 2: [(2, ['w4:0']), (5, ['w4:1']), (8, ['w4:2']), (11, ['w4:3'])]})
    per = opts.pop('per', {})
    codepf = opts.pop('codepf', True)
    cfgs = configs(opts, split4)
    for ki, lst in pfat.items():
        def conv(n):
            if n[0] == 'g': return ('grp', int(n[1:]))
            if n[0] == 'k': return ('k3g', int(n[1:]))
            if n[0] == 'B': return ('bad2', 'w4', F_ * D_ * 2, int(n[1]))
            if n[0] == 'b': return ('bad', 'w4', F_ * D_ * 2, int(n[1]) * 2048, int(n[2]))
            if n[0] == 'c': return ('code', cfgs[int(n[1])].name, 2)
            return ('onlywave', int(n[3]), ITEMS[n[:2]]) if len(n) > 2 else ITEMS[n]
        cfgs[ki].pf_at = [(it, [conv(n) for n in names]) for it, names in lst]
    if cfgs[3].__dict__.get('early') or any(d.get('early') for k, d in per.items() if k == 3):
        cfgs[2].zflags = True
    if codepf:
        cfgs[0].code0 = [(cfgs[0].name, 2, False)]
    for ki, d in per.items():
        for k, v in d.items():
            if k == 'epf': v = [EPF[n] for n in v]
            setattr(cfgs[ki], k, v)
    if only is not None:
        cfgs = [cfgs[i] for i in only]
    a = Asm()
    ldss = []
    for i, c in enumerate(cfgs):
        c.idx = i
        ldss.append(gen_kernel(a, c))
    hdr = open('standalone__mixer_s_mlp__prompt.s.ref').read().split('; Override')[0]
    s = hdr
    for c, lds in zip(cfgs, ldss):
        s += '; @launch kernel=%s grid=(256,1,1) block=(512,1,1) lds=%d\n' % (c.name, lds)
    s += '.amdgcn_target "amdgcn-amd-amdhsa--gfx950"\n.text\n'
    s += a.text()
    s += '.section .rodata,"a"\n.p2align 6\nkd_start:\n'
    for c in cfgs:
        s += descriptor(c.name) + '.p2align 6\n'
    open(out, 'w').write(s)

if __name__ == '__main__':
    main()
```
